```python
import torch

def _softmax(x, axis=-1):
    return torch.softmax(x, dim=axis)
def _gelu(x):
    return torch.nn.functional.gelu(x, approximate="tanh")
def _silu(x):
    return torch.nn.functional.silu(x)
def _sigmoid(x):
    return torch.sigmoid(x)
def _layernorm(x, axis=-1, eps=1e-5):
    m = x.mean(dim=axis, keepdim=True)
    v = x.var(dim=axis, keepdim=True, unbiased=False)
    return (x - m) / torch.sqrt(v + eps)
def _scatter_add(tgt, idx, src, axis=0):
    return tgt.clone().index_add_(axis, idx, src)
def _segment_sum(src, seg, n):
    out = torch.zeros((n,) + src.shape[1:], dtype=src.dtype)
    return out.index_add_(0, seg, src)
def _pad(x, pw):
    flat = tuple(v for pair in reversed(pw) for v in pair)
    return torch.nn.functional.pad(x, flat)

kernel_name = 'standalone__gqa_block_cached__near_ridge'

def setup_inputs():

    _w = (lambda a: (lambda t: t.to(torch.bfloat16) if t.is_floating_point() else t)(torch.as_tensor(a)))
    B, Sq, D = 8, 160, 448
    Hq, Hkv, Sk, Dh = 16, 8, 1024, 256
    assert Hq % Hkv == 0, (Hq, Hkv)
    return {
        "x": _w((lambda *s: torch.randn(*s, dtype=torch.bfloat16) * 0.8)(B, Sq, D)),
        "k_cache": _w((lambda *s: torch.randn(*s, dtype=torch.bfloat16) * 0.8)(B, Hkv, Sk, Dh)),
        "v_cache": _w((lambda *s: torch.randn(*s, dtype=torch.bfloat16) * 0.05)(B, Hkv, Sk, Dh)),
        "wq": _w((lambda *s: torch.randn(*s, dtype=torch.bfloat16) * 0.8)(D, Hq * Dh) * (D ** -0.5)),
        "wo": _w((lambda *s: torch.randn(*s, dtype=torch.bfloat16) * 0.05)(Hq * Dh, D) * ((Hq * Dh) ** -0.5)),
    }

def reference(x, k_cache, v_cache, wq, wo):
    B, Sq, D = x.shape
    Hq, Dh = 16, 256
    Hkv = k_cache.shape[1]
    rep = Hq // Hkv
    q = (lambda x, *d: x.permute(*d))((x @ wq).reshape(B, Sq, Hq, Dh), 0, 2, 1, 3)
    k = (lambda x, n, axis: torch.repeat_interleave(x, n, dim=axis))(k_cache, rep, axis=1)
    v = (lambda x, n, axis: torch.repeat_interleave(x, n, dim=axis))(v_cache, rep, axis=1)
    scores = torch.einsum("bhqd,bhkd->bhqk", q, k) * (Dh ** -0.5)
    p = _softmax(scores, axis=-1)
    o = torch.einsum("bhqk,bhkd->bhqd", p, v)
    return (lambda x, *d: x.permute(*d))(o, 0, 2, 1, 3).reshape(B, Sq, Hq * Dh) @ wo
```

```python
import re

_REG_RE = re.compile(r'^(-?)(abs\()?([vsa])(\d+|\[(\d+):(\d+)\])\)?$')


def parse_regs(tok):
    tok = tok.strip()
    if tok in ('vcc', 'vcc_lo', 'vcc_hi'):
        return [('s', 'vcc')]
    if tok in ('exec',):
        return [('s', 'exec')]
    if tok == 'm0':
        return [('s', 'm0')]
    if tok == 'scc':
        return []
    m = _REG_RE.match(tok)
    if not m:
        return []
    kind = m.group(3)
    if m.group(5) is not None:
        lo, hi = int(m.group(5)), int(m.group(6))
        return [(kind, i) for i in range(lo, hi + 1)]
    return [(kind, int(m.group(4)))]


TRANS = ('v_exp_f32', 'v_log_f32', 'v_rcp_f32', 'v_rsq_f32', 'v_sqrt_f32', 'v_sin_f32', 'v_cos_f32')


class Ins:
    __slots__ = ('text', 'mn', 'cls', 'rd', 'wr', 'states', 'srcC', 'srcAB', 'lds_dma', 'wide_store')

    def __init__(self, text):
        self.text = text
        t = text.split(';')[0].strip()
        parts = t.split(None, 1)
        mn = parts[0]
        self.mn = mn
        ops = []
        mods = ''
        if len(parts) > 1:
            raw = parts[1]
            toks = [x.strip() for x in re.split(r',(?![^\[]*\])', raw)]
            last = toks[-1].split()
            if last:
                toks[-1] = last[0]
                mods = ' '.join(last[1:])
            ops = toks
        R = [parse_regs(o) for o in ops]
        rd, wr = [], []
        self.srcC = []
        self.srcAB = []
        self.lds_dma = False
        self.wide_store = False
        self.states = 1
        if mn == 's_nop':
            self.cls = 'nop'
            self.states = int(ops[0], 0) + 1
        elif mn.startswith('v_mfma'):
            self.cls = 'mfma'
            wr = R[0]
            self.srcAB = R[1] + R[2]
            self.srcC = R[3]
            rd = R[1] + R[2] + R[3]
        elif mn.startswith('v_permlane') and 'swap' in mn:
            self.cls = 'permlane'
            wr = R[0] + R[1]
            rd = R[0] + R[1]
        elif mn.startswith('v_readfirstlane') or mn.startswith('v_readlane'):
            self.cls = 'readlane'
            wr = R[0]
            rd = sum(R[1:], [])
        elif mn.startswith('v_cmp'):
            self.cls = 'valu'
            wr = R[0]
            rd = sum(R[1:], [])
        elif mn.startswith('v_'):
            self.cls = 'trans' if mn.replace('_e32', '').replace('_e64', '') in TRANS else 'valu'
            wr = R[0]
            rd = sum(R[1:], [])
            if mn.startswith('v_fmac') or mn.startswith('v_dot2c') or mn.startswith('v_writelane'):
                rd = rd + R[0]
            if mn.startswith('v_add_co') or mn.startswith('v_addc_co') or mn.startswith('v_sub_co'):
                wr = R[0] + R[1]
                rd = sum(R[2:], [])
        elif mn.startswith('ds_read') or mn.startswith('ds_bpermute') or mn.startswith('ds_swizzle') or '_rtn_' in mn and mn.startswith('ds_'):
            self.cls = 'ds'
            wr = R[0]
            rd = sum(R[1:], [])
        elif mn.startswith('ds_'):
            self.cls = 'ds'
            rd = sum(R, [])
        elif mn.startswith('buffer_load') or mn.startswith('global_load'):
            self.cls = 'vmem'
            if ' lds' in (' ' + mods) or mn.startswith('global_load_lds'):
                self.lds_dma = True
                rd = sum(R, []) + [('s', 'm0')]
            else:
                wr = R[0]
                rd = sum(R[1:], [])
        elif mn.startswith('buffer_store') or mn.startswith('global_store') or mn.startswith('buffer_atomic') \
                or mn.startswith('global_atomic'):
            self.cls = 'vmem'
            rd = sum(R, [])
            if mn.endswith('x4') or mn.endswith('x3'):
                self.wide_store = True
                self.srcAB = R[0] if mn.startswith('buffer') else R[1]
        elif mn.startswith('buffer_') or mn.startswith('global_'):
            self.cls = 'vmem'
        elif mn in ('s_waitcnt', 's_barrier', 's_endpgm', 's_branch', 's_setprio', 's_sleep') or mn.startswith('s_cbranch'):
            self.cls = 'sctl'
            if mn in ('s_cbranch_vccz', 's_cbranch_vccnz'):
                rd = [('s', 'vcc')]
        elif mn.startswith('s_cmp') or mn.startswith('s_bitcmp'):
            self.cls = 'salu'
            rd = sum(R, [])
        elif mn.startswith('s_load') or mn.startswith('s_memtime') or mn.startswith('s_memrealtime'):
            self.cls = 'smem'
            wr = R[0]
            rd = sum(R[1:], [])
        elif mn.startswith('s_'):
            self.cls = 'salu'
            wr = R[0]
            rd = sum(R[1:], [])
            if 'saveexec' in mn:
                wr = wr + [('s', 'exec')]
        else:
            raise ValueError('unknown instr ' + text)
        if mn.startswith('v_cndmask') and len(ops) == 4:
            pass
        self.rd = set(rd)
        self.wr = set(wr)


def required(prod, cons):
    need = 0
    pv = prod.cls in ('valu', 'trans', 'permlane', 'readlane')
    cv = cons.cls in ('valu', 'trans', 'permlane', 'readlane')
    if prod.cls == 'mfma':
        D = prod.wr
        passes = 8 if '32x32' in prod.mn else 4
        big = {4: 8, 8: 12}[passes]
        ovl = {4: 6, 8: 10}[passes]
        war = {4: 3, 8: 7}[passes]
        if cons.cls == 'mfma':
            if D & set(cons.srcAB):
                need = max(need, big)
            c = set(cons.srcC)
            if D & c and c != D:
                need = max(need, ovl)
            if D & cons.wr and c != D:
                need = max(need, ovl)
        elif cv or cons.cls in ('ds', 'vmem'):
            if D & (cons.rd | cons.wr):
                need = max(need, big)
        if cv and set(prod.srcC) & cons.wr:
            need = max(need, war)
    if pv:
        vw = {r for r in prod.wr if r[0] in 'va'}
        sw = {r for r in prod.wr if r[0] == 's'}
        if cons.cls == 'mfma' and vw & cons.rd:
            need = max(need, 2)
        if cons.cls == 'permlane' and vw & cons.rd:
            need = max(need, 2)
        if cons.cls == 'readlane' and vw & cons.rd:
            need = max(need, 1)
        if prod.cls == 'trans' and cv and cons.cls != 'trans' and vw & (cons.rd | cons.wr):
            need = max(need, 1)
        if prod.cls == 'trans' and cons.cls in ('ds', 'vmem', 'mfma') and vw & cons.rd:
            need = max(need, 2)
        if sw:
            if cv and sw & cons.rd:
                need = max(need, 4 if cons.cls == 'readlane' else 2)
            if cons.cls == 'vmem' and sw & cons.rd:
                need = max(need, 5)
            if cons.cls in ('salu', 'sctl') and sw & cons.rd:
                need = max(need, 1)
            if ('s', 'exec') in sw:
                need = max(need, 5)
    if prod.cls == 'salu' and ('s', 'm0') in prod.wr and cons.lds_dma:
        need = max(need, 1)
    if prod.cls == 'vmem' and prod.wide_store and set(prod.srcAB) & cons.wr:
        need = max(need, 2)
    return need


class Asm:
    def __init__(self):
        self.out = []
        self.hist = []
        self.lds = []
        self.auto_lgkm = True
        self.nins = 0

    def raw(self, text):
        self.out.append(text)

    def comment(self, text):
        self.out.append('    ; ' + text)

    def label(self, name):
        self.out.append(name + ':')

    def _push(self, ins):
        self.out.append('    ' + ins.text)
        self.hist.append(ins)
        if len(self.hist) > 40:
            self.hist.pop(0)
        self.nins += 1

    def i(self, text):
        ins = Ins(text)
        if ins.mn == 's_waitcnt':
            m = re.search(r'lgkmcnt\((\d+)\)', text)
            if m:
                n = int(m.group(1))
                if n < len(self.lds):
                    self.lds = self.lds[len(self.lds) - n:] if n > 0 else []
        elif self.auto_lgkm:
            touched = ins.rd | ins.wr
            last = -1
            for k, d in enumerate(self.lds):
                if d & touched:
                    last = k
            if last >= 0:
                n = len(self.lds) - 1 - last
                n = min(n, 15)
                w = Ins('s_waitcnt lgkmcnt(%d)' % n)
                self._push(w)
                self.lds = self.lds[len(self.lds) - n:] if n > 0 else []
        if ins.cls == 'ds' and self.auto_lgkm and len(self.lds) >= 15:
            self._push(Ins('s_waitcnt lgkmcnt(14)'))
            self.lds = self.lds[len(self.lds) - 14:]
        need = 0
        dist = 0
        for p in reversed(self.hist):
            r = required(p, ins)
            if r > dist:
                need = max(need, r - dist)
            dist += p.states
            if dist > 16:
                break
        while need > 0:
            k = min(need, 16)
            self._push(Ins('s_nop %d' % (k - 1)))
            need -= k
        self._push(ins)
        if ins.cls == 'ds':
            self.lds.append(set(ins.wr))
        elif ins.cls == 'smem':
            self.lds.append(set(ins.wr))

    def fence(self, n=9):
        self.i('s_nop %d' % (n - 1))

    def reset(self):
        self.hist = []
        self.lds = []

    def text(self):
        return '\n'.join(self.out) + '\n'


def vr(base, n=1):
    return 'v%d' % base if n == 1 else 'v[%d:%d]' % (base, base + n - 1)


def sr(base, n=1):
    return 's%d' % base if n == 1 else 's[%d:%d]' % (base, base + n - 1)
```

```python
import struct, sys, math
from asmlib import Asm, vr, sr

K1 = 1024
VR = lambda w: w * 16 * K1
KR0 = 64 * K1
PB = 128 * K1
SM = 152 * K1
MX = SM
FL = SM + 1024
AL = SM + 1536
LS = SM + 2560
OB = 112 * K1
WSLOT = [128 * K1, 64 * K1, 96 * K1]
XSLOT = [40 * K1, 0, 10 * K1]
QB = 0
LDS_BYTES = 160 * K1


def f32hex(x):
    return '0x%08x' % struct.unpack('<I', struct.pack('<f', x))[0]


CSCALE = math.log2(math.e) / 16.0
THR = 8.0

S_X, S_K, S_V, S_WQ, S_WO, S_OUT, S_DBG, S_WS = 4, 6, 8, 10, 12, 14, 16, 18
S_WAVE, S_W, S_B, S_HKV, S_H, S_GRP = 20, 21, 22, 23, 24, 25
S_T0, S_T1, S_T2, S_T3 = 26, 27, 28, 29
SRD_ST, SRD_WQ, SRD_X, SRD_WO, SRD_PO = 32, 36, 40, 44, 48
S_SOFF, S_STEPU, S_STEPL, S_RING, S_P, S_C = 52, 53, 54, 55, 56, 57
S_CG = 58
S_XL = [59, 60, 61]
S_XG = [62, 63, 64]
S_WCUR, S_WN1, S_WN2, S_XCUR, S_XN1, S_XN2 = 65, 66, 67, 68, 69, 70
S_WQOFF = 71

V_LANE = 1
G_TA = [2, 3, 4, 5]
G_UB = [6, 7]
V_PAT = [8, 9]
G_FLA = 10
G_ALA = 11
G_AL = 12
G_T = [17, 18, 19, 20, 21, 22, 23]
G_BF = lambda e, i: 72 + e * 20 + i * 4
G_AF = lambda e, a: 112 + e * 16 + a * 4
ACC_O = lambda a, i: 176 + (a * 5 + i) * 4


def ACC_W(a, i):
    k = a * 5 + i
    return 144 + k * 4 if k < 8 else 24 + (k - 8) * 4


Q_UA = [2, 3]
Q_PWA = 4
Q_MXW = 5
Q_MX4 = 6
Q_FLW = 7
Q_FLAG = 10
Q_TMP = [11, 12, 13, 14, 15, 16, 17, 18, 19, 20, 21, 22, 23]
Q_TMAX = 24
Q_L = 30
Q_MC = 35
Q_KF = lambda k: 40 + k * 4
Q_S = lambda par, i: 56 + par * 20 + i * 4
Q_Q = lambda i, s: 96 + (i * 8 + s) * 4

MFMA = 'v_mfma_f32_16x16x32_bf16'


def mfma(a, d, A, B, c=None):
    a.i('%s %s, %s, %s, %s' % (MFMA, vr(d, 4), vr(A, 4), vr(B, 4), vr(d, 4) if c is None else c))


def build_srd(a, srd, ptr, off_sgpr, nrec):
    a.i('s_add_u32 %s, %s, %s' % (sr(srd), sr(ptr), sr(off_sgpr)))
    a.i('s_addc_u32 %s, %s, 0' % (sr(srd + 1), sr(ptr + 1)))
    a.i('s_mov_b32 %s, %s' % (sr(srd + 2), nrec))
    a.i('s_mov_b32 %s, 0x20000' % sr(srd + 3))


def pat_U(a, dst, tmp, R, hk_list=(0, 1), hk_sgpr=None, sub=True):
    t0, t1 = tmp
    a.i('s_mov_b32 %s, %d' % (sr(S_T3), R))
    for hk, d in zip(hk_list, dst):
        a.i('v_lshrrev_b32 %s, 4, %s' % (vr(t0), vr(V_LANE)))
        if hk:
            a.i('v_add_u32 %s, 4, %s' % (vr(t0), vr(t0)))
        a.i('v_and_b32 %s, 7, %s' % (vr(t1), vr(V_LANE)))
        a.i('v_xor_b32 %s, %s, %s' % (vr(t0), vr(t0), vr(t1)))
        a.i('v_lshlrev_b32 %s, 4, %s' % (vr(t0), vr(t0)))
        a.i('v_lshrrev_b32 %s, 3, %s' % (vr(t1), vr(V_LANE)))
        a.i('v_mul_lo_u32 %s, %s, %s' % (vr(t1), vr(t1), sr(S_T3)))
        a.i('v_add_u32 %s, %s, %s' % (vr(d), vr(t0), vr(t1)))
        if hk:
            a.i('v_add_u32 %s, %d, %s' % (vr(d), 8 * R - (1024 if sub else 0), vr(d)))


def pat_T(a, dst, tmp, R):
    t0, t1 = tmp
    a.i('s_mov_b32 %s, %d' % (sr(S_T3), R))
    for hk, d in zip((0, 1), dst):
        a.i('v_lshrrev_b32 %s, 3, %s' % (vr(t0), vr(V_LANE)))
        a.i('v_and_b32 %s, 2, %s' % (vr(t0), vr(t0)))
        if hk:
            a.i('v_or_b32 %s, 4, %s' % (vr(t0), vr(t0)))
        a.i('v_and_b32 %s, 7, %s' % (vr(t1), vr(V_LANE)))
        a.i('v_xor_b32 %s, %s, %s' % (vr(t0), vr(t0), vr(t1)))
        a.i('v_lshlrev_b32 %s, 4, %s' % (vr(t0), vr(t0)))
        a.i('v_lshrrev_b32 %s, 3, %s' % (vr(t1), vr(V_LANE)))
        a.i('v_mul_lo_u32 %s, %s, %s' % (vr(t1), vr(t1), sr(S_T3)))
        a.i('v_add_u32 %s, %s, %s' % (vr(d), vr(t0), vr(t1)))
        if hk:
            a.i('v_add_u32 %s, %d, %s' % (vr(d), 8 * R - 1024, vr(d)))


def addr_U_read(a, dst, tmp, base_sgpr=None, base_imm=0):
    t0, t1 = tmp
    a.i('v_and_b32 %s, 15, %s' % (vr(t0), vr(V_LANE)))
    a.i('v_lshrrev_b32 %s, 1, %s' % (vr(t1), vr(t0)))
    a.i('v_lshlrev_b32 %s, 7, %s' % (vr(t0), vr(t0)))
    a.i('v_lshrrev_b32 %s, 4, %s' % (vr(dst[0]), vr(V_LANE)))
    a.i('v_xor_b32 %s, %s, %s' % (vr(t1), vr(t1), vr(dst[0])))
    a.i('v_lshlrev_b32 %s, 4, %s' % (vr(t1), vr(t1)))
    a.i('v_add_u32 %s, %s, %s' % (vr(dst[0]), vr(t0), vr(t1)))
    if base_imm:
        a.i('v_add_u32 %s, %d, %s' % (vr(dst[0]), base_imm, vr(dst[0])))
    if base_sgpr is not None:
        a.i('v_add_u32 %s, %s, %s' % (vr(dst[0]), sr(base_sgpr), vr(dst[0])))
    a.i('v_xor_b32 %s, 64, %s' % (vr(dst[1]), vr(dst[0])))


def addr_T_read(a, dst, tmp, base_sgpr=None):
    t0, t1 = tmp
    a.i('v_lshrrev_b32 %s, 4, %s' % (vr(t0), vr(V_LANE)))
    a.i('v_lshlrev_b32 %s, 10, %s' % (vr(t0), vr(t0)))
    a.i('v_bfe_u32 %s, %s, 2, 2' % (vr(t1), vr(V_LANE)))
    a.i('v_lshlrev_b32 %s, 7, %s' % (vr(t1), vr(t1)))
    a.i('v_add_u32 %s, %s, %s' % (vr(t0), vr(t0), vr(t1)))
    a.i('v_and_b32 %s, 3, %s' % (vr(t1), vr(V_LANE)))
    a.i('v_lshlrev_b32 %s, 3, %s' % (vr(t1), vr(t1)))
    a.i('v_add_u32 %s, %s, %s' % (vr(t0), vr(t0), vr(t1)))
    a.i('v_bfe_u32 %s, %s, 3, 2' % (vr(t1), vr(V_LANE)))
    a.i('v_lshlrev_b32 %s, 5, %s' % (vr(t1), vr(t1)))
    a.i('v_add_u32 %s, %s, %s' % (vr(dst[0]), vr(t0), vr(t1)))
    if base_sgpr is not None:
        a.i('v_add_u32 %s, %s, %s' % (vr(dst[0]), sr(base_sgpr), vr(dst[0])))
    for k in (1, 2, 3):
        a.i('v_xor_b32 %s, %d, %s' % (vr(dst[k]), 32 * k, vr(dst[0])))


def addr_D_write(a, dst, tmp, chunk2_sgpr=None):
    t0, t1 = tmp
    a.i('v_and_b32 %s, 15, %s' % (vr(t0), vr(V_LANE)))
    a.i('v_lshrrev_b32 %s, 1, %s' % (vr(t1), vr(t0)))
    a.i('v_lshlrev_b32 %s, 7, %s' % (vr(t0), vr(t0)))
    a.i('v_lshrrev_b32 %s, 5, %s' % (vr(dst), vr(V_LANE)))
    a.i('v_xor_b32 %s, %s, %s' % (vr(t1), vr(t1), vr(dst)))
    a.i('v_lshlrev_b32 %s, 4, %s' % (vr(t1), vr(t1)))
    a.i('v_add_u32 %s, %s, %s' % (vr(t0), vr(t0), vr(t1)))
    a.i('v_bfe_u32 %s, %s, 4, 1' % (vr(t1), vr(V_LANE)))
    a.i('v_lshlrev_b32 %s, 3, %s' % (vr(t1), vr(t1)))
    a.i('v_add_u32 %s, %s, %s' % (vr(dst), vr(t0), vr(t1)))
    if chunk2_sgpr is not None:
        a.i('v_xor_b32 %s, %s, %s' % (vr(dst), sr(chunk2_sgpr), vr(dst)))


def dma_unit(lds_off, last):
    return [
        's_add_u32 m0, %s, %d' % (sr(S_RING), lds_off),
        'buffer_load_dwordx4 %s, %s, %s offen lds' % (vr(V_PAT[0]), sr(SRD_ST, 4), sr(S_SOFF)),
        'buffer_load_dwordx4 %s, %s, %s offen offset:1024 lds' % (vr(V_PAT[1]), sr(SRD_ST, 4), sr(S_SOFF)),
        's_add_u32 %s, %s, %s' % (sr(S_SOFF), sr(S_SOFF), sr(S_STEPL if last else S_STEPU)),
    ]


def switch_to_wo(a, tmp):
    for k in range(3):
        a.i('s_mov_b32 %s, %s' % (sr(SRD_ST + k), sr(SRD_WO + k)))
    a.i('s_lshl_b32 %s, %s, 7' % (sr(S_SOFF), sr(S_CG)))
    a.i('s_mov_b32 %s, %d' % (sr(S_STEPU), 16 * 896))
    a.i('s_mov_b32 %s, %d' % (sr(S_STEPL), 16 * 896))
    pat_T(a, V_PAT, tmp, 896)


def run_stream(a, mf, fill):
    def emit(lst):
        for x in lst:
            if callable(x):
                x()
            else:
                a.i(x)
    emit(fill.get(-1, []))
    for m, f in enumerate(mf):
        f()
        emit(fill.get(m, []))
    for m in sorted(k for k in fill if k >= len(mf)):
        emit(fill[m])


def spread(fill, items, m0, m1):
    n = len(items)
    span = m1 - m0 + 1
    for k, it in enumerate(items):
        m = m0 + (k * span) // n
        fill.setdefault(m, []).append(it)


def a_reads(e_dst, imm):
    out = []
    for ai in range(4):
        for hh in range(2):
            out.append('ds_read_b64_tr_b16 %s, %s offset:%d' % (vr(G_AF(e_dst, ai) + 2 * hh, 2), vr(G_TA[ai]), imm + hh * 512))
    return out


def b_reads(e, imm_of_i):
    return ['ds_read_b128 %s, %s offset:%d' % (vr(G_BF(e, i), 4), vr(G_UB[e]), imm_of_i(i)) for i in range(5)]


def gemm_mfmas(a, acc):
    mf = []
    for e in range(2):
        for ai in range(4):
            for i in range(5):
                mf.append(lambda e=e, ai=ai, i=i: mfma(a, acc(ai, i), G_AF(e, ai), G_BF(e, i)))
    return mf


def gen_main(a, name):
    a.raw('.globl %s' % name)
    a.raw('.p2align 8')
    a.raw('.type %s,@function' % name)
    a.label(name)
    a.i('s_cmp_ge_u32 s2, 256')
    a.i('s_cbranch_scc1 L_end')
    a.i('s_load_dwordx16 s[4:19], s[0:1], 0')
    a.i('v_and_b32 %s, 63, v0' % vr(V_LANE))
    a.i('v_lshrrev_b32 v2, 6, v0')
    a.i('v_readfirstlane_b32 %s, v2' % sr(S_WAVE))
    a.i('s_and_b32 %s, s2, 7' % sr(S_HKV))
    a.i('s_lshr_b32 %s, s2, 5' % sr(S_B))
    a.i('s_bfe_u32 %s, s2, 0x10004' % sr(S_T0))
    a.i('s_bfe_u32 %s, s2, 0x10003' % sr(S_T1))
    a.i('s_lshl_b32 %s, %s, 1' % (sr(S_H), sr(S_HKV)))
    a.i('s_add_u32 %s, %s, %s' % (sr(S_H), sr(S_H), sr(S_T0)))
    a.i('s_lshl_b32 %s, %s, 1' % (sr(S_GRP), sr(S_B)))
    a.i('s_add_u32 %s, %s, %s' % (sr(S_GRP), sr(S_GRP), sr(S_T1)))
    a.i('s_and_b32 %s, %s, 3' % (sr(S_W), sr(S_WAVE)))
    a.i('s_mov_b32 %s, %s' % (sr(S_C), f32hex(CSCALE)))
    a.i('s_waitcnt lgkmcnt(0)')
    a.i('s_mul_i32 %s, %s, %d' % (sr(S_T0), sr(S_H), 229376))
    build_srd(a, SRD_WO, S_WO, S_T0, 229376)
    a.i('s_lshl_b32 %s, %s, 4' % (sr(S_T0), sr(S_GRP)))
    a.i('s_add_u32 %s, %s, %s' % (sr(S_T0), sr(S_T0), sr(S_H)))
    a.i('s_mul_i32 %s, %s, %d' % (sr(S_T0), sr(S_T0), 71680))
    build_srd(a, SRD_PO, S_WS, S_T0, 71680)
    a.i('s_lshl_b32 %s, %s, 3' % (sr(S_T0), sr(S_B)))
    a.i('s_add_u32 %s, %s, %s' % (sr(S_T0), sr(S_T0), sr(S_HKV)))
    a.i('s_lshl_b32 %s, %s, 19' % (sr(S_T2), sr(S_T0)))
    a.i('s_cmp_ge_u32 %s, 4' % sr(S_WAVE))
    a.i('s_cbranch_scc1 L_pv')

    build_srd(a, SRD_ST, S_K, S_T2, 524288)
    a.i('s_lshl_b32 %s, %s, 9' % (sr(S_T0), sr(S_H)))
    a.i('s_sub_u32 %s, %d, %s' % (sr(S_T1), 448 * 8192, sr(S_T0)))
    build_srd(a, SRD_WQ, S_WQ, S_T0, sr(S_T1))
    a.i('s_mul_i32 %s, %s, %d' % (sr(S_T0), sr(S_GRP), 71680))
    build_srd(a, SRD_X, S_X, S_T0, 71680)
    a.i('s_mov_b32 %s, %s' % (sr(S_CG), sr(S_W)))
    a.i('s_cmp_eq_u32 %s, 3' % sr(S_W))
    a.i('s_cselect_b32 %s, 0, %s' % (sr(SRD_WO + 2), sr(SRD_WO + 2)))
    LWQ = [100, 101]
    LX = [102, 103]
    LT = (104, 105)
    pat_T(a, LWQ, LT, 8192)
    pat_U(a, LX, LT, 896, sub=False)
    a.i('s_and_b32 %s, %s, 1' % (sr(S_T0), sr(S_W)))
    a.i('s_cmp_eq_u32 %s, 1' % sr(S_T0))
    a.i('s_cselect_b64 vcc, -1, 0')
    a.i('v_cndmask_b32 %s, %s, %s, vcc' % (vr(LX[0]), vr(LX[0]), vr(LX[1])))
    for k in range(3):
        a.i('s_add_u32 %s, %s, %d' % (sr(S_T0), sr(S_W), 4 * k))
        if k == 2:
            a.i('s_add_u32 %s, %s, 4' % (sr(S_T1), sr(S_W)))
            a.i('s_cmp_ge_u32 %s, 10' % sr(S_T0))
            a.i('s_cselect_b32 %s, %s, %s' % (sr(S_T0), sr(S_T1), sr(S_T0)))
        a.i('s_lshl_b32 %s, %s, 10' % (sr(S_XL[k]), sr(S_T0)))
        a.i('s_lshr_b32 %s, %s, 1' % (sr(S_T0), sr(S_T0)))
        a.i('s_mul_i32 %s, %s, %d' % (sr(S_XG[k]), sr(S_T0), 16 * 896))
    a.i('s_lshl_b32 %s, %s, 7' % (sr(S_WQOFF), sr(S_W)))
    a.i('s_lshl_b32 %s, %s, 13' % (sr(S_T1), sr(S_W)))

    def issue_tile(c):
        sl = c % 3
        for k in range(3):
            a.i('s_add_u32 m0, %s, %d' % (sr(S_XL[k]), XSLOT[sl]))
            a.i('buffer_load_dwordx4 %s, %s, %s offen lds' % (vr(LX[0]), sr(SRD_X, 4), sr(S_XG[k])))
            a.i('s_add_u32 %s, %s, 128' % (sr(S_XG[k]), sr(S_XG[k])))
        for u in range(4):
            a.i('s_add_u32 m0, %s, %d' % (sr(S_T1), WSLOT[sl] + u * 2048))
            a.i('buffer_load_dwordx4 %s, %s, %s offen lds' % (vr(LWQ[0]), sr(SRD_WQ, 4), sr(S_WQOFF)))
            a.i('buffer_load_dwordx4 %s, %s, %s offen offset:1024 lds' % (vr(LWQ[1]), sr(SRD_WQ, 4), sr(S_WQOFF)))
            a.i('s_add_u32 %s, %s, %d' % (sr(S_WQOFF), sr(S_WQOFF), 16 * 8192))

    for c in range(3):
        issue_tile(c)
    T2 = (Q_TMP[0], Q_TMP[1])
    pat_U(a, V_PAT, T2, 512)
    a.i('s_lshl_b32 %s, %s, 13' % (sr(S_SOFF), sr(S_W)))
    a.i('s_mov_b32 %s, 128' % sr(S_STEPU))
    a.i('s_mov_b32 %s, %d' % (sr(S_STEPL), 32768 - 384))
    a.i('s_lshl_b32 %s, %s, 14' % (sr(S_RING), sr(S_W)))
    a.i('s_add_u32 %s, %s, %d' % (sr(S_RING), sr(S_RING), KR0))
    a.i('s_lshl_b32 %s, %s, 5' % (sr(S_T0), sr(S_W)))
    addr_D_write(a, Q_PWA, T2, S_T0)
    a.i('v_add_u32 %s, %d, %s' % (vr(Q_PWA), PB, vr(Q_PWA)))
    a.i('v_and_b32 %s, 15, %s' % (vr(T2[0]), vr(V_LANE)))
    a.i('v_lshlrev_b32 %s, 5, %s' % (vr(T2[0]), vr(T2[0])))
    a.i('v_add_u32 %s, %d, %s' % (vr(Q_MX4), SM, vr(T2[0])))
    a.i('v_bfe_u32 %s, %s, 4, 1' % (vr(T2[0]), vr(V_LANE)))
    a.i('v_lshlrev_b32 %s, 3, %s' % (vr(T2[0]), vr(T2[0])))
    a.i('v_lshrrev_b32 %s, 5, %s' % (vr(T2[1]), vr(V_LANE)))
    a.i('v_lshlrev_b32 %s, 2, %s' % (vr(T2[1]), vr(T2[1])))
    a.i('v_add3_u32 %s, %s, %s, %s' % (vr(Q_MXW), vr(Q_MX4), vr(T2[0]), vr(T2[1])))
    a.i('v_lshlrev_b32 %s, 2, %s' % (vr(T2[0]), vr(V_LANE)))
    a.i('v_add_u32 %s, %d, %s' % (vr(Q_FLW), FL, vr(T2[0])))
    for i in range(5):
        a.i('v_mov_b32 %s, 0' % vr(Q_L + i))
        a.i('v_mov_b32 %s, %s' % (vr(Q_MC + i), f32hex(-1e30)))
    addr_U_read(a, Q_UA, T2)
    for c in range(7):
        n = 22 if c == 0 else (11 if c < 6 else 0)
        a.i('s_waitcnt vmcnt(%d)' % n)
        a.i('s_barrier')
        if 1 <= c <= 4:
            issue_tile(c + 2)
    for t in range(2):
        for u in range(4):
            for x in dma_unit(t * 8192 + u * 2048, u == 3):
                a.i(x)
    a.i('s_barrier')
    for i in range(5):
        for s in range(8):
            a.i('ds_read_b128 %s, %s offset:%d' % (vr(Q_Q(i, s), 4), vr(Q_UA[s & 1]), QB + (i * 4 + (s >> 1)) * 2048))
            if (i * 8 + s) % 12 == 11:
                a.i('s_waitcnt lgkmcnt(4)')
    a.i('s_waitcnt lgkmcnt(0)')
    for e in range(2):
        a.i('v_add_u32 %s, %s, %s' % (vr(Q_UA[e]), sr(S_RING), vr(Q_UA[e])))
    a.i('s_waitcnt vmcnt(12)')

    def kread(par, s, buf):
        return 'ds_read_b128 %s, %s offset:%d' % (vr(Q_KF(buf), 4), vr(Q_UA[s & 1]), par * 8192 + (s >> 1) * 2048)

    a.i(kread(0, 0, 0))
    a.i(kread(0, 1, 1))
    a.i('s_waitcnt lgkmcnt(0)')
    a.i('s_mov_b32 %s, 0' % sr(S_P))

    rare_blocks = []

    def qk_phase(par, do_mfma, do_soft, tag):
        pp = 1 - par
        fill = {}
        mf = []
        if do_mfma:
            order = [(s, i) for s in range(6) for i in range(5)] + [(s, i) for i in range(5) for s in (6, 7)]
            for (s, i) in order:
                mf.append(lambda s=s, i=i: mfma(a, Q_S(par, i), Q_KF(s % 4), Q_Q(i, s), '0' if s == 0 else None))
            reads = [(0, 2, 0, 2), (2, 3, 0, 3), (5, 4, 0, 0), (10, 5, 0, 1), (15, 6, 0, 2), (20, 7, 0, 3),
                     (25, 0, 1, 0), (30, 1, 1, 1)]
            refills = [(1, 0), (16, 1), (26, 2), (32, 3)]
            ev = []
            for (m, s, dt, buf) in reads:
                ev.append((m, 0, 'need', dt, s >> 1, s, buf))
            for (m, u) in refills:
                ev.append((m, 1, 'dma', u, 0))
                ev.append((m + 1, 1, 'dma', u, 1))
            ev.sort(key=lambda e: (e[0], e[1]))
            issued = []
            need_n = {}
            for ph in range(4):
                for e in ev:
                    if e[2] == 'dma':
                        issued.append((ph + 2, e[3]))
                    elif ph == 3:
                        key = (ph + e[3], e[4])
                        last = max(k for k, x in enumerate(issued) if x == key)
                        need_n[e[5]] = len(issued) - 1 - last
            for e in ev:
                m = e[0]
                if e[2] == 'need':
                    _, _, _, dt, u, s, buf = e
                    if s % 2 == 0:
                        fill.setdefault(m, []).append('s_waitcnt vmcnt(%d)' % need_n[s])
                    fill.setdefault(m, []).append(kread(pp if dt else par, s, buf))
                else:
                    d = dma_unit(par * 8192 + e[3] * 2048, e[3] == 3)
                    fill.setdefault(m, []).extend(d[0:2] if e[4] == 0 else d[2:4])
        soft = []
        if do_soft:
            pre = ['ds_read_b128 %s, %s offset:%d' % (vr(Q_TMAX, 4), vr(Q_MX4), pp * 512),
                   'ds_read_b32 %s, %s offset:%d' % (vr(Q_TMAX + 4), vr(Q_MX4), pp * 512 + 16),
                   'v_mov_b32 %s, 0' % vr(Q_FLAG)]
            fill.setdefault(-1, []).extend(pre)
            chk = []
            for i in range(5):
                chk.append('v_fma_f32 %s, %s, %s, -%s' % (vr(Q_TMP[i]), vr(Q_TMAX + i), sr(S_C), vr(Q_MC + i)))
            chk.append('v_max3_f32 %s, %s, %s, %s' % (vr(Q_TMP[0]), vr(Q_TMP[0]), vr(Q_TMP[1]), vr(Q_TMP[2])))
            chk.append('v_max3_f32 %s, %s, %s, %s' % (vr(Q_TMP[0]), vr(Q_TMP[0]), vr(Q_TMP[3]), vr(Q_TMP[4])))
            chk.append('v_cmp_lt_f32 vcc, %s, %s' % (f32hex(THR), vr(Q_TMP[0])))

            def br():
                a.i('s_cbranch_vccnz L_qrare_%s' % tag)
                a.label('L_qjoin_%s' % tag)
            chk.append(br)
            chk.append('ds_write_b32 %s, %s offset:%d' % (vr(Q_FLW), vr(Q_FLAG), pp * 256))
            rare_blocks.append((tag, pp))
            for i in range(5):
                S = Q_S(pp, i)
                for r in range(4):
                    soft.append('v_fma_f32 %s, %s, %s, -%s' % (vr(S + r), vr(S + r), sr(S_C), vr(Q_MC + i)))
                for r in range(4):
                    soft.append('v_exp_f32 %s, %s' % (vr(S + r), vr(S + r)))
                t0 = Q_TMP[5 + (i & 1) * 2]
                soft.append('v_add_f32 %s, %s, %s' % (vr(t0), vr(S), vr(S + 1)))
                soft.append('v_add_f32 %s, %s, %s' % (vr(t0 + 1), vr(S + 2), vr(S + 3)))
                soft.append('v_cvt_pk_bf16_f32 %s, %s, %s' % (vr(S), vr(S), vr(S + 1)))
                soft.append('v_cvt_pk_bf16_f32 %s, %s, %s' % (vr(S + 1), vr(S + 2), vr(S + 3)))
                soft.append('v_add_f32 %s, %s, %s' % (vr(t0), vr(t0), vr(t0 + 1)))
                soft.append('ds_write_b64 %s, %s offset:%d' % (vr(Q_PWA), vr(S, 2), pp * 10240 + i * 2048))
                soft.append('v_add_f32 %s, %s, %s' % (vr(Q_L + i), vr(Q_L + i), vr(t0)))
            if do_mfma:
                spread(fill, chk, 2, 4)
                spread(fill, soft, 5, 34)
            else:
                fill.setdefault(-1, []).extend(chk + soft)
        if do_mfma:
            M = [Q_TMP[9], Q_TMP[10], Q_TMP[11], Q_TMP[12], Q_TMP[4]]
            for i in range(5):
                S = Q_S(par, i)
                m = 35 + i if i < 4 else 40
                m = min(34 + 2 * i, 40)
                fill.setdefault(m, []).extend([
                    'v_max3_f32 %s, %s, %s, %s' % (vr(M[i]), vr(S), vr(S + 1), vr(S + 2)),
                    'v_max_f32 %s, %s, %s' % (vr(M[i]), vr(M[i]), vr(S + 3))])
            fill.setdefault(39, []).extend([
                'v_permlane32_swap_b32 %s, %s' % (vr(M[0]), vr(M[1])),
                'v_max_f32 %s, %s, %s' % (vr(M[0]), vr(M[0]), vr(M[1]))])
            fill.setdefault(41, []).extend([
                'ds_max_f32 %s, %s offset:%d' % (vr(Q_MX4), vr(M[4]), par * 512 + 16),
                'v_permlane32_swap_b32 %s, %s' % (vr(M[2]), vr(M[3])),
                'v_max_f32 %s, %s, %s' % (vr(M[2]), vr(M[2]), vr(M[3])),
                'v_permlane16_swap_b32 %s, %s' % (vr(M[0]), vr(M[2])),
                'v_max_f32 %s, %s, %s' % (vr(M[0]), vr(M[0]), vr(M[2])),
                'ds_max_f32 %s, %s offset:%d' % (vr(Q_MXW), vr(M[0]), par * 512)])
        run_stream(a, mf, fill)
        a.i('s_waitcnt lgkmcnt(0)')
        a.i('s_barrier')

    qk_phase(0, True, False, 'p0')
    a.i('s_mov_b32 %s, 1' % sr(S_P))
    a.label('L_qloop')
    qk_phase(1, True, True, 'odd')
    a.i('s_cmp_eq_u32 %s, 15' % sr(S_P))
    a.i('s_cbranch_scc1 L_qdone')
    a.i('s_cmp_eq_u32 %s, 13' % sr(S_P))
    a.i('s_cbranch_scc0 L_qnosw')
    switch_to_wo(a, (Q_TMP[0], Q_TMP[1]))
    a.label('L_qnosw')
    qk_phase(0, True, True, 'even')
    a.i('s_add_u32 %s, %s, 2' % (sr(S_P), sr(S_P)))
    a.i('s_branch L_qloop')
    a.reset()
    a.label('L_qdone')
    qk_phase(0, False, True, 'p16')
    L = [Q_L + i for i in range(5)]
    t = Q_TMP[0]
    a.i('v_permlane32_swap_b32 %s, %s' % (vr(L[0]), vr(L[1])))
    a.i('v_add_f32 %s, %s, %s' % (vr(L[0]), vr(L[0]), vr(L[1])))
    a.i('v_permlane32_swap_b32 %s, %s' % (vr(L[2]), vr(L[3])))
    a.i('v_add_f32 %s, %s, %s' % (vr(L[2]), vr(L[2]), vr(L[3])))
    a.i('v_permlane16_swap_b32 %s, %s' % (vr(L[0]), vr(L[2])))
    a.i('v_add_f32 %s, %s, %s' % (vr(L[0]), vr(L[0]), vr(L[2])))
    a.i('v_mov_b32 %s, %s' % (vr(t), vr(L[4])))
    a.i('v_permlane32_swap_b32 %s, %s' % (vr(L[4]), vr(t)))
    a.i('v_add_f32 %s, %s, %s' % (vr(L[4]), vr(L[4]), vr(t)))
    a.i('v_mov_b32 %s, %s' % (vr(t), vr(L[4])))
    a.i('v_permlane16_swap_b32 %s, %s' % (vr(L[4]), vr(t)))
    a.i('v_add_f32 %s, %s, %s' % (vr(L[4]), vr(L[4]), vr(t)))
    a.i('s_lshl_b32 %s, %s, 9' % (sr(S_T0), sr(S_W)))
    a.i('v_add_u32 %s, %s, %s' % (vr(Q_MXW), sr(S_T0), vr(Q_MXW)))
    a.i('v_add_u32 %s, %s, %s' % (vr(Q_MX4), sr(S_T0), vr(Q_MX4)))
    a.i('ds_write_b32 %s, %s offset:%d' % (vr(Q_MXW), vr(L[0]), LS - SM))
    a.i('ds_write_b32 %s, %s offset:%d' % (vr(Q_MX4), vr(L[4]), LS - SM + 16))
    a.i('s_waitcnt lgkmcnt(0)')
    addr_T_read(a, G_TA, (G_T[0], G_T[1]), S_RING)
    addr_U_read(a, G_UB, (G_T[0], G_T[1]), base_imm=OB)
    for k in range(20):
        for r in range(4):
            a.i('v_mov_b32 %s, 0' % vr(ACC_W(k // 5, k % 5) + r))
    a.i('s_waitcnt vmcnt(0)')
    for x in a_reads(0, 0):
        a.i(x)
    a.i('s_waitcnt lgkmcnt(0)')
    a.i('s_barrier')
    a.i('s_barrier')
    a.i('s_cmp_eq_u32 %s, 3' % sr(S_W))
    a.i('s_cbranch_scc1 L_end')
    a.i('s_branch L_oproj')
    a.reset()
    for tag, pp in rare_blocks:
        a.label('L_qrare_%s' % tag)
        a.fence(4)
        for i in range(5):
            tm = Q_TMAX + i
            a.i('v_mul_f32 %s, %s, %s' % (vr(tm), sr(S_C), vr(tm)))
            a.i('v_max_f32 %s, %s, %s' % (vr(Q_TMP[i]), vr(tm), vr(Q_MC + i)))
            a.i('v_sub_f32 %s, %s, %s' % (vr(tm), vr(Q_MC + i), vr(Q_TMP[i])))
            a.i('v_exp_f32 %s, %s' % (vr(tm), vr(tm)))
            a.i('v_mov_b32 %s, %s' % (vr(Q_MC + i), vr(Q_TMP[i])))
            a.i('v_mul_f32 %s, %s, %s' % (vr(Q_L + i), vr(Q_L + i), vr(tm)))
        a.i('ds_write_b128 %s, %s offset:%d' % (vr(Q_MX4), vr(Q_TMAX, 4), AL - SM + pp * 512))
        a.i('ds_write_b32 %s, %s offset:%d' % (vr(Q_MX4), vr(Q_TMAX + 4), AL - SM + pp * 512 + 16))
        a.i('v_mov_b32 %s, 1.0' % vr(Q_FLAG))
        a.i('s_waitcnt lgkmcnt(0)')
        a.fence(4)
        a.i('s_branch L_qjoin_%s' % tag)
        a.reset()

    a.label('L_pv')
    build_srd(a, SRD_ST, S_V, S_T2, 524288)
    a.i('s_add_u32 %s, %s, 3' % (sr(S_CG), sr(S_W)))
    GT = (G_T[0], G_T[1])
    addr_T_read(a, G_TA, GT)
    a.i('v_mov_b32 %s, %s' % (vr(G_T[2]), vr(G_TA[0])))
    addr_U_read(a, G_UB, GT)
    a.i('v_mov_b32 %s, %s' % (vr(G_T[3]), vr(G_UB[0])))
    for k in range(80):
        a.i('v_mov_b32 %s, 0' % vr(176 + k))
    a.i('s_lshl_b32 %s, %s, 13' % (sr(S_T0), sr(S_W)))
    a.i('s_add_u32 %s, %s, %d' % (sr(S_WCUR), sr(S_T0), WSLOT[0]))
    a.i('s_add_u32 %s, %s, %d' % (sr(S_WN1), sr(S_T0), WSLOT[1]))
    a.i('s_add_u32 %s, %s, %d' % (sr(S_WN2), sr(S_T0), WSLOT[2]))
    a.i('s_mov_b32 %s, %d' % (sr(S_XCUR), XSLOT[0]))
    a.i('s_mov_b32 %s, %d' % (sr(S_XN1), XSLOT[1]))
    a.i('s_mov_b32 %s, %d' % (sr(S_XN2), XSLOT[2]))
    a.i('s_mov_b32 %s, 0' % sr(S_P))
    a.label('L_qproj')
    a.i('v_add_u32 %s, %s, %s' % (vr(G_TA[0]), sr(S_WCUR), vr(G_T[2])))
    a.i('v_add_u32 %s, %s, %s' % (vr(G_UB[0]), sr(S_XCUR), vr(G_T[3])))
    for k in (1, 2, 3):
        a.i('v_xor_b32 %s, %d, %s' % (vr(G_TA[k]), 32 * k, vr(G_TA[0])))
    a.i('v_xor_b32 %s, 64, %s' % (vr(G_UB[1]), vr(G_UB[0])))
    a.i('s_mov_b32 %s, %s' % (sr(S_T0), sr(S_WCUR)))
    a.i('s_mov_b32 %s, %s' % (sr(S_WCUR), sr(S_WN1)))
    a.i('s_mov_b32 %s, %s' % (sr(S_WN1), sr(S_WN2)))
    a.i('s_mov_b32 %s, %s' % (sr(S_WN2), sr(S_T0)))
    a.i('s_mov_b32 %s, %s' % (sr(S_T0), sr(S_XCUR)))
    a.i('s_mov_b32 %s, %s' % (sr(S_XCUR), sr(S_XN1)))
    a.i('s_mov_b32 %s, %s' % (sr(S_XN1), sr(S_XN2)))
    a.i('s_mov_b32 %s, %s' % (sr(S_XN2), sr(S_T0)))
    a.i('s_barrier')
    fill = {}
    A0 = a_reads(0, 0)
    B0 = b_reads(0, lambda i: i * 2048)
    fill[-1] = A0[0:2] + B0 + A0[2:]
    spread(fill, b_reads(1, lambda i: i * 2048) + a_reads(1, 4096), 2, 16)
    run_stream(a, gemm_mfmas(a, ACC_O), fill)
    a.i('s_add_u32 %s, %s, 1' % (sr(S_P), sr(S_P)))
    a.i('s_cmp_lt_u32 %s, 7' % sr(S_P))
    a.i('s_cbranch_scc1 L_qproj')

    def write_D(acc, base_imm_of_i, scale=None):
        for ai in range(4):
            d = G_T[5]
            if ai == 0:
                a.i('v_mov_b32 %s, %s' % (vr(d), vr(G_T[4])))
            else:
                a.i('v_xor_b32 %s, %d, %s' % (vr(d), 32 * ai, vr(G_T[4])))
            for i in range(5):
                R = acc(ai, i)
                if scale is not None:
                    for r in range(4):
                        a.i('v_mul_f32 %s, %s, %s' % (vr(R + r), vr(R + r), vr(scale + i)))
                a.i('v_cvt_pk_bf16_f32 %s, %s, %s' % (vr(R), vr(R), vr(R + 1)))
                a.i('v_cvt_pk_bf16_f32 %s, %s, %s' % (vr(R + 1), vr(R + 2), vr(R + 3)))
                a.i('ds_write_b64 %s, %s offset:%d' % (vr(d), vr(R, 2), base_imm_of_i(i)))
            a.i('s_waitcnt lgkmcnt(0)')

    addr_D_write(a, G_T[4], GT)
    a.i('s_lshl_b32 %s, %s, 11' % (sr(S_T0), sr(S_W)))
    a.i('v_add_u32 %s, %s, %s' % (vr(G_T[4]), sr(S_T0), vr(G_T[4])))
    write_D(ACC_O, lambda i: QB + i * 8192)
    a.i('s_cmp_eq_u32 %s, 3' % sr(S_W))
    a.i('s_cbranch_scc0 L_noinit')
    a.i('v_lshlrev_b32 %s, 4, %s' % (vr(GT[0]), vr(V_LANE)))
    a.i('v_add_u32 %s, %d, %s' % (vr(GT[0]), MX, vr(GT[0])))
    for r in range(4):
        a.i('v_mov_b32 %s, %s' % (vr(G_AL + r), f32hex(-3.0e38)))
    a.i('ds_write_b128 %s, %s' % (vr(GT[0]), vr(G_AL, 4)))
    a.i('s_waitcnt lgkmcnt(0)')
    a.label('L_noinit')
    a.i('s_barrier')
    pat_T(a, V_PAT, GT, 512)
    a.i('s_lshl_b32 %s, %s, 7' % (sr(S_SOFF), sr(S_W)))
    a.i('s_mov_b32 %s, 8192' % sr(S_STEPU))
    a.i('s_mov_b32 %s, 8192' % sr(S_STEPL))
    a.i('s_lshl_b32 %s, %s, 14' % (sr(S_RING), sr(S_W)))
    a.i('v_add_u32 %s, %s, %s' % (vr(G_TA[0]), sr(S_RING), vr(G_T[2])))
    for k in (1, 2, 3):
        a.i('v_xor_b32 %s, %d, %s' % (vr(G_TA[k]), 32 * k, vr(G_TA[0])))
    a.i('v_add_u32 %s, %d, %s' % (vr(G_UB[0]), PB, vr(G_T[3])))
    a.i('v_xor_b32 %s, 64, %s' % (vr(G_UB[1]), vr(G_UB[0])))
    a.i('v_lshlrev_b32 %s, 2, %s' % (vr(G_FLA), vr(V_LANE)))
    a.i('v_add_u32 %s, %d, %s' % (vr(G_FLA), FL, vr(G_FLA)))
    a.i('v_and_b32 %s, 15, %s' % (vr(G_ALA), vr(V_LANE)))
    a.i('v_lshlrev_b32 %s, 5, %s' % (vr(G_ALA), vr(G_ALA)))
    a.i('v_add_u32 %s, %d, %s' % (vr(G_ALA), SM, vr(G_ALA)))
    for k in range(80):
        a.i('v_mov_b32 %s, 0' % vr(176 + k))
    for k in range(20):
        for r in range(4):
            a.i('v_mov_b32 %s, 0' % vr(ACC_W(k // 5, k % 5) + r))
    a.i('s_barrier')
    for t in range(2):
        for u in range(4):
            for x in dma_unit(t * 8192 + u * 2048, u == 3):
                a.i(x)
    a.i('s_waitcnt vmcnt(12)')
    for x in a_reads(0, 0):
        a.i(x)
    a.i('s_waitcnt lgkmcnt(0)')
    a.i('s_barrier')
    a.i('s_mov_b32 %s, 2' % sr(S_P))

    pv_rare = []

    def gemm_tile(par, acc, bimm, n_a1, n_a0, refill, flag_tag=None, barrier=True, next_a=True):
        fill = {}
        pre = []
        if flag_tag is not None:
            pre.append('ds_read_b32 %s, %s offset:%d' % (vr(G_T[6]), vr(G_FLA), par * 256))
        pre += b_reads(0, lambda i: bimm(i))
        pre.append('s_waitcnt vmcnt(%d)' % n_a1)
        pre += a_reads(1, par * 8192 + 4096)
        if flag_tag is not None:
            pre.append('v_cmp_ne_u32 vcc, 0, %s' % vr(G_T[6]))

            def br():
                a.i('s_cbranch_vccnz L_prare_%s' % flag_tag)
                a.label('L_pjoin_%s' % flag_tag)
            pre.append(br)
            pv_rare.append((flag_tag, par))
        fill[-1] = pre
        spread(fill, b_reads(1, lambda i: bimm(i)), 5, 9)
        if refill:
            d = dma_unit(par * 8192, False) + dma_unit(par * 8192 + 2048, False)
            spread(fill, d, 10, 17)
            d = dma_unit(par * 8192 + 4096, False) + dma_unit(par * 8192 + 6144, True)
            fill.setdefault(20, []).append('s_waitcnt lgkmcnt(0)')
            spread(fill, d, 20, 27)
        if next_a:
            spread(fill, ['s_waitcnt vmcnt(%d)' % n_a0] + a_reads(0, (1 - par) * 8192), 28, 36)
        run_stream(a, gemm_mfmas(a, acc), fill)
        a.i('s_waitcnt lgkmcnt(0)')
        if barrier:
            a.i('s_barrier')

    a.label('L_ploop')
    gemm_tile(0, ACC_O, lambda i: i * 2048, 8, 12, True, 'even')
    gemm_tile(1, ACC_O, lambda i: 10240 + i * 2048, 8, 12, True, 'odd')
    a.i('s_cmp_eq_u32 %s, 14' % sr(S_P))
    a.i('s_cbranch_scc0 L_pnosw')
    switch_to_wo(a, GT)
    a.label('L_pnosw')
    a.i('s_add_u32 %s, %s, 2' % (sr(S_P), sr(S_P)))
    a.i('s_cmp_lt_u32 %s, 18' % sr(S_P))
    a.i('s_cbranch_scc1 L_ploop')
    LT = G_BF(0, 0)
    for w in range(4):
        a.i('ds_read_b128 %s, %s offset:%d' % (vr(LT + w * 8, 4), vr(G_ALA), LS - SM + w * 512))
        a.i('ds_read_b32 %s, %s offset:%d' % (vr(LT + w * 8 + 4), vr(G_ALA), LS - SM + w * 512 + 16))
    for i in range(5):
        a.i('v_add_f32 %s, %s, %s' % (vr(G_AL + i), vr(LT + i), vr(LT + 8 + i)))
        a.i('v_add_f32 %s, %s, %s' % (vr(LT + 16 + i), vr(LT + 16 + i), vr(LT + 24 + i)))
        a.i('v_add_f32 %s, %s, %s' % (vr(G_AL + i), vr(G_AL + i), vr(LT + 16 + i)))
        a.i('v_rcp_f32 %s, %s' % (vr(G_AL + i), vr(G_AL + i)))
    a.i('v_add_u32 %s, %d, %s' % (vr(G_T[4]), OB, vr(G_T[4])))
    write_D(ACC_O, lambda i: i * 8192, scale=G_AL)
    a.i('v_add_u32 %s, %d, %s' % (vr(G_UB[0]), OB, vr(G_T[3])))
    a.i('v_xor_b32 %s, 64, %s' % (vr(G_UB[1]), vr(G_UB[0])))
    a.i('s_barrier')
    a.label('L_oproj')
    a.fence(4)
    for tau in range(4):
        gemm_tile(tau & 1, ACC_W, lambda i, tau=tau: (i * 4 + tau) * 2048,
                  n_a1=[8, 8, 8, 0][tau], n_a0=[12, 12, 4, 0][tau], refill=tau < 2, barrier=False, next_a=tau < 3)
    a.i('v_lshlrev_b32 %s, 4, %s' % (vr(GT[0]), vr(V_LANE)))
    a.i('s_mul_i32 %s, %s, 10240' % (sr(S_T0), sr(S_CG)))
    k = 0
    for i in range(5):
        for ap in range(2):
            R0, R1 = ACC_W(2 * ap, i), ACC_W(2 * ap + 1, i)
            a.i('v_cvt_pk_bf16_f32 %s, %s, %s' % (vr(R0), vr(R0), vr(R0 + 1)))
            a.i('v_cvt_pk_bf16_f32 %s, %s, %s' % (vr(R0 + 1), vr(R0 + 2), vr(R0 + 3)))
            a.i('v_cvt_pk_bf16_f32 %s, %s, %s' % (vr(R0 + 2), vr(R1), vr(R1 + 1)))
            a.i('v_cvt_pk_bf16_f32 %s, %s, %s' % (vr(R0 + 3), vr(R1 + 2), vr(R1 + 3)))
            a.i('buffer_store_dwordx4 %s, %s, %s, %s offen offset:%d' % (vr(R0, 4), vr(GT[0]), sr(SRD_PO, 4), sr(S_T0), (k % 4) * 1024))
            k += 1
            if k % 4 == 0:
                a.i('s_add_u32 %s, %s, 4096' % (sr(S_T0), sr(S_T0)))
    a.label('L_end')
    a.i('s_endpgm')
    a.reset()
    for tag, par in pv_rare:
        a.label('L_prare_%s' % tag)
        a.i('ds_read_b128 %s, %s offset:%d' % (vr(G_AL, 4), vr(G_ALA), AL - SM + par * 512))
        a.i('ds_read_b32 %s, %s offset:%d' % (vr(G_AL + 4), vr(G_ALA), AL - SM + par * 512 + 16))
        a.i('s_waitcnt lgkmcnt(0)')
        a.fence(9)
        for ai in range(4):
            for i in range(5):
                for r in range(4):
                    R = ACC_O(ai, i) + r
                    a.i('v_mul_f32 %s, %s, %s' % (vr(R), vr(R), vr(G_AL + i)))
        a.fence(4)
        a.i('s_branch L_pjoin_%s' % tag)
        a.reset()


def gen_reduce(a, name):
    a.raw('.globl %s' % name)
    a.raw('.p2align 8')
    a.raw('.type %s,@function' % name)
    a.label(name)
    a.i('s_cmp_ge_u32 s2, 280')
    a.i('s_cbranch_scc1 R_end')
    a.i('s_load_dwordx2 s[4:5], s[0:1], 40')
    a.i('s_load_dwordx2 s[6:7], s[0:1], 56')
    a.i('v_lshrrev_b32 v2, 6, v0')
    a.i('v_and_b32 v1, 63, v0')
    a.i('v_readfirstlane_b32 s8, v2')
    a.i('s_lshl_b32 s9, s2, 2')
    a.i('s_add_u32 s8, s8, s9')
    a.i('s_mov_b32 s9, %d' % ((1 << 32) // 70 + 1))
    a.i('s_mul_hi_u32 s10, s8, s9')
    a.i('s_mul_i32 s11, s10, 70')
    a.i('s_sub_u32 s11, s8, s11')
    a.i('s_mov_b32 s9, %d' % ((1 << 32) // 10 + 1))
    a.i('s_mul_hi_u32 s12, s11, s9')
    a.i('s_mul_i32 s13, s12, 10')
    a.i('s_sub_u32 s13, s11, s13')
    a.i('s_lshr_b32 s14, s13, 1')
    a.i('s_and_b32 s13, s13, 1')
    a.i('s_mul_i32 s15, s10, %d' % (16 * 71680))
    a.i('s_waitcnt lgkmcnt(0)')
    a.i('s_add_u32 s16, s6, s15')
    a.i('s_addc_u32 s17, s7, 0')
    a.i('s_mov_b32 s18, %d' % (16 * 71680))
    a.i('s_mov_b32 s19, 0x20000')
    a.i('s_mov_b32 s20, s4')
    a.i('s_mov_b32 s21, s5')
    a.i('s_mov_b32 s22, %d' % (1280 * 448 * 2))
    a.i('s_mov_b32 s23, 0x20000')
    a.i('s_lshl_b32 s24, s11, 10')
    a.i('v_lshlrev_b32 v2, 4, v1')
    for h in range(16):
        a.i('buffer_load_dwordx4 %s, v2, s[16:19], s24 offen' % vr(16 + 4 * h, 4))
        if h < 15:
            a.i('s_add_u32 s24, s24, 71680')
    a.i('s_mul_i32 s25, s10, 80')
    a.i('s_lshl_b32 s26, s14, 4')
    a.i('s_add_u32 s25, s25, s26')
    a.i('s_mul_i32 s25, s25, 896')
    a.i('s_lshl_b32 s26, s12, 7')
    a.i('s_add_u32 s25, s25, s26')
    a.i('s_lshl_b32 s26, s13, 6')
    a.i('s_add_u32 s25, s25, s26')
    a.i('v_and_b32 v3, 15, v1')
    a.i('v_mul_u32_u24 v3, 896, v3')
    a.i('v_lshrrev_b32 v4, 4, v1')
    a.i('v_lshlrev_b32 v4, 3, v4')
    a.i('v_add_u32 v3, v3, v4')
    a.i('s_mov_b32 s27, 0xffff0000')
    for h in range(16):
        a.i('s_waitcnt vmcnt(%d)' % (15 - h))
        for r in range(4):
            src = 16 + 4 * h + r
            if h == 0:
                a.i('v_lshlrev_b32 %s, 16, %s' % (vr(8 + 2 * r), vr(src)))
                a.i('v_and_b32 %s, s27, %s' % (vr(9 + 2 * r), vr(src)))
            else:
                a.i('v_lshlrev_b32 v5, 16, %s' % vr(src))
                a.i('v_and_b32 v6, s27, %s' % vr(src))
                a.i('v_add_f32 %s, %s, v5' % (vr(8 + 2 * r), vr(8 + 2 * r)))
                a.i('v_add_f32 %s, %s, v6' % (vr(9 + 2 * r), vr(9 + 2 * r)))
    for r in range(4):
        a.i('v_cvt_pk_bf16_f32 %s, %s, %s' % (vr(16 + r), vr(8 + 2 * r), vr(9 + 2 * r)))
    a.i('buffer_store_dwordx2 v[16:17], v3, s[20:23], s25 offen')
    a.i('buffer_store_dwordx2 v[18:19], v3, s[20:23], s25 offen offset:32')
    a.label('R_end')
    a.i('s_endpgm')
    a.reset()


HEADER = """; Kernarg layout for this problem (64 bytes, ptrs only, base s[0:1]):
;   offset   0: d_in[0] x  shape=(8, 160, 448) dtype=bfloat16
;   offset   8: d_in[1] k_cache  shape=(8, 8, 1024, 256) dtype=bfloat16
;   offset  16: d_in[2] v_cache  shape=(8, 8, 1024, 256) dtype=bfloat16
;   offset  24: d_in[3] wq  shape=(448, 4096) dtype=bfloat16
;   offset  32: d_in[4] wo  shape=(4096, 448) dtype=bfloat16
;   offset  40: d_out     shape=(8, 160, 448) dtype=bfloat16
;   offset  48: d_debug   256 bytes
;   offset  56: d_ws      268435456 bytes workspace
; Generated by gen/gen.py (own generator script).
; @launch kernel=standalone__gqa_block_cached__near_ridge_kernel grid=(256,1,1) block=(512,1,1) lds=%d
; @launch kernel=gqa_reduce_kernel grid=(280,1,1) block=(256,1,1) lds=0
.amdgcn_target "amdgcn-amd-amdhsa--gfx950"
.text
""" % LDS_BYTES


def kd(name, vgpr, sgpr):
    return """.amdhsa_kernel %s
  .amdhsa_next_free_vgpr %d
  .amdhsa_next_free_sgpr %d
  .amdhsa_accum_offset %d
  .amdhsa_group_segment_fixed_size 0
  .amdhsa_kernarg_size 64
  .amdhsa_user_sgpr_count 2
  .amdhsa_user_sgpr_kernarg_segment_ptr 1
  .amdhsa_system_sgpr_workgroup_id_x 1
.end_amdhsa_kernel
""" % (name, vgpr, sgpr, (vgpr + 3) // 4 * 4)


def main():
    out = sys.argv[1] if len(sys.argv) > 1 else 'standalone__gqa_block_cached__near_ridge.s'
    a = Asm()
    gen_main(a, 'standalone__gqa_block_cached__near_ridge_kernel')
    gen_reduce(a, 'gqa_reduce_kernel')
    txt = HEADER + a.text() + '.section .rodata,"a"\n.p2align 6\n' + \
        kd('standalone__gqa_block_cached__near_ridge_kernel', 256, 80) + '.p2align 6\n' + kd('gqa_reduce_kernel', 80, 32)
    open(out, 'w').write(txt)
    print('wrote', out, a.nins, 'instructions')


if __name__ == '__main__':
    main()
```

```python
import struct, sys, math
from asmlib import Asm, vr, sr

K1 = 1024
VR = lambda w: w * 16 * K1
KR0 = 64 * K1
PB = 128 * K1
SM = 152 * K1
MX = SM
FL = SM + 1024
AL = SM + 1536
LS = SM + 2560
OB = 112 * K1
WSLOT = [128 * K1, 64 * K1, 96 * K1]
XSLOT = [40 * K1, 0, 10 * K1]
QB = 0
LDS_BYTES = 160 * K1


def f32hex(x):
    return '0x%08x' % struct.unpack('<I', struct.pack('<f', x))[0]


CSCALE = math.log2(math.e) / 16.0
THR = 8.0

S_X, S_K, S_V, S_WQ, S_WO, S_OUT, S_DBG, S_WS = 4, 6, 8, 10, 12, 14, 16, 18
S_WAVE, S_W, S_B, S_HKV, S_H, S_GRP = 20, 21, 22, 23, 24, 25
S_T0, S_T1, S_T2, S_T3 = 26, 27, 28, 29
SRD_ST, SRD_WQ, SRD_X, SRD_WO, SRD_PO = 32, 36, 40, 44, 48
S_SOFF, S_STEPU, S_STEPL, S_RING, S_P, S_C = 52, 53, 54, 55, 56, 57
S_CG = 58
S_XL = [59, 60, 61]
S_XG = [62, 63, 64]
S_WCUR, S_WN1, S_WN2, S_XCUR, S_XN1, S_XN2 = 65, 66, 67, 68, 69, 70
S_WQOFF = 71

V_LANE = 1
G_TA = [2, 3, 4, 5]
G_UB = [6, 7]
V_PAT = [8, 9]
G_FLA = 10
G_ALA = 11
G_AL = 12
G_T = [17, 18, 19, 20, 21, 22, 23]
G_BF = lambda e, i: 72 + e * 20 + i * 4
G_AF = lambda e, a: 112 + e * 16 + a * 4
ACC_O = lambda a, i: 176 + (a * 5 + i) * 4


def ACC_W(a, i):
    k = a * 5 + i
    return 144 + k * 4 if k < 8 else 24 + (k - 8) * 4


Q_UA = [2, 3]
Q_PWA = 4
Q_MXW = 5
Q_MX4 = 6
Q_FLW = 7
Q_FLAG = 10
Q_TMP = [11, 12, 13, 14, 15, 16, 17, 18, 19, 20, 21, 22, 23]
Q_TMAX = 24
Q_L = 30
Q_MC = 35
Q_KF = lambda k: 40 + k * 4
Q_S = lambda par, i: 56 + par * 20 + i * 4
Q_Q = lambda i, s: 96 + (i * 8 + s) * 4

MFMA = 'v_mfma_f32_16x16x32_bf16'
STAMPS = '--stamps' in sys.argv
S_ST, S_STI = 72, 74
SRD_DB = 76


def stamp(a):
    if not STAMPS:
        return
    a.i('s_memtime s[72:73]')
    a.i('s_waitcnt lgkmcnt(0)')
    a.i('v_writelane_b32 v0, s72, s74')
    a.i('s_add_u32 s74, s74, 1')


def barrier(a):
    a.i('s_barrier')
    stamp(a)


def stamp_init(a):
    if not STAMPS:
        return
    a.i('s_mov_b32 s74, 0')
    a.i('s_lshl_b32 s75, s2, 3')
    a.i('s_add_u32 s75, s75, %s' % sr(S_WAVE))
    a.i('s_lshl_b32 s75, s75, 8')
    a.i('s_add_u32 s75, s75, %d' % (128 << 20))
    a.i('s_add_u32 s76, %s, s75' % sr(S_WS))
    a.i('s_addc_u32 s77, %s, 0' % sr(S_WS + 1))
    a.i('s_mov_b32 s78, 256')
    a.i('s_mov_b32 s79, 0x20000')
    a.i('v_mov_b32 v0, 0')
    stamp(a)


def stamp_flush(a):
    if not STAMPS:
        return
    a.i('s_waitcnt vmcnt(0)')
    stamp(a)
    a.i('v_lshlrev_b32 v2, 2, %s' % vr(V_LANE))
    a.i('buffer_store_dword v0, v2, s[76:79], 0 offen')


def mfma(a, d, A, B, c=None):
    a.i('%s %s, %s, %s, %s' % (MFMA, vr(d, 4), vr(A, 4), vr(B, 4), vr(d, 4) if c is None else c))


def build_srd(a, srd, ptr, off_sgpr, nrec):
    a.i('s_add_u32 %s, %s, %s' % (sr(srd), sr(ptr), sr(off_sgpr)))
    a.i('s_addc_u32 %s, %s, 0' % (sr(srd + 1), sr(ptr + 1)))
    a.i('s_mov_b32 %s, %s' % (sr(srd + 2), nrec))
    a.i('s_mov_b32 %s, 0x20000' % sr(srd + 3))


def pat_U(a, dst, tmp, R, hk_list=(0, 1), hk_sgpr=None, sub=True):
    t0, t1 = tmp
    a.i('s_mov_b32 %s, %d' % (sr(S_T3), R))
    for hk, d in zip(hk_list, dst):
        a.i('v_lshrrev_b32 %s, 4, %s' % (vr(t0), vr(V_LANE)))
        if hk:
            a.i('v_add_u32 %s, 4, %s' % (vr(t0), vr(t0)))
        a.i('v_and_b32 %s, 7, %s' % (vr(t1), vr(V_LANE)))
        a.i('v_xor_b32 %s, %s, %s' % (vr(t0), vr(t0), vr(t1)))
        a.i('v_lshlrev_b32 %s, 4, %s' % (vr(t0), vr(t0)))
        a.i('v_lshrrev_b32 %s, 3, %s' % (vr(t1), vr(V_LANE)))
        a.i('v_mul_lo_u32 %s, %s, %s' % (vr(t1), vr(t1), sr(S_T3)))
        a.i('v_add_u32 %s, %s, %s' % (vr(d), vr(t0), vr(t1)))
        if hk:
            a.i('v_add_u32 %s, %d, %s' % (vr(d), 8 * R - (1024 if sub else 0), vr(d)))


def pat_T(a, dst, tmp, R):
    t0, t1 = tmp
    a.i('s_mov_b32 %s, %d' % (sr(S_T3), R))
    for hk, d in zip((0, 1), dst):
        a.i('v_lshrrev_b32 %s, 3, %s' % (vr(t0), vr(V_LANE)))
        a.i('v_and_b32 %s, 2, %s' % (vr(t0), vr(t0)))
        if hk:
            a.i('v_or_b32 %s, 4, %s' % (vr(t0), vr(t0)))
        a.i('v_and_b32 %s, 7, %s' % (vr(t1), vr(V_LANE)))
        a.i('v_xor_b32 %s, %s, %s' % (vr(t0), vr(t0), vr(t1)))
        a.i('v_lshlrev_b32 %s, 4, %s' % (vr(t0), vr(t0)))
        a.i('v_lshrrev_b32 %s, 3, %s' % (vr(t1), vr(V_LANE)))
        a.i('v_mul_lo_u32 %s, %s, %s' % (vr(t1), vr(t1), sr(S_T3)))
        a.i('v_add_u32 %s, %s, %s' % (vr(d), vr(t0), vr(t1)))
        if hk:
            a.i('v_add_u32 %s, %d, %s' % (vr(d), 8 * R - 1024, vr(d)))


def addr_U_read(a, dst, tmp, base_sgpr=None, base_imm=0):
    t0, t1 = tmp
    a.i('v_and_b32 %s, 15, %s' % (vr(t0), vr(V_LANE)))
    a.i('v_lshrrev_b32 %s, 1, %s' % (vr(t1), vr(t0)))
    a.i('v_lshlrev_b32 %s, 7, %s' % (vr(t0), vr(t0)))
    a.i('v_lshrrev_b32 %s, 4, %s' % (vr(dst[0]), vr(V_LANE)))
    a.i('v_xor_b32 %s, %s, %s' % (vr(t1), vr(t1), vr(dst[0])))
    a.i('v_lshlrev_b32 %s, 4, %s' % (vr(t1), vr(t1)))
    a.i('v_add_u32 %s, %s, %s' % (vr(dst[0]), vr(t0), vr(t1)))
    if base_imm:
        a.i('v_add_u32 %s, %d, %s' % (vr(dst[0]), base_imm, vr(dst[0])))
    if base_sgpr is not None:
        a.i('v_add_u32 %s, %s, %s' % (vr(dst[0]), sr(base_sgpr), vr(dst[0])))
    a.i('v_xor_b32 %s, 64, %s' % (vr(dst[1]), vr(dst[0])))


def addr_T_read(a, dst, tmp, base_sgpr=None):
    t0, t1 = tmp
    a.i('v_lshrrev_b32 %s, 4, %s' % (vr(t0), vr(V_LANE)))
    a.i('v_lshlrev_b32 %s, 10, %s' % (vr(t0), vr(t0)))
    a.i('v_bfe_u32 %s, %s, 2, 2' % (vr(t1), vr(V_LANE)))
    a.i('v_lshlrev_b32 %s, 7, %s' % (vr(t1), vr(t1)))
    a.i('v_add_u32 %s, %s, %s' % (vr(t0), vr(t0), vr(t1)))
    a.i('v_and_b32 %s, 3, %s' % (vr(t1), vr(V_LANE)))
    a.i('v_lshlrev_b32 %s, 3, %s' % (vr(t1), vr(t1)))
    a.i('v_add_u32 %s, %s, %s' % (vr(t0), vr(t0), vr(t1)))
    a.i('v_bfe_u32 %s, %s, 3, 2' % (vr(t1), vr(V_LANE)))
    a.i('v_lshlrev_b32 %s, 5, %s' % (vr(t1), vr(t1)))
    a.i('v_add_u32 %s, %s, %s' % (vr(dst[0]), vr(t0), vr(t1)))
    if base_sgpr is not None:
        a.i('v_add_u32 %s, %s, %s' % (vr(dst[0]), sr(base_sgpr), vr(dst[0])))
    for k in (1, 2, 3):
        a.i('v_xor_b32 %s, %d, %s' % (vr(dst[k]), 32 * k, vr(dst[0])))


def addr_D_write(a, dst, tmp, chunk2_sgpr=None):
    t0, t1 = tmp
    a.i('v_and_b32 %s, 15, %s' % (vr(t0), vr(V_LANE)))
    a.i('v_lshrrev_b32 %s, 1, %s' % (vr(t1), vr(t0)))
    a.i('v_lshlrev_b32 %s, 7, %s' % (vr(t0), vr(t0)))
    a.i('v_lshrrev_b32 %s, 5, %s' % (vr(dst), vr(V_LANE)))
    a.i('v_xor_b32 %s, %s, %s' % (vr(t1), vr(t1), vr(dst)))
    a.i('v_lshlrev_b32 %s, 4, %s' % (vr(t1), vr(t1)))
    a.i('v_add_u32 %s, %s, %s' % (vr(t0), vr(t0), vr(t1)))
    a.i('v_bfe_u32 %s, %s, 4, 1' % (vr(t1), vr(V_LANE)))
    a.i('v_lshlrev_b32 %s, 3, %s' % (vr(t1), vr(t1)))
    a.i('v_add_u32 %s, %s, %s' % (vr(dst), vr(t0), vr(t1)))
    if chunk2_sgpr is not None:
        a.i('v_xor_b32 %s, %s, %s' % (vr(dst), sr(chunk2_sgpr), vr(dst)))


def dma_unit(lds_off, last):
    return [
        's_add_u32 m0, %s, %d' % (sr(S_RING), lds_off),
        'buffer_load_dwordx4 %s, %s, %s offen lds' % (vr(V_PAT[0]), sr(SRD_ST, 4), sr(S_SOFF)),
        'buffer_load_dwordx4 %s, %s, %s offen offset:1024 lds' % (vr(V_PAT[1]), sr(SRD_ST, 4), sr(S_SOFF)),
        's_add_u32 %s, %s, %s' % (sr(S_SOFF), sr(S_SOFF), sr(S_STEPL if last else S_STEPU)),
    ]


def switch_to_wo(a, tmp):
    for k in range(3):
        a.i('s_mov_b32 %s, %s' % (sr(SRD_ST + k), sr(SRD_WO + k)))
    a.i('s_lshl_b32 %s, %s, 7' % (sr(S_SOFF), sr(S_CG)))
    a.i('s_mov_b32 %s, %d' % (sr(S_STEPU), 16 * 896))
    a.i('s_mov_b32 %s, %d' % (sr(S_STEPL), 16 * 896))
    pat_T(a, V_PAT, tmp, 896)


def run_stream(a, mf, fill):
    def emit(lst):
        for x in lst:
            if callable(x):
                x()
            else:
                a.i(x)
    emit(fill.get(-1, []))
    for m, f in enumerate(mf):
        f()
        emit(fill.get(m, []))
    for m in sorted(k for k in fill if k >= len(mf)):
        emit(fill[m])


def spread(fill, items, m0, m1):
    n = len(items)
    span = m1 - m0 + 1
    for k, it in enumerate(items):
        m = m0 + (k * span) // n
        fill.setdefault(m, []).append(it)


def a_reads(e_dst, imm):
    out = []
    for ai in range(4):
        for hh in range(2):
            out.append('ds_read_b64_tr_b16 %s, %s offset:%d' % (vr(G_AF(e_dst, ai) + 2 * hh, 2), vr(G_TA[ai]), imm + hh * 512))
    return out


def b_reads(e, imm_of_i):
    return ['ds_read_b128 %s, %s offset:%d' % (vr(G_BF(e, i), 4), vr(G_UB[e]), imm_of_i(i)) for i in range(5)]


def gemm_mfmas(a, acc):
    mf = []
    for e in range(2):
        for ai in range(4):
            for i in range(5):
                mf.append(lambda e=e, ai=ai, i=i: mfma(a, acc(ai, i), G_AF(e, ai), G_BF(e, i)))
    return mf


def gen_main(a, name):
    a.raw('.globl %s' % name)
    a.raw('.p2align 8')
    a.raw('.type %s,@function' % name)
    a.label(name)
    a.i('s_cmp_ge_u32 s2, 256')
    a.i('s_cbranch_scc1 L_end')
    a.i('s_load_dwordx16 s[4:19], s[0:1], 0')
    a.i('v_and_b32 %s, 63, v0' % vr(V_LANE))
    a.i('v_lshrrev_b32 v2, 6, v0')
    a.i('v_readfirstlane_b32 %s, v2' % sr(S_WAVE))
    a.i('s_and_b32 %s, s2, 7' % sr(S_HKV))
    a.i('s_lshr_b32 %s, s2, 5' % sr(S_B))
    a.i('s_bfe_u32 %s, s2, 0x10004' % sr(S_T0))
    a.i('s_bfe_u32 %s, s2, 0x10003' % sr(S_T1))
    a.i('s_lshl_b32 %s, %s, 1' % (sr(S_H), sr(S_HKV)))
    a.i('s_add_u32 %s, %s, %s' % (sr(S_H), sr(S_H), sr(S_T0)))
    a.i('s_lshl_b32 %s, %s, 1' % (sr(S_GRP), sr(S_B)))
    a.i('s_add_u32 %s, %s, %s' % (sr(S_GRP), sr(S_GRP), sr(S_T1)))
    a.i('s_and_b32 %s, %s, 3' % (sr(S_W), sr(S_WAVE)))
    a.i('s_mov_b32 %s, %s' % (sr(S_C), f32hex(CSCALE)))
    a.i('s_waitcnt lgkmcnt(0)')
    stamp_init(a)
    a.i('s_mul_i32 %s, %s, %d' % (sr(S_T0), sr(S_H), 229376))
    build_srd(a, SRD_WO, S_WO, S_T0, 229376)
    a.i('s_lshl_b32 %s, %s, 4' % (sr(S_T0), sr(S_GRP)))
    a.i('s_add_u32 %s, %s, %s' % (sr(S_T0), sr(S_T0), sr(S_H)))
    a.i('s_mul_i32 %s, %s, %d' % (sr(S_T0), sr(S_T0), 71680))
    build_srd(a, SRD_PO, S_WS, S_T0, 71680)
    a.i('s_lshl_b32 %s, %s, 3' % (sr(S_T0), sr(S_B)))
    a.i('s_add_u32 %s, %s, %s' % (sr(S_T0), sr(S_T0), sr(S_HKV)))
    a.i('s_lshl_b32 %s, %s, 19' % (sr(S_T2), sr(S_T0)))
    a.i('s_cmp_ge_u32 %s, 4' % sr(S_WAVE))
    a.i('s_cbranch_scc1 L_pv')

    build_srd(a, SRD_ST, S_K, S_T2, 524288)
    a.i('s_lshl_b32 %s, %s, 9' % (sr(S_T0), sr(S_H)))
    a.i('s_sub_u32 %s, %d, %s' % (sr(S_T1), 448 * 8192, sr(S_T0)))
    build_srd(a, SRD_WQ, S_WQ, S_T0, sr(S_T1))
    a.i('s_mul_i32 %s, %s, %d' % (sr(S_T0), sr(S_GRP), 71680))
    build_srd(a, SRD_X, S_X, S_T0, 71680)
    a.i('s_mov_b32 %s, %s' % (sr(S_CG), sr(S_W)))
    a.i('s_cmp_eq_u32 %s, 3' % sr(S_W))
    a.i('s_cselect_b32 %s, 0, %s' % (sr(SRD_WO + 2), sr(SRD_WO + 2)))
    LWQ = [100, 101]
    LX = [102, 103]
    LT = (104, 105)
    pat_T(a, LWQ, LT, 8192)
    pat_U(a, LX, LT, 896, sub=False)
    a.i('s_and_b32 %s, %s, 1' % (sr(S_T0), sr(S_W)))
    a.i('s_cmp_eq_u32 %s, 1' % sr(S_T0))
    a.i('s_cselect_b64 vcc, -1, 0')
    a.i('v_cndmask_b32 %s, %s, %s, vcc' % (vr(LX[0]), vr(LX[0]), vr(LX[1])))
    for k in range(3):
        a.i('s_add_u32 %s, %s, %d' % (sr(S_T0), sr(S_W), 4 * k))
        if k == 2:
            a.i('s_add_u32 %s, %s, 4' % (sr(S_T1), sr(S_W)))
            a.i('s_cmp_ge_u32 %s, 10' % sr(S_T0))
            a.i('s_cselect_b32 %s, %s, %s' % (sr(S_T0), sr(S_T1), sr(S_T0)))
        a.i('s_lshl_b32 %s, %s, 10' % (sr(S_XL[k]), sr(S_T0)))
        a.i('s_lshr_b32 %s, %s, 1' % (sr(S_T0), sr(S_T0)))
        a.i('s_mul_i32 %s, %s, %d' % (sr(S_XG[k]), sr(S_T0), 16 * 896))
    a.i('s_lshl_b32 %s, %s, 7' % (sr(S_WQOFF), sr(S_W)))
    a.i('s_lshl_b32 %s, %s, 13' % (sr(S_T1), sr(S_W)))

    def issue_tile(c):
        sl = c % 3
        for k in range(3):
            a.i('s_add_u32 m0, %s, %d' % (sr(S_XL[k]), XSLOT[sl]))
            a.i('buffer_load_dwordx4 %s, %s, %s offen lds' % (vr(LX[0]), sr(SRD_X, 4), sr(S_XG[k])))
            a.i('s_add_u32 %s, %s, 128' % (sr(S_XG[k]), sr(S_XG[k])))
        for u in range(4):
            a.i('s_add_u32 m0, %s, %d' % (sr(S_T1), WSLOT[sl] + u * 2048))
            a.i('buffer_load_dwordx4 %s, %s, %s offen lds' % (vr(LWQ[0]), sr(SRD_WQ, 4), sr(S_WQOFF)))
            a.i('buffer_load_dwordx4 %s, %s, %s offen offset:1024 lds' % (vr(LWQ[1]), sr(SRD_WQ, 4), sr(S_WQOFF)))
            a.i('s_add_u32 %s, %s, %d' % (sr(S_WQOFF), sr(S_WQOFF), 16 * 8192))

    for c in range(3):
        issue_tile(c)
    T2 = (Q_TMP[0], Q_TMP[1])
    pat_U(a, V_PAT, T2, 512)
    a.i('s_lshl_b32 %s, %s, 13' % (sr(S_SOFF), sr(S_W)))
    a.i('s_mov_b32 %s, 128' % sr(S_STEPU))
    a.i('s_mov_b32 %s, %d' % (sr(S_STEPL), 32768 - 384))
    a.i('s_lshl_b32 %s, %s, 14' % (sr(S_RING), sr(S_W)))
    a.i('s_add_u32 %s, %s, %d' % (sr(S_RING), sr(S_RING), KR0))
    a.i('s_lshl_b32 %s, %s, 5' % (sr(S_T0), sr(S_W)))
    addr_D_write(a, Q_PWA, T2, S_T0)
    a.i('v_add_u32 %s, %d, %s' % (vr(Q_PWA), PB, vr(Q_PWA)))
    a.i('v_and_b32 %s, 15, %s' % (vr(T2[0]), vr(V_LANE)))
    a.i('v_lshlrev_b32 %s, 5, %s' % (vr(T2[0]), vr(T2[0])))
    a.i('v_add_u32 %s, %d, %s' % (vr(Q_MX4), SM, vr(T2[0])))
    a.i('v_bfe_u32 %s, %s, 4, 1' % (vr(T2[0]), vr(V_LANE)))
    a.i('v_lshlrev_b32 %s, 3, %s' % (vr(T2[0]), vr(T2[0])))
    a.i('v_lshrrev_b32 %s, 5, %s' % (vr(T2[1]), vr(V_LANE)))
    a.i('v_lshlrev_b32 %s, 2, %s' % (vr(T2[1]), vr(T2[1])))
    a.i('v_add3_u32 %s, %s, %s, %s' % (vr(Q_MXW), vr(Q_MX4), vr(T2[0]), vr(T2[1])))
    a.i('v_lshlrev_b32 %s, 2, %s' % (vr(T2[0]), vr(V_LANE)))
    a.i('v_add_u32 %s, %d, %s' % (vr(Q_FLW), FL, vr(T2[0])))
    for i in range(5):
        a.i('v_mov_b32 %s, 0' % vr(Q_L + i))
        a.i('v_mov_b32 %s, %s' % (vr(Q_MC + i), f32hex(-1e30)))
    addr_U_read(a, Q_UA, T2)
    for c in range(7):
        n = 22 if c == 0 else (11 if c < 6 else 0)
        a.i('s_waitcnt vmcnt(%d)' % n)
        barrier(a)
        if 1 <= c <= 4:
            issue_tile(c + 2)
    for t in range(2):
        for u in range(4):
            for x in dma_unit(t * 8192 + u * 2048, u == 3):
                a.i(x)
    barrier(a)
    for i in range(5):
        for s in range(8):
            a.i('ds_read_b128 %s, %s offset:%d' % (vr(Q_Q(i, s), 4), vr(Q_UA[s & 1]), QB + (i * 4 + (s >> 1)) * 2048))
            if (i * 8 + s) % 12 == 11:
                a.i('s_waitcnt lgkmcnt(4)')
    a.i('s_waitcnt lgkmcnt(0)')
    for e in range(2):
        a.i('v_add_u32 %s, %s, %s' % (vr(Q_UA[e]), sr(S_RING), vr(Q_UA[e])))
    a.i('s_waitcnt vmcnt(12)')

    def kread(par, s, buf):
        return 'ds_read_b128 %s, %s offset:%d' % (vr(Q_KF(buf), 4), vr(Q_UA[s & 1]), par * 8192 + (s >> 1) * 2048)

    a.i(kread(0, 0, 0))
    a.i(kread(0, 1, 1))
    a.i('s_waitcnt lgkmcnt(0)')
    a.i('s_mov_b32 %s, 0' % sr(S_P))

    rare_blocks = []

    def qk_phase(par, do_mfma, do_soft, tag):
        pp = 1 - par
        fill = {}
        mf = []
        if do_mfma:
            order = [(s, i) for s in range(6) for i in range(5)] + [(s, i) for i in range(5) for s in (6, 7)]
            for (s, i) in order:
                mf.append(lambda s=s, i=i: mfma(a, Q_S(par, i), Q_KF(s % 4), Q_Q(i, s), '0' if s == 0 else None))
            reads = [(0, 2, 0, 2), (2, 3, 0, 3), (5, 4, 0, 0), (10, 5, 0, 1), (15, 6, 0, 2), (20, 7, 0, 3),
                     (25, 0, 1, 0), (30, 1, 1, 1)]
            refills = [(1, 0), (16, 1), (26, 2), (32, 3)]
            ev = []
            for (m, s, dt, buf) in reads:
                ev.append((m, 0, 'need', dt, s >> 1, s, buf))
            for (m, u) in refills:
                ev.append((m, 1, 'dma', u, 0))
                ev.append((m + 1, 1, 'dma', u, 1))
            ev.sort(key=lambda e: (e[0], e[1]))
            issued = []
            need_n = {}
            for ph in range(4):
                for e in ev:
                    if e[2] == 'dma':
                        issued.append((ph + 2, e[3]))
                    elif ph == 3:
                        key = (ph + e[3], e[4])
                        last = max(k for k, x in enumerate(issued) if x == key)
                        need_n[e[5]] = len(issued) - 1 - last
            for e in ev:
                m = e[0]
                if e[2] == 'need':
                    _, _, _, dt, u, s, buf = e
                    if s % 2 == 0:
                        fill.setdefault(m, []).append('s_waitcnt vmcnt(%d)' % need_n[s])
                    fill.setdefault(m, []).append(kread(pp if dt else par, s, buf))
                else:
                    d = dma_unit(par * 8192 + e[3] * 2048, e[3] == 3)
                    fill.setdefault(m, []).extend(d[0:2] if e[4] == 0 else d[2:4])
        soft = []
        if do_soft:
            pre = ['ds_read_b128 %s, %s offset:%d' % (vr(Q_TMAX, 4), vr(Q_MX4), pp * 512),
                   'ds_read_b32 %s, %s offset:%d' % (vr(Q_TMAX + 4), vr(Q_MX4), pp * 512 + 16),
                   'v_mov_b32 %s, 0' % vr(Q_FLAG)]
            fill.setdefault(-1, []).extend(pre)
            chk = []
            for i in range(5):
                chk.append('v_fma_f32 %s, %s, %s, -%s' % (vr(Q_TMP[i]), vr(Q_TMAX + i), sr(S_C), vr(Q_MC + i)))
            chk.append('v_max3_f32 %s, %s, %s, %s' % (vr(Q_TMP[0]), vr(Q_TMP[0]), vr(Q_TMP[1]), vr(Q_TMP[2])))
            chk.append('v_max3_f32 %s, %s, %s, %s' % (vr(Q_TMP[0]), vr(Q_TMP[0]), vr(Q_TMP[3]), vr(Q_TMP[4])))
            chk.append('v_cmp_lt_f32 vcc, %s, %s' % (f32hex(THR), vr(Q_TMP[0])))

            def br():
                a.i('s_cbranch_vccnz L_qrare_%s' % tag)
                a.label('L_qjoin_%s' % tag)
            chk.append(br)
            chk.append('ds_write_b32 %s, %s offset:%d' % (vr(Q_FLW), vr(Q_FLAG), pp * 256))
            rare_blocks.append((tag, pp))
            for i in range(5):
                S = Q_S(pp, i)
                for r in range(4):
                    soft.append('v_fma_f32 %s, %s, %s, -%s' % (vr(S + r), vr(S + r), sr(S_C), vr(Q_MC + i)))
                for r in range(4):
                    soft.append('v_exp_f32 %s, %s' % (vr(S + r), vr(S + r)))
                t0 = Q_TMP[5 + (i & 1) * 2]
                soft.append('v_add_f32 %s, %s, %s' % (vr(t0), vr(S), vr(S + 1)))
                soft.append('v_add_f32 %s, %s, %s' % (vr(t0 + 1), vr(S + 2), vr(S + 3)))
                soft.append('v_cvt_pk_bf16_f32 %s, %s, %s' % (vr(S), vr(S), vr(S + 1)))
                soft.append('v_cvt_pk_bf16_f32 %s, %s, %s' % (vr(S + 1), vr(S + 2), vr(S + 3)))
                soft.append('v_add_f32 %s, %s, %s' % (vr(t0), vr(t0), vr(t0 + 1)))
                soft.append('ds_write_b64 %s, %s offset:%d' % (vr(Q_PWA), vr(S, 2), pp * 10240 + i * 2048))
                soft.append('v_add_f32 %s, %s, %s' % (vr(Q_L + i), vr(Q_L + i), vr(t0)))
            if do_mfma:
                spread(fill, chk, 2, 4)
                spread(fill, soft, 5, 34)
            else:
                fill.setdefault(-1, []).extend(chk + soft)
        if do_mfma:
            M = [Q_TMP[9], Q_TMP[10], Q_TMP[11], Q_TMP[12], Q_TMP[4]]
            for i in range(5):
                S = Q_S(par, i)
                m = 35 + i if i < 4 else 40
                m = min(34 + 2 * i, 40)
                fill.setdefault(m, []).extend([
                    'v_max3_f32 %s, %s, %s, %s' % (vr(M[i]), vr(S), vr(S + 1), vr(S + 2)),
                    'v_max_f32 %s, %s, %s' % (vr(M[i]), vr(M[i]), vr(S + 3))])
            fill.setdefault(39, []).extend([
                'v_permlane32_swap_b32 %s, %s' % (vr(M[0]), vr(M[1])),
                'v_max_f32 %s, %s, %s' % (vr(M[0]), vr(M[0]), vr(M[1]))])
            fill.setdefault(41, []).extend([
                'ds_max_f32 %s, %s offset:%d' % (vr(Q_MX4), vr(M[4]), par * 512 + 16),
                'v_permlane32_swap_b32 %s, %s' % (vr(M[2]), vr(M[3])),
                'v_max_f32 %s, %s, %s' % (vr(M[2]), vr(M[2]), vr(M[3])),
                'v_permlane16_swap_b32 %s, %s' % (vr(M[0]), vr(M[2])),
                'v_max_f32 %s, %s, %s' % (vr(M[0]), vr(M[0]), vr(M[2])),
                'ds_max_f32 %s, %s offset:%d' % (vr(Q_MXW), vr(M[0]), par * 512)])
        run_stream(a, mf, fill)
        a.i('s_waitcnt lgkmcnt(0)')
        barrier(a)

    qk_phase(0, True, False, 'p0')
    a.i('s_mov_b32 %s, 1' % sr(S_P))
    a.label('L_qloop')
    qk_phase(1, True, True, 'odd')
    a.i('s_cmp_eq_u32 %s, 15' % sr(S_P))
    a.i('s_cbranch_scc1 L_qdone')
    a.i('s_cmp_eq_u32 %s, 13' % sr(S_P))
    a.i('s_cbranch_scc0 L_qnosw')
    switch_to_wo(a, (Q_TMP[0], Q_TMP[1]))
    a.label('L_qnosw')
    qk_phase(0, True, True, 'even')
    a.i('s_add_u32 %s, %s, 2' % (sr(S_P), sr(S_P)))
    a.i('s_branch L_qloop')
    a.reset()
    a.label('L_qdone')
    qk_phase(0, False, True, 'p16')
    L = [Q_L + i for i in range(5)]
    t = Q_TMP[0]
    a.i('v_permlane32_swap_b32 %s, %s' % (vr(L[0]), vr(L[1])))
    a.i('v_add_f32 %s, %s, %s' % (vr(L[0]), vr(L[0]), vr(L[1])))
    a.i('v_permlane32_swap_b32 %s, %s' % (vr(L[2]), vr(L[3])))
    a.i('v_add_f32 %s, %s, %s' % (vr(L[2]), vr(L[2]), vr(L[3])))
    a.i('v_permlane16_swap_b32 %s, %s' % (vr(L[0]), vr(L[2])))
    a.i('v_add_f32 %s, %s, %s' % (vr(L[0]), vr(L[0]), vr(L[2])))
    a.i('v_mov_b32 %s, %s' % (vr(t), vr(L[4])))
    a.i('v_permlane32_swap_b32 %s, %s' % (vr(L[4]), vr(t)))
    a.i('v_add_f32 %s, %s, %s' % (vr(L[4]), vr(L[4]), vr(t)))
    a.i('v_mov_b32 %s, %s' % (vr(t), vr(L[4])))
    a.i('v_permlane16_swap_b32 %s, %s' % (vr(L[4]), vr(t)))
    a.i('v_add_f32 %s, %s, %s' % (vr(L[4]), vr(L[4]), vr(t)))
    a.i('s_lshl_b32 %s, %s, 9' % (sr(S_T0), sr(S_W)))
    a.i('v_add_u32 %s, %s, %s' % (vr(Q_MXW), sr(S_T0), vr(Q_MXW)))
    a.i('v_add_u32 %s, %s, %s' % (vr(Q_MX4), sr(S_T0), vr(Q_MX4)))
    a.i('ds_write_b32 %s, %s offset:%d' % (vr(Q_MXW), vr(L[0]), LS - SM))
    a.i('ds_write_b32 %s, %s offset:%d' % (vr(Q_MX4), vr(L[4]), LS - SM + 16))
    a.i('s_waitcnt lgkmcnt(0)')
    addr_T_read(a, G_TA, (G_T[0], G_T[1]), S_RING)
    addr_U_read(a, G_UB, (G_T[0], G_T[1]), base_imm=OB)
    for k in range(20):
        for r in range(4):
            a.i('v_mov_b32 %s, 0' % vr(ACC_W(k // 5, k % 5) + r))
    a.i('s_waitcnt vmcnt(0)')
    for x in a_reads(0, 0):
        a.i(x)
    a.i('s_waitcnt lgkmcnt(0)')
    barrier(a)
    barrier(a)
    a.i('s_cmp_eq_u32 %s, 3' % sr(S_W))
    a.i('s_cbranch_scc1 L_fin')
    a.i('s_branch L_oproj')
    a.reset()
    for tag, pp in rare_blocks:
        a.label('L_qrare_%s' % tag)
        a.fence(4)
        for i in range(5):
            tm = Q_TMAX + i
            a.i('v_mul_f32 %s, %s, %s' % (vr(tm), sr(S_C), vr(tm)))
            a.i('v_max_f32 %s, %s, %s' % (vr(Q_TMP[i]), vr(tm), vr(Q_MC + i)))
            a.i('v_sub_f32 %s, %s, %s' % (vr(tm), vr(Q_MC + i), vr(Q_TMP[i])))
            a.i('v_exp_f32 %s, %s' % (vr(tm), vr(tm)))
            a.i('v_mov_b32 %s, %s' % (vr(Q_MC + i), vr(Q_TMP[i])))
            a.i('v_mul_f32 %s, %s, %s' % (vr(Q_L + i), vr(Q_L + i), vr(tm)))
        a.i('ds_write_b128 %s, %s offset:%d' % (vr(Q_MX4), vr(Q_TMAX, 4), AL - SM + pp * 512))
        a.i('ds_write_b32 %s, %s offset:%d' % (vr(Q_MX4), vr(Q_TMAX + 4), AL - SM + pp * 512 + 16))
        a.i('v_mov_b32 %s, 1.0' % vr(Q_FLAG))
        a.i('s_waitcnt lgkmcnt(0)')
        a.fence(4)
        a.i('s_branch L_qjoin_%s' % tag)
        a.reset()

    a.label('L_pv')
    build_srd(a, SRD_ST, S_V, S_T2, 524288)
    a.i('s_add_u32 %s, %s, 3' % (sr(S_CG), sr(S_W)))
    GT = (G_T[0], G_T[1])
    addr_T_read(a, G_TA, GT)
    a.i('v_mov_b32 %s, %s' % (vr(G_T[2]), vr(G_TA[0])))
    addr_U_read(a, G_UB, GT)
    a.i('v_mov_b32 %s, %s' % (vr(G_T[3]), vr(G_UB[0])))
    for k in range(80):
        a.i('v_mov_b32 %s, 0' % vr(176 + k))
    a.i('s_lshl_b32 %s, %s, 13' % (sr(S_T0), sr(S_W)))
    a.i('s_add_u32 %s, %s, %d' % (sr(S_WCUR), sr(S_T0), WSLOT[0]))
    a.i('s_add_u32 %s, %s, %d' % (sr(S_WN1), sr(S_T0), WSLOT[1]))
    a.i('s_add_u32 %s, %s, %d' % (sr(S_WN2), sr(S_T0), WSLOT[2]))
    a.i('s_mov_b32 %s, %d' % (sr(S_XCUR), XSLOT[0]))
    a.i('s_mov_b32 %s, %d' % (sr(S_XN1), XSLOT[1]))
    a.i('s_mov_b32 %s, %d' % (sr(S_XN2), XSLOT[2]))
    a.i('s_mov_b32 %s, 0' % sr(S_P))
    a.label('L_qproj')
    a.i('v_add_u32 %s, %s, %s' % (vr(G_TA[0]), sr(S_WCUR), vr(G_T[2])))
    a.i('v_add_u32 %s, %s, %s' % (vr(G_UB[0]), sr(S_XCUR), vr(G_T[3])))
    for k in (1, 2, 3):
        a.i('v_xor_b32 %s, %d, %s' % (vr(G_TA[k]), 32 * k, vr(G_TA[0])))
    a.i('v_xor_b32 %s, 64, %s' % (vr(G_UB[1]), vr(G_UB[0])))
    a.i('s_mov_b32 %s, %s' % (sr(S_T0), sr(S_WCUR)))
    a.i('s_mov_b32 %s, %s' % (sr(S_WCUR), sr(S_WN1)))
    a.i('s_mov_b32 %s, %s' % (sr(S_WN1), sr(S_WN2)))
    a.i('s_mov_b32 %s, %s' % (sr(S_WN2), sr(S_T0)))
    a.i('s_mov_b32 %s, %s' % (sr(S_T0), sr(S_XCUR)))
    a.i('s_mov_b32 %s, %s' % (sr(S_XCUR), sr(S_XN1)))
    a.i('s_mov_b32 %s, %s' % (sr(S_XN1), sr(S_XN2)))
    a.i('s_mov_b32 %s, %s' % (sr(S_XN2), sr(S_T0)))
    barrier(a)
    fill = {}
    A0 = a_reads(0, 0)
    B0 = b_reads(0, lambda i: i * 2048)
    fill[-1] = A0[0:2] + B0 + A0[2:]
    spread(fill, b_reads(1, lambda i: i * 2048) + a_reads(1, 4096), 2, 16)
    run_stream(a, gemm_mfmas(a, ACC_O), fill)
    a.i('s_add_u32 %s, %s, 1' % (sr(S_P), sr(S_P)))
    a.i('s_cmp_lt_u32 %s, 7' % sr(S_P))
    a.i('s_cbranch_scc1 L_qproj')

    def write_D(acc, base_imm_of_i, scale=None):
        for ai in range(4):
            d = G_T[5]
            if ai == 0:
                a.i('v_mov_b32 %s, %s' % (vr(d), vr(G_T[4])))
            else:
                a.i('v_xor_b32 %s, %d, %s' % (vr(d), 32 * ai, vr(G_T[4])))
            for i in range(5):
                R = acc(ai, i)
                if scale is not None:
                    for r in range(4):
                        a.i('v_mul_f32 %s, %s, %s' % (vr(R + r), vr(R + r), vr(scale + i)))
                a.i('v_cvt_pk_bf16_f32 %s, %s, %s' % (vr(R), vr(R), vr(R + 1)))
                a.i('v_cvt_pk_bf16_f32 %s, %s, %s' % (vr(R + 1), vr(R + 2), vr(R + 3)))
                a.i('ds_write_b64 %s, %s offset:%d' % (vr(d), vr(R, 2), base_imm_of_i(i)))
            a.i('s_waitcnt lgkmcnt(0)')

    addr_D_write(a, G_T[4], GT)
    a.i('s_lshl_b32 %s, %s, 11' % (sr(S_T0), sr(S_W)))
    a.i('v_add_u32 %s, %s, %s' % (vr(G_T[4]), sr(S_T0), vr(G_T[4])))
    write_D(ACC_O, lambda i: QB + i * 8192)
    a.i('s_cmp_eq_u32 %s, 3' % sr(S_W))
    a.i('s_cbranch_scc0 L_noinit')
    a.i('v_lshlrev_b32 %s, 4, %s' % (vr(GT[0]), vr(V_LANE)))
    a.i('v_add_u32 %s, %d, %s' % (vr(GT[0]), MX, vr(GT[0])))
    for r in range(4):
        a.i('v_mov_b32 %s, %s' % (vr(G_AL + r), f32hex(-3.0e38)))
    a.i('ds_write_b128 %s, %s' % (vr(GT[0]), vr(G_AL, 4)))
    a.i('s_waitcnt lgkmcnt(0)')
    a.label('L_noinit')
    barrier(a)
    pat_T(a, V_PAT, GT, 512)
    a.i('s_lshl_b32 %s, %s, 7' % (sr(S_SOFF), sr(S_W)))
    a.i('s_mov_b32 %s, 8192' % sr(S_STEPU))
    a.i('s_mov_b32 %s, 8192' % sr(S_STEPL))
    a.i('s_lshl_b32 %s, %s, 14' % (sr(S_RING), sr(S_W)))
    a.i('v_add_u32 %s, %s, %s' % (vr(G_TA[0]), sr(S_RING), vr(G_T[2])))
    for k in (1, 2, 3):
        a.i('v_xor_b32 %s, %d, %s' % (vr(G_TA[k]), 32 * k, vr(G_TA[0])))
    a.i('v_add_u32 %s, %d, %s' % (vr(G_UB[0]), PB, vr(G_T[3])))
    a.i('v_xor_b32 %s, 64, %s' % (vr(G_UB[1]), vr(G_UB[0])))
    a.i('v_lshlrev_b32 %s, 2, %s' % (vr(G_FLA), vr(V_LANE)))
    a.i('v_add_u32 %s, %d, %s' % (vr(G_FLA), FL, vr(G_FLA)))
    a.i('v_and_b32 %s, 15, %s' % (vr(G_ALA), vr(V_LANE)))
    a.i('v_lshlrev_b32 %s, 5, %s' % (vr(G_ALA), vr(G_ALA)))
    a.i('v_add_u32 %s, %d, %s' % (vr(G_ALA), SM, vr(G_ALA)))
    for k in range(80):
        a.i('v_mov_b32 %s, 0' % vr(176 + k))
    for k in range(20):
        for r in range(4):
            a.i('v_mov_b32 %s, 0' % vr(ACC_W(k // 5, k % 5) + r))
    barrier(a)
    for t in range(2):
        for u in range(4):
            for x in dma_unit(t * 8192 + u * 2048, u == 3):
                a.i(x)
    a.i('s_waitcnt vmcnt(12)')
    for x in a_reads(0, 0):
        a.i(x)
    a.i('s_waitcnt lgkmcnt(0)')
    barrier(a)
    a.i('s_mov_b32 %s, 2' % sr(S_P))

    pv_rare = []

    def gemm_tile(par, acc, bimm, n_a1, n_a0, refill, flag_tag=None, bar=True, next_a=True):
        fill = {}
        pre = []
        if flag_tag is not None:
            pre.append('ds_read_b32 %s, %s offset:%d' % (vr(G_T[6]), vr(G_FLA), par * 256))
        pre += b_reads(0, lambda i: bimm(i))
        pre.append('s_waitcnt vmcnt(%d)' % n_a1)
        pre += a_reads(1, par * 8192 + 4096)
        if flag_tag is not None:
            pre.append('v_cmp_ne_u32 vcc, 0, %s' % vr(G_T[6]))

            def br():
                a.i('s_cbranch_vccnz L_prare_%s' % flag_tag)
                a.label('L_pjoin_%s' % flag_tag)
            pre.append(br)
            pv_rare.append((flag_tag, par))
        fill[-1] = pre
        spread(fill, b_reads(1, lambda i: bimm(i)), 5, 9)
        if refill:
            d = dma_unit(par * 8192, False) + dma_unit(par * 8192 + 2048, False)
            spread(fill, d, 10, 17)
            d = dma_unit(par * 8192 + 4096, False) + dma_unit(par * 8192 + 6144, True)
            fill.setdefault(20, []).append('s_waitcnt lgkmcnt(0)')
            spread(fill, d, 20, 27)
        if next_a:
            spread(fill, ['s_waitcnt vmcnt(%d)' % n_a0] + a_reads(0, (1 - par) * 8192), 28, 36)
        run_stream(a, gemm_mfmas(a, acc), fill)
        a.i('s_waitcnt lgkmcnt(0)')
        if bar:
            barrier(a)

    a.label('L_ploop')
    gemm_tile(0, ACC_O, lambda i: i * 2048, 8, 12, True, 'even')
    gemm_tile(1, ACC_O, lambda i: 10240 + i * 2048, 8, 12, True, 'odd')
    a.i('s_cmp_eq_u32 %s, 14' % sr(S_P))
    a.i('s_cbranch_scc0 L_pnosw')
    switch_to_wo(a, GT)
    a.label('L_pnosw')
    a.i('s_add_u32 %s, %s, 2' % (sr(S_P), sr(S_P)))
    a.i('s_cmp_lt_u32 %s, 18' % sr(S_P))
    a.i('s_cbranch_scc1 L_ploop')
    LT = G_BF(0, 0)
    for w in range(4):
        a.i('ds_read_b128 %s, %s offset:%d' % (vr(LT + w * 8, 4), vr(G_ALA), LS - SM + w * 512))
        a.i('ds_read_b32 %s, %s offset:%d' % (vr(LT + w * 8 + 4), vr(G_ALA), LS - SM + w * 512 + 16))
    for i in range(5):
        a.i('v_add_f32 %s, %s, %s' % (vr(G_AL + i), vr(LT + i), vr(LT + 8 + i)))
        a.i('v_add_f32 %s, %s, %s' % (vr(LT + 16 + i), vr(LT + 16 + i), vr(LT + 24 + i)))
        a.i('v_add_f32 %s, %s, %s' % (vr(G_AL + i), vr(G_AL + i), vr(LT + 16 + i)))
        a.i('v_rcp_f32 %s, %s' % (vr(G_AL + i), vr(G_AL + i)))
    a.i('v_add_u32 %s, %d, %s' % (vr(G_T[4]), OB, vr(G_T[4])))
    write_D(ACC_O, lambda i: i * 8192, scale=G_AL)
    a.i('v_add_u32 %s, %d, %s' % (vr(G_UB[0]), OB, vr(G_T[3])))
    a.i('v_xor_b32 %s, 64, %s' % (vr(G_UB[1]), vr(G_UB[0])))
    barrier(a)
    a.label('L_oproj')
    a.fence(4)
    for tau in range(4):
        gemm_tile(tau & 1, ACC_W, lambda i, tau=tau: (i * 4 + tau) * 2048,
                  n_a1=[8, 8, 8, 0][tau], n_a0=[12, 12, 4, 0][tau], refill=tau < 2, bar=False, next_a=tau < 3)
    stamp(a)
    a.i('v_lshlrev_b32 %s, 4, %s' % (vr(GT[0]), vr(V_LANE)))
    a.i('s_mul_i32 %s, %s, 10240' % (sr(S_T0), sr(S_CG)))
    k = 0
    for i in range(5):
        for ap in range(2):
            R0, R1 = ACC_W(2 * ap, i), ACC_W(2 * ap + 1, i)
            a.i('v_cvt_pk_bf16_f32 %s, %s, %s' % (vr(R0), vr(R0), vr(R0 + 1)))
            a.i('v_cvt_pk_bf16_f32 %s, %s, %s' % (vr(R0 + 1), vr(R0 + 2), vr(R0 + 3)))
            a.i('v_cvt_pk_bf16_f32 %s, %s, %s' % (vr(R0 + 2), vr(R1), vr(R1 + 1)))
            a.i('v_cvt_pk_bf16_f32 %s, %s, %s' % (vr(R0 + 3), vr(R1 + 2), vr(R1 + 3)))
            a.i('buffer_store_dwordx4 %s, %s, %s, %s offen offset:%d' % (vr(R0, 4), vr(GT[0]), sr(SRD_PO, 4), sr(S_T0), (k % 4) * 1024))
            k += 1
            if k % 4 == 0:
                a.i('s_add_u32 %s, %s, 4096' % (sr(S_T0), sr(S_T0)))
    a.label('L_fin')
    stamp_flush(a)
    a.label('L_end')
    a.i('s_endpgm')
    a.reset()
    for tag, par in pv_rare:
        a.label('L_prare_%s' % tag)
        a.i('ds_read_b128 %s, %s offset:%d' % (vr(G_AL, 4), vr(G_ALA), AL - SM + par * 512))
        a.i('ds_read_b32 %s, %s offset:%d' % (vr(G_AL + 4), vr(G_ALA), AL - SM + par * 512 + 16))
        a.i('s_waitcnt lgkmcnt(0)')
        a.fence(9)
        for ai in range(4):
            for i in range(5):
                for r in range(4):
                    R = ACC_O(ai, i) + r
                    a.i('v_mul_f32 %s, %s, %s' % (vr(R), vr(R), vr(G_AL + i)))
        a.fence(4)
        a.i('s_branch L_pjoin_%s' % tag)
        a.reset()


def gen_reduce(a, name):
    a.raw('.globl %s' % name)
    a.raw('.p2align 8')
    a.raw('.type %s,@function' % name)
    a.label(name)
    a.i('s_cmp_ge_u32 s2, 280')
    a.i('s_cbranch_scc1 R_end')
    a.i('s_load_dwordx2 s[4:5], s[0:1], 40')
    a.i('s_load_dwordx2 s[6:7], s[0:1], 56')
    a.i('v_lshrrev_b32 v2, 6, v0')
    a.i('v_and_b32 v1, 63, v0')
    a.i('v_readfirstlane_b32 s8, v2')
    a.i('s_lshl_b32 s9, s2, 2')
    a.i('s_add_u32 s8, s8, s9')
    a.i('s_mov_b32 s9, %d' % ((1 << 32) // 70 + 1))
    a.i('s_mul_hi_u32 s10, s8, s9')
    a.i('s_mul_i32 s11, s10, 70')
    a.i('s_sub_u32 s11, s8, s11')
    a.i('s_mov_b32 s9, %d' % ((1 << 32) // 10 + 1))
    a.i('s_mul_hi_u32 s12, s11, s9')
    a.i('s_mul_i32 s13, s12, 10')
    a.i('s_sub_u32 s13, s11, s13')
    a.i('s_lshr_b32 s14, s13, 1')
    a.i('s_and_b32 s13, s13, 1')
    a.i('s_mul_i32 s15, s10, %d' % (16 * 71680))
    a.i('s_waitcnt lgkmcnt(0)')
    a.i('s_add_u32 s16, s6, s15')
    a.i('s_addc_u32 s17, s7, 0')
    a.i('s_mov_b32 s18, %d' % (16 * 71680))
    a.i('s_mov_b32 s19, 0x20000')
    a.i('s_mov_b32 s20, s4')
    a.i('s_mov_b32 s21, s5')
    a.i('s_mov_b32 s22, %d' % (1280 * 448 * 2))
    a.i('s_mov_b32 s23, 0x20000')
    a.i('s_lshl_b32 s24, s11, 10')
    a.i('v_lshlrev_b32 v2, 4, v1')
    for h in range(16):
        a.i('buffer_load_dwordx4 %s, v2, s[16:19], s24 offen' % vr(16 + 4 * h, 4))
        if h < 15:
            a.i('s_add_u32 s24, s24, 71680')
    a.i('s_mul_i32 s25, s10, 80')
    a.i('s_lshl_b32 s26, s14, 4')
    a.i('s_add_u32 s25, s25, s26')
    a.i('s_mul_i32 s25, s25, 896')
    a.i('s_lshl_b32 s26, s12, 7')
    a.i('s_add_u32 s25, s25, s26')
    a.i('s_lshl_b32 s26, s13, 6')
    a.i('s_add_u32 s25, s25, s26')
    a.i('v_and_b32 v3, 15, v1')
    a.i('v_mul_u32_u24 v3, 896, v3')
    a.i('v_lshrrev_b32 v4, 4, v1')
    a.i('v_lshlrev_b32 v4, 3, v4')
    a.i('v_add_u32 v3, v3, v4')
    a.i('s_mov_b32 s27, 0xffff0000')
    for h in range(16):
        a.i('s_waitcnt vmcnt(%d)' % (15 - h))
        for r in range(4):
            src = 16 + 4 * h + r
            if h == 0:
                a.i('v_lshlrev_b32 %s, 16, %s' % (vr(8 + 2 * r), vr(src)))
                a.i('v_and_b32 %s, s27, %s' % (vr(9 + 2 * r), vr(src)))
            else:
                a.i('v_lshlrev_b32 v5, 16, %s' % vr(src))
                a.i('v_and_b32 v6, s27, %s' % vr(src))
                a.i('v_add_f32 %s, %s, v5' % (vr(8 + 2 * r), vr(8 + 2 * r)))
                a.i('v_add_f32 %s, %s, v6' % (vr(9 + 2 * r), vr(9 + 2 * r)))
    for r in range(4):
        a.i('v_cvt_pk_bf16_f32 %s, %s, %s' % (vr(16 + r), vr(8 + 2 * r), vr(9 + 2 * r)))
    a.i('buffer_store_dwordx2 v[16:17], v3, s[20:23], s25 offen')
    a.i('buffer_store_dwordx2 v[18:19], v3, s[20:23], s25 offen offset:32')
    a.label('R_end')
    a.i('s_endpgm')
    a.reset()


HEADER = """; Kernarg layout for this problem (64 bytes, ptrs only, base s[0:1]):
;   offset   0: d_in[0] x  shape=(8, 160, 448) dtype=bfloat16
;   offset   8: d_in[1] k_cache  shape=(8, 8, 1024, 256) dtype=bfloat16
;   offset  16: d_in[2] v_cache  shape=(8, 8, 1024, 256) dtype=bfloat16
;   offset  24: d_in[3] wq  shape=(448, 4096) dtype=bfloat16
;   offset  32: d_in[4] wo  shape=(4096, 448) dtype=bfloat16
;   offset  40: d_out     shape=(8, 160, 448) dtype=bfloat16
;   offset  48: d_debug   256 bytes
;   offset  56: d_ws      268435456 bytes workspace
; Generated by gen/gen.py (own generator script).
; @launch kernel=standalone__gqa_block_cached__near_ridge_kernel grid=(256,1,1) block=(512,1,1) lds=%d
; @launch kernel=gqa_reduce_kernel grid=(280,1,1) block=(256,1,1) lds=0
.amdgcn_target "amdgcn-amd-amdhsa--gfx950"
.text
""" % LDS_BYTES


def kd(name, vgpr, sgpr):
    return """.amdhsa_kernel %s
  .amdhsa_next_free_vgpr %d
  .amdhsa_next_free_sgpr %d
  .amdhsa_accum_offset %d
  .amdhsa_group_segment_fixed_size 0
  .amdhsa_kernarg_size 64
  .amdhsa_user_sgpr_count 2
  .amdhsa_user_sgpr_kernarg_segment_ptr 1
  .amdhsa_system_sgpr_workgroup_id_x 1
.end_amdhsa_kernel
""" % (name, vgpr, sgpr, (vgpr + 3) // 4 * 4)


def main():
    out = sys.argv[1] if len(sys.argv) > 1 and not sys.argv[1].startswith('--') else 'standalone__gqa_block_cached__near_ridge.s'
    a = Asm()
    gen_main(a, 'standalone__gqa_block_cached__near_ridge_kernel')
    gen_reduce(a, 'gqa_reduce_kernel')
    txt = HEADER + a.text() + '.section .rodata,"a"\n.p2align 6\n' + \
        kd('standalone__gqa_block_cached__near_ridge_kernel', 256, 96) + '.p2align 6\n' + kd('gqa_reduce_kernel', 80, 32)
    open(out, 'w').write(txt)
    print('wrote', out, a.nins, 'instructions')


if __name__ == '__main__':
    main()
```

```python
import struct, sys, math
from asmlib import Asm, vr, sr

K1 = 1024
VR = lambda w: w * 16 * K1
KR0 = 64 * K1
PB = 128 * K1
SM = 152 * K1
MX = SM
FL = SM + 1024
AL = SM + 1536
LS = SM + 2560
OB = 112 * K1
WSLOT = [128 * K1, 64 * K1, 96 * K1]
XSLOT = [40 * K1, 0, 10 * K1]
QB = 0
LDS_BYTES = 160 * K1


def f32hex(x):
    return '0x%08x' % struct.unpack('<I', struct.pack('<f', x))[0]


CSCALE = math.log2(math.e) / 16.0
THR = 8.0

S_X, S_K, S_V, S_WQ, S_WO, S_OUT, S_DBG, S_WS = 4, 6, 8, 10, 12, 14, 16, 18
S_WAVE, S_W, S_B, S_HKV, S_H, S_GRP = 20, 21, 22, 23, 24, 25
S_T0, S_T1, S_T2, S_T3 = 26, 27, 28, 29
SRD_ST, SRD_WQ, SRD_X, SRD_WO, SRD_PO = 32, 36, 40, 44, 48
S_SOFF, S_STEPU, S_STEPL, S_RING, S_P, S_C = 52, 53, 54, 55, 56, 57
S_CG = 58
S_XL = [59, 60, 61]
S_XG = [62, 63, 64]
S_WCUR, S_WN1, S_WN2, S_XCUR, S_XN1, S_XN2 = 65, 66, 67, 68, 69, 70
S_WQOFF = 71

V_LANE = 1
G_TA = [2, 3, 4, 5]
G_UB = [6, 7]
V_PAT = [8, 9]
G_FLA = 10
G_ALA = 11
G_AL = 12
G_T = [17, 18, 19, 20, 21, 22, 23]
G_BF = lambda e, i: 72 + e * 20 + i * 4
G_AF = lambda e, a: 112 + e * 16 + a * 4
ACC_O = lambda a, i: 176 + (a * 5 + i) * 4


def ACC_W(a, i):
    k = a * 5 + i
    return 144 + k * 4 if k < 8 else 24 + (k - 8) * 4


Q_UA = [2, 3]
Q_PWA = 4
Q_MXW = 5
Q_MX4 = 6
Q_FLW = 7
Q_FLAG = 10
Q_TMP = [11, 12, 13, 14, 15, 16, 17, 18, 19, 20, 21, 22, 23]
Q_TMAX = 24
Q_L = 30
Q_MC = 35
Q_KF = lambda k: 40 + k * 4
Q_S = lambda par, i: 56 + par * 20 + i * 4
Q_Q = lambda i, s: 96 + (i * 8 + s) * 4

MFMA = 'v_mfma_f32_16x16x32_bf16'
STAMPS = '--stamps' in sys.argv
S_ST, S_STI = 72, 74
SRD_DB = 76


def stamp(a):
    if not STAMPS:
        return
    a.i('s_memtime s[72:73]')
    a.i('s_waitcnt lgkmcnt(0)')
    a.i('s_mov_b32 m0, s74')
    a.i('s_nop 0')
    a.i('v_writelane_b32 v0, s72, m0')
    a.i('s_add_u32 s74, s74, 1')


def barrier(a):
    if '--pre' in sys.argv:
        stamp(a)
    a.i('s_barrier')
    stamp(a)


def stamp_init(a):
    if not STAMPS:
        return
    a.i('s_mov_b32 s74, 0')
    a.i('s_lshl_b32 s75, s2, 3')
    a.i('s_add_u32 s75, s75, %s' % sr(S_WAVE))
    a.i('s_lshl_b32 s75, s75, 8')
    a.i('s_add_u32 s75, s75, %d' % (128 << 20))
    a.i('s_add_u32 s76, %s, s75' % sr(S_WS))
    a.i('s_addc_u32 s77, %s, 0' % sr(S_WS + 1))
    a.i('s_mov_b32 s78, 256')
    a.i('s_mov_b32 s79, 0x20000')
    a.i('v_mov_b32 v0, 0')
    a.i('s_memrealtime s[72:73]')
    a.i('s_waitcnt lgkmcnt(0)')
    a.i('v_writelane_b32 v0, s72, 62')
    stamp(a)


def stamp_flush(a):
    if not STAMPS:
        return
    a.i('s_waitcnt vmcnt(0)')
    stamp(a)
    a.i('s_memrealtime s[72:73]')
    a.i('s_waitcnt lgkmcnt(0)')
    a.i('v_writelane_b32 v0, s72, 63')
    a.i('v_lshlrev_b32 v2, 2, %s' % vr(V_LANE))
    a.i('buffer_store_dword v0, v2, s[76:79], 0 offen')


def mfma(a, d, A, B, c=None):
    a.i('%s %s, %s, %s, %s' % (MFMA, vr(d, 4), vr(A, 4), vr(B, 4), vr(d, 4) if c is None else c))


def build_srd(a, srd, ptr, off_sgpr, nrec):
    a.i('s_add_u32 %s, %s, %s' % (sr(srd), sr(ptr), sr(off_sgpr)))
    a.i('s_addc_u32 %s, %s, 0' % (sr(srd + 1), sr(ptr + 1)))
    a.i('s_mov_b32 %s, %s' % (sr(srd + 2), nrec))
    a.i('s_mov_b32 %s, 0x20000' % sr(srd + 3))


def pat_U(a, dst, tmp, R, hk_list=(0, 1), hk_sgpr=None, sub=True):
    t0, t1 = tmp
    a.i('s_mov_b32 %s, %d' % (sr(S_T3), R))
    for hk, d in zip(hk_list, dst):
        a.i('v_lshrrev_b32 %s, 4, %s' % (vr(t0), vr(V_LANE)))
        if hk:
            a.i('v_add_u32 %s, 4, %s' % (vr(t0), vr(t0)))
        a.i('v_and_b32 %s, 7, %s' % (vr(t1), vr(V_LANE)))
        a.i('v_xor_b32 %s, %s, %s' % (vr(t0), vr(t0), vr(t1)))
        a.i('v_lshlrev_b32 %s, 4, %s' % (vr(t0), vr(t0)))
        a.i('v_lshrrev_b32 %s, 3, %s' % (vr(t1), vr(V_LANE)))
        a.i('v_mul_lo_u32 %s, %s, %s' % (vr(t1), vr(t1), sr(S_T3)))
        a.i('v_add_u32 %s, %s, %s' % (vr(d), vr(t0), vr(t1)))
        if hk:
            a.i('v_add_u32 %s, %d, %s' % (vr(d), 8 * R - (1024 if sub else 0), vr(d)))


def pat_T(a, dst, tmp, R):
    t0, t1 = tmp
    a.i('s_mov_b32 %s, %d' % (sr(S_T3), R))
    for hk, d in zip((0, 1), dst):
        a.i('v_lshrrev_b32 %s, 3, %s' % (vr(t0), vr(V_LANE)))
        a.i('v_and_b32 %s, 2, %s' % (vr(t0), vr(t0)))
        if hk:
            a.i('v_or_b32 %s, 4, %s' % (vr(t0), vr(t0)))
        a.i('v_and_b32 %s, 7, %s' % (vr(t1), vr(V_LANE)))
        a.i('v_xor_b32 %s, %s, %s' % (vr(t0), vr(t0), vr(t1)))
        a.i('v_lshlrev_b32 %s, 4, %s' % (vr(t0), vr(t0)))
        a.i('v_lshrrev_b32 %s, 3, %s' % (vr(t1), vr(V_LANE)))
        a.i('v_mul_lo_u32 %s, %s, %s' % (vr(t1), vr(t1), sr(S_T3)))
        a.i('v_add_u32 %s, %s, %s' % (vr(d), vr(t0), vr(t1)))
        if hk:
            a.i('v_add_u32 %s, %d, %s' % (vr(d), 8 * R - 1024, vr(d)))


def addr_U_read(a, dst, tmp, base_sgpr=None, base_imm=0):
    t0, t1 = tmp
    a.i('v_and_b32 %s, 15, %s' % (vr(t0), vr(V_LANE)))
    a.i('v_lshrrev_b32 %s, 1, %s' % (vr(t1), vr(t0)))
    a.i('v_lshlrev_b32 %s, 7, %s' % (vr(t0), vr(t0)))
    a.i('v_lshrrev_b32 %s, 4, %s' % (vr(dst[0]), vr(V_LANE)))
    a.i('v_xor_b32 %s, %s, %s' % (vr(t1), vr(t1), vr(dst[0])))
    a.i('v_lshlrev_b32 %s, 4, %s' % (vr(t1), vr(t1)))
    a.i('v_add_u32 %s, %s, %s' % (vr(dst[0]), vr(t0), vr(t1)))
    if base_imm:
        a.i('v_add_u32 %s, %d, %s' % (vr(dst[0]), base_imm, vr(dst[0])))
    if base_sgpr is not None:
        a.i('v_add_u32 %s, %s, %s' % (vr(dst[0]), sr(base_sgpr), vr(dst[0])))
    a.i('v_xor_b32 %s, 64, %s' % (vr(dst[1]), vr(dst[0])))


def addr_T_read(a, dst, tmp, base_sgpr=None):
    t0, t1 = tmp
    a.i('v_lshrrev_b32 %s, 4, %s' % (vr(t0), vr(V_LANE)))
    a.i('v_lshlrev_b32 %s, 10, %s' % (vr(t0), vr(t0)))
    a.i('v_bfe_u32 %s, %s, 2, 2' % (vr(t1), vr(V_LANE)))
    a.i('v_lshlrev_b32 %s, 7, %s' % (vr(t1), vr(t1)))
    a.i('v_add_u32 %s, %s, %s' % (vr(t0), vr(t0), vr(t1)))
    a.i('v_and_b32 %s, 3, %s' % (vr(t1), vr(V_LANE)))
    a.i('v_lshlrev_b32 %s, 3, %s' % (vr(t1), vr(t1)))
    a.i('v_add_u32 %s, %s, %s' % (vr(t0), vr(t0), vr(t1)))
    a.i('v_bfe_u32 %s, %s, 3, 2' % (vr(t1), vr(V_LANE)))
    a.i('v_lshlrev_b32 %s, 5, %s' % (vr(t1), vr(t1)))
    a.i('v_add_u32 %s, %s, %s' % (vr(dst[0]), vr(t0), vr(t1)))
    if base_sgpr is not None:
        a.i('v_add_u32 %s, %s, %s' % (vr(dst[0]), sr(base_sgpr), vr(dst[0])))
    for k in (1, 2, 3):
        a.i('v_xor_b32 %s, %d, %s' % (vr(dst[k]), 32 * k, vr(dst[0])))


def addr_D_write(a, dst, tmp, chunk2_sgpr=None):
    t0, t1 = tmp
    a.i('v_and_b32 %s, 15, %s' % (vr(t0), vr(V_LANE)))
    a.i('v_lshrrev_b32 %s, 1, %s' % (vr(t1), vr(t0)))
    a.i('v_lshlrev_b32 %s, 7, %s' % (vr(t0), vr(t0)))
    a.i('v_lshrrev_b32 %s, 5, %s' % (vr(dst), vr(V_LANE)))
    a.i('v_xor_b32 %s, %s, %s' % (vr(t1), vr(t1), vr(dst)))
    a.i('v_lshlrev_b32 %s, 4, %s' % (vr(t1), vr(t1)))
    a.i('v_add_u32 %s, %s, %s' % (vr(t0), vr(t0), vr(t1)))
    a.i('v_bfe_u32 %s, %s, 4, 1' % (vr(t1), vr(V_LANE)))
    a.i('v_lshlrev_b32 %s, 3, %s' % (vr(t1), vr(t1)))
    a.i('v_add_u32 %s, %s, %s' % (vr(dst), vr(t0), vr(t1)))
    if chunk2_sgpr is not None:
        a.i('v_xor_b32 %s, %s, %s' % (vr(dst), sr(chunk2_sgpr), vr(dst)))


ROLE = ['q']
KVPOL = ' nt' if '--nt' in sys.argv else ''
INLOOP = [False]


def dma_unit(lds_off, last):
    if '--nodma' in sys.argv or ('--nodma' + ROLE[0]) in sys.argv:
        return ['s_nop 0'] * 4
    if '--kdirect' in sys.argv and ROLE[0] == 'q':
        d = 16
        return [
            's_nop 0',
            'buffer_load_dwordx4 %s, v29, %s, %s offen' % (vr(d, 4), sr(SRD_ST, 4), sr(S_SOFF)),
            'buffer_load_dwordx4 %s, v29, %s, %s offen offset:64' % (vr(d, 4), sr(SRD_ST, 4), sr(S_SOFF)),
            's_add_u32 %s, %s, %s' % (sr(S_SOFF), sr(S_SOFF), sr(S_STEPL if last else S_STEPU)),
        ]
    if '--dswrite' in sys.argv:
        d = 16 if ROLE[0] == 'q' else 12
        return [
            'ds_write_b128 v29, %s offset:%d' % (vr(d + 4, 4), lds_off),
            'buffer_load_dwordx4 %s, %s, %s, %s offen' % (vr(d, 4), vr(V_PAT[0]), sr(SRD_ST, 4), sr(S_SOFF)),
            'buffer_load_dwordx4 %s, %s, %s, %s offen offset:1024' % (vr(d, 4), vr(V_PAT[1]), sr(SRD_ST, 4), sr(S_SOFF)),
            'ds_write_b128 v29, %s offset:%d' % (vr(d + 4, 4), lds_off + 1024),
        ]
    if '--dmavgpr' in sys.argv:
        d = 16 if ROLE[0] == 'q' else 12
        return [
            's_add_u32 m0, %s, %d' % (sr(S_RING), lds_off),
            'buffer_load_dwordx4 %s, %s, %s, %s offen' % (vr(d, 4), vr(V_PAT[0]), sr(SRD_ST, 4), sr(S_SOFF)),
            'buffer_load_dwordx4 %s, %s, %s, %s offen offset:1024' % (vr(d, 4), vr(V_PAT[1]), sr(SRD_ST, 4), sr(S_SOFF)),
            's_add_u32 %s, %s, %s' % (sr(S_SOFF), sr(S_SOFF), sr(S_STEPL if last else S_STEPU)),
        ]
    return [
        's_add_u32 m0, %s, %d' % (sr(S_RING), lds_off),
        'buffer_load_dwordx4 %s, %s, %s offen%s lds' % (vr(V_PAT[0]), sr(SRD_ST, 4), sr(S_SOFF), KVPOL),
        'buffer_load_dwordx4 %s, %s, %s offen offset:1024%s lds' % (vr(V_PAT[1]), sr(SRD_ST, 4), sr(S_SOFF), KVPOL),
        's_add_u32 %s, %s, %s' % (sr(S_SOFF), sr(S_SOFF), sr(S_STEPL if last else S_STEPU)),
    ]


def switch_to_wo(a, tmp):
    for k in range(3):
        a.i('s_mov_b32 %s, %s' % (sr(SRD_ST + k), sr(SRD_WO + k)))
    a.i('s_lshl_b32 %s, %s, 7' % (sr(S_SOFF), sr(S_CG)))
    a.i('s_mov_b32 %s, %d' % (sr(S_STEPU), 16 * 896))
    a.i('s_mov_b32 %s, %d' % (sr(S_STEPL), 16 * 896))
    pat_T(a, V_PAT, tmp, 896)


def run_stream(a, mf, fill):
    def emit(lst):
        for x in lst:
            if callable(x):
                x()
            else:
                if INLOOP[0]:
                    if '--nopw' in sys.argv and (x.startswith('ds_write') or x.startswith('ds_max')):
                        continue
                    if '--notr' in sys.argv and x.startswith('ds_read_b64_tr'):
                        continue
                    if '--nokr' in sys.argv and x.startswith('ds_read_b128') and ROLE[0] == 'q' and ', v6 ' not in x:
                        continue
                    if '--nopr' in sys.argv and x.startswith('ds_read_b128') and ROLE[0] == 'p':
                        continue
                    if '--novalu' in sys.argv and x.startswith('v_') and ROLE[0] == 'q' and not x.startswith('v_cmp'):
                        continue
                a.i(x)
    emit(fill.get(-1, []))
    for m, f in enumerate(mf):
        f()
        emit(fill.get(m, []))
    for m in sorted(k for k in fill if k >= len(mf)):
        emit(fill[m])


def spread(fill, items, m0, m1):
    n = len(items)
    span = m1 - m0 + 1
    for k, it in enumerate(items):
        m = m0 + (k * span) // n
        fill.setdefault(m, []).append(it)


def a_reads(e_dst, imm):
    out = []
    for ai in range(4):
        for hh in range(2):
            out.append('ds_read_b64_tr_b16 %s, %s offset:%d' % (vr(G_AF(e_dst, ai) + 2 * hh, 2), vr(G_TA[ai]), imm + hh * 512))
    return out


def b_reads(e, imm_of_i):
    return ['ds_read_b128 %s, %s offset:%d' % (vr(G_BF(e, i), 4), vr(G_UB[e]), imm_of_i(i)) for i in range(5)]


def gemm_mfmas(a, acc):
    mf = []
    for e in range(2):
        for ai in range(4):
            for i in range(5):
                mf.append(lambda e=e, ai=ai, i=i: mfma(a, acc(ai, i), G_AF(e, ai), G_BF(e, i)))
    return mf


def gen_main(a, name):
    a.raw('.globl %s' % name)
    a.raw('.p2align 8')
    a.raw('.type %s,@function' % name)
    a.label(name)
    a.i('s_cmp_ge_u32 s2, 256')
    a.i('s_cbranch_scc1 L_end')
    a.i('s_load_dwordx16 s[4:19], s[0:1], 0')
    a.i('v_and_b32 %s, 63, v0' % vr(V_LANE))
    a.i('v_lshrrev_b32 v2, 6, v0')
    a.i('v_readfirstlane_b32 %s, v2' % sr(S_WAVE))
    a.i('s_and_b32 %s, s2, 7' % sr(S_HKV))
    a.i('s_lshr_b32 %s, s2, 5' % sr(S_B))
    a.i('s_bfe_u32 %s, s2, 0x10004' % sr(S_T0))
    a.i('s_bfe_u32 %s, s2, 0x10003' % sr(S_T1))
    a.i('s_lshl_b32 %s, %s, 1' % (sr(S_H), sr(S_HKV)))
    a.i('s_add_u32 %s, %s, %s' % (sr(S_H), sr(S_H), sr(S_T0)))
    a.i('s_lshl_b32 %s, %s, 1' % (sr(S_GRP), sr(S_B)))
    a.i('s_add_u32 %s, %s, %s' % (sr(S_GRP), sr(S_GRP), sr(S_T1)))
    a.i('s_and_b32 %s, %s, 3' % (sr(S_W), sr(S_WAVE)))
    a.i('s_mov_b32 %s, %s' % (sr(S_C), f32hex(CSCALE)))
    a.i('s_waitcnt lgkmcnt(0)')
    stamp_init(a)
    a.i('s_mul_i32 %s, %s, %d' % (sr(S_T0), sr(S_H), 229376))
    build_srd(a, SRD_WO, S_WO, S_T0, 229376)
    a.i('s_lshl_b32 %s, %s, 4' % (sr(S_T0), sr(S_GRP)))
    a.i('s_add_u32 %s, %s, %s' % (sr(S_T0), sr(S_T0), sr(S_H)))
    a.i('s_mul_i32 %s, %s, %d' % (sr(S_T0), sr(S_T0), 71680))
    build_srd(a, SRD_PO, S_WS, S_T0, 71680)
    a.i('s_lshl_b32 %s, %s, 3' % (sr(S_T0), sr(S_B)))
    a.i('s_add_u32 %s, %s, %s' % (sr(S_T0), sr(S_T0), sr(S_HKV)))
    if '--kvsame' in sys.argv:
        a.i('s_mov_b32 %s, %s' % (sr(S_T0), sr(S_HKV)))
    a.i('s_lshl_b32 %s, %s, 19' % (sr(S_T2), sr(S_T0)))
    a.i('s_cmp_ge_u32 %s, 4' % sr(S_WAVE))
    a.i('s_cbranch_scc1 L_pv')

    build_srd(a, SRD_ST, S_K, S_T2, 524288)
    a.i('s_lshl_b32 %s, %s, 9' % (sr(S_T0), sr(S_H)))
    a.i('s_sub_u32 %s, %d, %s' % (sr(S_T1), 448 * 8192, sr(S_T0)))
    build_srd(a, SRD_WQ, S_WQ, S_T0, sr(S_T1))
    a.i('s_mul_i32 %s, %s, %d' % (sr(S_T0), sr(S_GRP), 71680))
    build_srd(a, SRD_X, S_X, S_T0, 71680)
    a.i('s_mov_b32 %s, %s' % (sr(S_CG), sr(S_W)))
    a.i('s_cmp_eq_u32 %s, 3' % sr(S_W))
    a.i('s_cselect_b32 %s, 0, %s' % (sr(SRD_WO + 2), sr(SRD_WO + 2)))
    LWQ = [100, 101]
    LX = [102, 103]
    LT = (104, 105)
    pat_T(a, LWQ, LT, 8192)
    pat_U(a, LX, LT, 896, sub=False)
    a.i('s_and_b32 %s, %s, 1' % (sr(S_T0), sr(S_W)))
    a.i('s_cmp_eq_u32 %s, 1' % sr(S_T0))
    a.i('s_cselect_b64 vcc, -1, 0')
    a.i('v_cndmask_b32 %s, %s, %s, vcc' % (vr(LX[0]), vr(LX[0]), vr(LX[1])))
    for k in range(3):
        a.i('s_add_u32 %s, %s, %d' % (sr(S_T0), sr(S_W), 4 * k))
        if k == 2:
            a.i('s_add_u32 %s, %s, 4' % (sr(S_T1), sr(S_W)))
            a.i('s_cmp_ge_u32 %s, 10' % sr(S_T0))
            a.i('s_cselect_b32 %s, %s, %s' % (sr(S_T0), sr(S_T1), sr(S_T0)))
        a.i('s_lshl_b32 %s, %s, 10' % (sr(S_XL[k]), sr(S_T0)))
        a.i('s_lshr_b32 %s, %s, 1' % (sr(S_T0), sr(S_T0)))
        a.i('s_mul_i32 %s, %s, %d' % (sr(S_XG[k]), sr(S_T0), 16 * 896))
    a.i('s_lshl_b32 %s, %s, 7' % (sr(S_WQOFF), sr(S_W)))
    a.i('s_lshl_b32 %s, %s, 13' % (sr(S_T1), sr(S_W)))

    def issue_tile(c):
        sl = c % 3
        for k in range(3):
            a.i('s_add_u32 m0, %s, %d' % (sr(S_XL[k]), XSLOT[sl]))
            a.i('buffer_load_dwordx4 %s, %s, %s offen lds' % (vr(LX[0]), sr(SRD_X, 4), sr(S_XG[k])))
            a.i('s_add_u32 %s, %s, 128' % (sr(S_XG[k]), sr(S_XG[k])))
        for u in range(4):
            a.i('s_add_u32 m0, %s, %d' % (sr(S_T1), WSLOT[sl] + u * 2048))
            a.i('buffer_load_dwordx4 %s, %s, %s offen lds' % (vr(LWQ[0]), sr(SRD_WQ, 4), sr(S_WQOFF)))
            a.i('buffer_load_dwordx4 %s, %s, %s offen offset:1024 lds' % (vr(LWQ[1]), sr(SRD_WQ, 4), sr(S_WQOFF)))
            a.i('s_add_u32 %s, %s, %d' % (sr(S_WQOFF), sr(S_WQOFF), 16 * 8192))

    for c in range(3):
        issue_tile(c)
    T2 = (Q_TMP[0], Q_TMP[1])
    pat_U(a, V_PAT, T2, 512)
    a.i('s_lshl_b32 %s, %s, 13' % (sr(S_SOFF), sr(S_W)))
    a.i('s_mov_b32 %s, 128' % sr(S_STEPU))
    a.i('s_mov_b32 %s, %d' % (sr(S_STEPL), 32768 - 384))
    a.i('s_lshl_b32 %s, %s, 14' % (sr(S_RING), sr(S_W)))
    a.i('s_add_u32 %s, %s, %d' % (sr(S_RING), sr(S_RING), KR0))
    a.i('s_lshl_b32 %s, %s, 5' % (sr(S_T0), sr(S_W)))
    addr_D_write(a, Q_PWA, T2, S_T0)
    a.i('v_add_u32 %s, %d, %s' % (vr(Q_PWA), PB, vr(Q_PWA)))
    a.i('v_and_b32 %s, 15, %s' % (vr(T2[0]), vr(V_LANE)))
    a.i('v_lshlrev_b32 %s, 5, %s' % (vr(T2[0]), vr(T2[0])))
    a.i('v_add_u32 %s, %d, %s' % (vr(Q_MX4), SM, vr(T2[0])))
    a.i('v_bfe_u32 %s, %s, 4, 1' % (vr(T2[0]), vr(V_LANE)))
    a.i('v_lshlrev_b32 %s, 3, %s' % (vr(T2[0]), vr(T2[0])))
    a.i('v_lshrrev_b32 %s, 5, %s' % (vr(T2[1]), vr(V_LANE)))
    a.i('v_lshlrev_b32 %s, 2, %s' % (vr(T2[1]), vr(T2[1])))
    a.i('v_add3_u32 %s, %s, %s, %s' % (vr(Q_MXW), vr(Q_MX4), vr(T2[0]), vr(T2[1])))
    a.i('v_lshlrev_b32 %s, 2, %s' % (vr(T2[0]), vr(V_LANE)))
    a.i('v_add_u32 %s, %d, %s' % (vr(Q_FLW), FL, vr(T2[0])))
    for i in range(5):
        a.i('v_mov_b32 %s, 0' % vr(Q_L + i))
        a.i('v_mov_b32 %s, %s' % (vr(Q_MC + i), f32hex(-1e30)))
    addr_U_read(a, Q_UA, T2)
    for c in range(7):
        n = 22 if c == 0 else (11 if c < 6 else 0)
        a.i('s_waitcnt vmcnt(%d)' % n)
        barrier(a)
        if 1 <= c <= 4:
            issue_tile(c + 2)
    if '--dswrite' in sys.argv:
        a.i('v_lshlrev_b32 v29, 4, v1')
        a.i('v_add_u32 v29, %s, v29' % sr(S_RING))
    if '--kdirect' in sys.argv:
        a.i('v_and_b32 v29, 15, v1')
        a.i('v_lshlrev_b32 v29, 9, v29')
        a.i('v_lshrrev_b32 v16, 4, v1')
        a.i('v_lshlrev_b32 v16, 4, v16')
        a.i('v_add_u32 v29, v29, v16')
    for t in range(2):
        for u in range(4):
            for x in dma_unit(t * 8192 + u * 2048, u == 3):
                a.i(x)
    barrier(a)
    for i in range(5):
        for s in range(8):
            a.i('ds_read_b128 %s, %s offset:%d' % (vr(Q_Q(i, s), 4), vr(Q_UA[s & 1]), QB + (i * 4 + (s >> 1)) * 2048))
            if (i * 8 + s) % 12 == 11:
                a.i('s_waitcnt lgkmcnt(4)')
    a.i('s_waitcnt lgkmcnt(0)')
    for e in range(2):
        a.i('v_add_u32 %s, %s, %s' % (vr(Q_UA[e]), sr(S_RING), vr(Q_UA[e])))
    a.i('s_waitcnt vmcnt(12)')

    def kread(par, s, buf):
        if '--kdirect' in sys.argv:
            return 's_nop 0'
        return 'ds_read_b128 %s, %s offset:%d' % (vr(Q_KF(buf), 4), vr(Q_UA[s & 1]), par * 8192 + (s >> 1) * 2048)

    a.i(kread(0, 0, 0))
    a.i(kread(0, 1, 1))
    a.i('s_waitcnt lgkmcnt(0)')
    a.i('s_mov_b32 %s, 0' % sr(S_P))

    rare_blocks = []

    def qk_phase(par, do_mfma, do_soft, tag):
        pp = 1 - par
        fill = {}
        mf = []
        if do_mfma:
            order = [(s, i) for s in range(6) for i in range(5)] + [(s, i) for i in range(5) for s in (6, 7)]
            for (s, i) in order:
                mf.append(lambda s=s, i=i: mfma(a, Q_S(par, i), Q_KF(s % 4), Q_Q(i, s), '0' if s == 0 else None))
            reads = [(0, 2, 0, 2), (2, 3, 0, 3), (5, 4, 0, 0), (10, 5, 0, 1), (15, 6, 0, 2), (20, 7, 0, 3),
                     (25, 0, 1, 0), (30, 1, 1, 1)]
            refills = [(1, 0), (16, 1), (26, 2), (32, 3)]
            ev = []
            for (m, s, dt, buf) in reads:
                ev.append((m, 0, 'need', dt, s >> 1, s, buf))
            for (m, u) in refills:
                ev.append((m, 1, 'dma', u, 0))
                ev.append((m + 1, 1, 'dma', u, 1))
            ev.sort(key=lambda e: (e[0], e[1]))
            issued = []
            need_n = {}
            for ph in range(4):
                for e in ev:
                    if e[2] == 'dma':
                        issued.append((ph + 2, e[3]))
                    elif ph == 3:
                        key = (ph + e[3], e[4])
                        last = max(k for k, x in enumerate(issued) if x == key)
                        need_n[e[5]] = len(issued) - 1 - last
            for e in ev:
                m = e[0]
                if e[2] == 'need':
                    _, _, _, dt, u, s, buf = e
                    if s % 2 == 0:
                        fill.setdefault(m, []).append('s_waitcnt vmcnt(%d)' % need_n[s])
                    fill.setdefault(m, []).append(kread(pp if dt else par, s, buf))
                else:
                    d = dma_unit(par * 8192 + e[3] * 2048, e[3] == 3)
                    fill.setdefault(m, []).extend(d[0:2] if e[4] == 0 else d[2:4])
        soft = []
        if do_soft:
            pre = ['ds_read_b128 %s, %s offset:%d' % (vr(Q_TMAX, 4), vr(Q_MX4), pp * 512),
                   'ds_read_b32 %s, %s offset:%d' % (vr(Q_TMAX + 4), vr(Q_MX4), pp * 512 + 16),
                   'v_mov_b32 %s, 0' % vr(Q_FLAG)]
            fill.setdefault(-1, []).extend(pre)
            chk = []
            for i in range(5):
                chk.append('v_fma_f32 %s, %s, %s, -%s' % (vr(Q_TMP[i]), vr(Q_TMAX + i), sr(S_C), vr(Q_MC + i)))
            chk.append('v_max3_f32 %s, %s, %s, %s' % (vr(Q_TMP[0]), vr(Q_TMP[0]), vr(Q_TMP[1]), vr(Q_TMP[2])))
            chk.append('v_max3_f32 %s, %s, %s, %s' % (vr(Q_TMP[0]), vr(Q_TMP[0]), vr(Q_TMP[3]), vr(Q_TMP[4])))
            chk.append('v_cmp_lt_f32 vcc, %s, %s' % (f32hex(THR), vr(Q_TMP[0])))

            def br():
                a.i('s_cbranch_vccnz L_q%s_%s' % ('join' if '--norare' in sys.argv else 'rare', tag))
                a.label('L_qjoin_%s' % tag)
            chk.append(br)
            chk.append('ds_write_b32 %s, %s offset:%d' % (vr(Q_FLW), vr(Q_FLAG), pp * 256))
            rare_blocks.append((tag, pp))
            for i in range(5):
                S = Q_S(pp, i)
                for r in range(4):
                    soft.append('v_fma_f32 %s, %s, %s, -%s' % (vr(S + r), vr(S + r), sr(S_C), vr(Q_MC + i)))
                for r in range(4):
                    soft.append('v_exp_f32 %s, %s' % (vr(S + r), vr(S + r)))
                t0 = Q_TMP[5 + (i & 1) * 2]
                soft.append('v_add_f32 %s, %s, %s' % (vr(t0), vr(S), vr(S + 1)))
                soft.append('v_add_f32 %s, %s, %s' % (vr(t0 + 1), vr(S + 2), vr(S + 3)))
                soft.append('v_cvt_pk_bf16_f32 %s, %s, %s' % (vr(S), vr(S), vr(S + 1)))
                soft.append('v_cvt_pk_bf16_f32 %s, %s, %s' % (vr(S + 1), vr(S + 2), vr(S + 3)))
                soft.append('v_add_f32 %s, %s, %s' % (vr(t0), vr(t0), vr(t0 + 1)))
                soft.append('ds_write_b64 %s, %s offset:%d' % (vr(Q_PWA), vr(S, 2), pp * 10240 + i * 2048))
                soft.append('v_add_f32 %s, %s, %s' % (vr(Q_L + i), vr(Q_L + i), vr(t0)))
            if do_mfma:
                spread(fill, chk, 2, 4)
                spread(fill, soft, 5, 34)
            else:
                fill.setdefault(-1, []).extend(chk + soft)
        if do_mfma:
            M = [Q_TMP[9], Q_TMP[10], Q_TMP[11], Q_TMP[12], Q_TMP[4]]
            for i in range(5):
                S = Q_S(par, i)
                m = 35 + i if i < 4 else 40
                m = min(34 + 2 * i, 40)
                fill.setdefault(m, []).extend([
                    'v_max3_f32 %s, %s, %s, %s' % (vr(M[i]), vr(S), vr(S + 1), vr(S + 2)),
                    'v_max_f32 %s, %s, %s' % (vr(M[i]), vr(M[i]), vr(S + 3))])
            fill.setdefault(39, []).extend([
                'v_permlane32_swap_b32 %s, %s' % (vr(M[0]), vr(M[1])),
                'v_max_f32 %s, %s, %s' % (vr(M[0]), vr(M[0]), vr(M[1]))])
            fill.setdefault(41, []).extend([
                'ds_max_f32 %s, %s offset:%d' % (vr(Q_MX4), vr(M[4]), par * 512 + 16),
                'v_permlane32_swap_b32 %s, %s' % (vr(M[2]), vr(M[3])),
                'v_max_f32 %s, %s, %s' % (vr(M[2]), vr(M[2]), vr(M[3])),
                'v_permlane16_swap_b32 %s, %s' % (vr(M[0]), vr(M[2])),
                'v_max_f32 %s, %s, %s' % (vr(M[0]), vr(M[0]), vr(M[2])),
                'ds_max_f32 %s, %s offset:%d' % (vr(Q_MXW), vr(M[0]), par * 512)])
        run_stream(a, mf, fill)
        a.i('s_waitcnt lgkmcnt(0)')
        barrier(a)

    qk_phase(0, True, False, 'p0')
    a.i('s_mov_b32 %s, 1' % sr(S_P))
    a.label('L_qloop')
    INLOOP[0] = True
    qk_phase(1, True, True, 'odd')
    a.i('s_cmp_eq_u32 %s, 15' % sr(S_P))
    a.i('s_cbranch_scc1 L_qdone')
    a.i('s_cmp_eq_u32 %s, 13' % sr(S_P))
    a.i('s_cbranch_scc0 L_qnosw')
    switch_to_wo(a, (Q_TMP[0], Q_TMP[1]))
    a.label('L_qnosw')
    qk_phase(0, True, True, 'even')
    a.i('s_add_u32 %s, %s, 2' % (sr(S_P), sr(S_P)))
    a.i('s_branch L_qloop')
    a.reset()
    a.label('L_qdone')
    INLOOP[0] = False
    qk_phase(0, False, True, 'p16')
    L = [Q_L + i for i in range(5)]
    t = Q_TMP[0]
    a.i('v_permlane32_swap_b32 %s, %s' % (vr(L[0]), vr(L[1])))
    a.i('v_add_f32 %s, %s, %s' % (vr(L[0]), vr(L[0]), vr(L[1])))
    a.i('v_permlane32_swap_b32 %s, %s' % (vr(L[2]), vr(L[3])))
    a.i('v_add_f32 %s, %s, %s' % (vr(L[2]), vr(L[2]), vr(L[3])))
    a.i('v_permlane16_swap_b32 %s, %s' % (vr(L[0]), vr(L[2])))
    a.i('v_add_f32 %s, %s, %s' % (vr(L[0]), vr(L[0]), vr(L[2])))
    a.i('v_mov_b32 %s, %s' % (vr(t), vr(L[4])))
    a.i('v_permlane32_swap_b32 %s, %s' % (vr(L[4]), vr(t)))
    a.i('v_add_f32 %s, %s, %s' % (vr(L[4]), vr(L[4]), vr(t)))
    a.i('v_mov_b32 %s, %s' % (vr(t), vr(L[4])))
    a.i('v_permlane16_swap_b32 %s, %s' % (vr(L[4]), vr(t)))
    a.i('v_add_f32 %s, %s, %s' % (vr(L[4]), vr(L[4]), vr(t)))
    a.i('s_lshl_b32 %s, %s, 9' % (sr(S_T0), sr(S_W)))
    a.i('v_add_u32 %s, %s, %s' % (vr(Q_MXW), sr(S_T0), vr(Q_MXW)))
    a.i('v_add_u32 %s, %s, %s' % (vr(Q_MX4), sr(S_T0), vr(Q_MX4)))
    a.i('ds_write_b32 %s, %s offset:%d' % (vr(Q_MXW), vr(L[0]), LS - SM))
    a.i('ds_write_b32 %s, %s offset:%d' % (vr(Q_MX4), vr(L[4]), LS - SM + 16))
    a.i('s_waitcnt lgkmcnt(0)')
    addr_T_read(a, G_TA, (G_T[0], G_T[1]), S_RING)
    addr_U_read(a, G_UB, (G_T[0], G_T[1]), base_imm=OB)
    for k in range(20):
        for r in range(4):
            a.i('v_mov_b32 %s, 0' % vr(ACC_W(k // 5, k % 5) + r))
    a.i('s_waitcnt vmcnt(0)')
    for x in a_reads(0, 0):
        a.i(x)
    a.i('s_waitcnt lgkmcnt(0)')
    barrier(a)
    barrier(a)
    a.i('s_cmp_eq_u32 %s, 3' % sr(S_W))
    a.i('s_cbranch_scc1 L_fin')
    a.i('s_branch L_oproj')
    a.reset()
    for tag, pp in rare_blocks:
        a.label('L_qrare_%s' % tag)
        a.fence(4)
        for i in range(5):
            tm = Q_TMAX + i
            a.i('v_mul_f32 %s, %s, %s' % (vr(tm), sr(S_C), vr(tm)))
            a.i('v_max_f32 %s, %s, %s' % (vr(Q_TMP[i]), vr(tm), vr(Q_MC + i)))
            a.i('v_sub_f32 %s, %s, %s' % (vr(tm), vr(Q_MC + i), vr(Q_TMP[i])))
            a.i('v_exp_f32 %s, %s' % (vr(tm), vr(tm)))
            a.i('v_mov_b32 %s, %s' % (vr(Q_MC + i), vr(Q_TMP[i])))
            a.i('v_mul_f32 %s, %s, %s' % (vr(Q_L + i), vr(Q_L + i), vr(tm)))
        a.i('ds_write_b128 %s, %s offset:%d' % (vr(Q_MX4), vr(Q_TMAX, 4), AL - SM + pp * 512))
        a.i('ds_write_b32 %s, %s offset:%d' % (vr(Q_MX4), vr(Q_TMAX + 4), AL - SM + pp * 512 + 16))
        a.i('v_mov_b32 %s, 1.0' % vr(Q_FLAG))
        a.i('s_waitcnt lgkmcnt(0)')
        a.fence(4)
        a.i('s_branch L_qjoin_%s' % tag)
        a.reset()

    a.label('L_pv')
    ROLE[0] = 'p'
    build_srd(a, SRD_ST, S_V, S_T2, 524288)
    a.i('s_add_u32 %s, %s, 3' % (sr(S_CG), sr(S_W)))
    GT = (G_T[0], G_T[1])
    addr_T_read(a, G_TA, GT)
    a.i('v_mov_b32 %s, %s' % (vr(G_T[2]), vr(G_TA[0])))
    addr_U_read(a, G_UB, GT)
    a.i('v_mov_b32 %s, %s' % (vr(G_T[3]), vr(G_UB[0])))
    for k in range(80):
        a.i('v_mov_b32 %s, 0' % vr(176 + k))
    a.i('s_lshl_b32 %s, %s, 13' % (sr(S_T0), sr(S_W)))
    a.i('s_add_u32 %s, %s, %d' % (sr(S_WCUR), sr(S_T0), WSLOT[0]))
    a.i('s_add_u32 %s, %s, %d' % (sr(S_WN1), sr(S_T0), WSLOT[1]))
    a.i('s_add_u32 %s, %s, %d' % (sr(S_WN2), sr(S_T0), WSLOT[2]))
    a.i('s_mov_b32 %s, %d' % (sr(S_XCUR), XSLOT[0]))
    a.i('s_mov_b32 %s, %d' % (sr(S_XN1), XSLOT[1]))
    a.i('s_mov_b32 %s, %d' % (sr(S_XN2), XSLOT[2]))
    a.i('s_mov_b32 %s, 0' % sr(S_P))
    a.label('L_qproj')
    a.i('v_add_u32 %s, %s, %s' % (vr(G_TA[0]), sr(S_WCUR), vr(G_T[2])))
    a.i('v_add_u32 %s, %s, %s' % (vr(G_UB[0]), sr(S_XCUR), vr(G_T[3])))
    for k in (1, 2, 3):
        a.i('v_xor_b32 %s, %d, %s' % (vr(G_TA[k]), 32 * k, vr(G_TA[0])))
    a.i('v_xor_b32 %s, 64, %s' % (vr(G_UB[1]), vr(G_UB[0])))
    a.i('s_mov_b32 %s, %s' % (sr(S_T0), sr(S_WCUR)))
    a.i('s_mov_b32 %s, %s' % (sr(S_WCUR), sr(S_WN1)))
    a.i('s_mov_b32 %s, %s' % (sr(S_WN1), sr(S_WN2)))
    a.i('s_mov_b32 %s, %s' % (sr(S_WN2), sr(S_T0)))
    a.i('s_mov_b32 %s, %s' % (sr(S_T0), sr(S_XCUR)))
    a.i('s_mov_b32 %s, %s' % (sr(S_XCUR), sr(S_XN1)))
    a.i('s_mov_b32 %s, %s' % (sr(S_XN1), sr(S_XN2)))
    a.i('s_mov_b32 %s, %s' % (sr(S_XN2), sr(S_T0)))
    barrier(a)
    fill = {}
    A0 = a_reads(0, 0)
    B0 = b_reads(0, lambda i: i * 2048)
    fill[-1] = A0[0:2] + B0 + A0[2:]
    spread(fill, b_reads(1, lambda i: i * 2048) + a_reads(1, 4096), 2, 16)
    run_stream(a, gemm_mfmas(a, ACC_O), fill)
    a.i('s_add_u32 %s, %s, 1' % (sr(S_P), sr(S_P)))
    a.i('s_cmp_lt_u32 %s, 7' % sr(S_P))
    a.i('s_cbranch_scc1 L_qproj')

    def write_D(acc, base_imm_of_i, scale=None):
        for ai in range(4):
            d = G_T[5]
            if ai == 0:
                a.i('v_mov_b32 %s, %s' % (vr(d), vr(G_T[4])))
            else:
                a.i('v_xor_b32 %s, %d, %s' % (vr(d), 32 * ai, vr(G_T[4])))
            for i in range(5):
                R = acc(ai, i)
                if scale is not None:
                    for r in range(4):
                        a.i('v_mul_f32 %s, %s, %s' % (vr(R + r), vr(R + r), vr(scale + i)))
                a.i('v_cvt_pk_bf16_f32 %s, %s, %s' % (vr(R), vr(R), vr(R + 1)))
                a.i('v_cvt_pk_bf16_f32 %s, %s, %s' % (vr(R + 1), vr(R + 2), vr(R + 3)))
                a.i('ds_write_b64 %s, %s offset:%d' % (vr(d), vr(R, 2), base_imm_of_i(i)))
            a.i('s_waitcnt lgkmcnt(0)')

    addr_D_write(a, G_T[4], GT)
    a.i('s_lshl_b32 %s, %s, 11' % (sr(S_T0), sr(S_W)))
    a.i('v_add_u32 %s, %s, %s' % (vr(G_T[4]), sr(S_T0), vr(G_T[4])))
    write_D(ACC_O, lambda i: QB + i * 8192)
    a.i('s_cmp_eq_u32 %s, 3' % sr(S_W))
    a.i('s_cbranch_scc0 L_noinit')
    a.i('v_lshlrev_b32 %s, 4, %s' % (vr(GT[0]), vr(V_LANE)))
    a.i('v_add_u32 %s, %d, %s' % (vr(GT[0]), MX, vr(GT[0])))
    for r in range(4):
        a.i('v_mov_b32 %s, %s' % (vr(G_AL + r), f32hex(-3.0e38)))
    a.i('ds_write_b128 %s, %s' % (vr(GT[0]), vr(G_AL, 4)))
    a.i('s_waitcnt lgkmcnt(0)')
    a.label('L_noinit')
    barrier(a)
    pat_T(a, V_PAT, GT, 512)
    a.i('s_lshl_b32 %s, %s, 7' % (sr(S_SOFF), sr(S_W)))
    a.i('s_mov_b32 %s, 8192' % sr(S_STEPU))
    a.i('s_mov_b32 %s, 8192' % sr(S_STEPL))
    a.i('s_lshl_b32 %s, %s, 14' % (sr(S_RING), sr(S_W)))
    a.i('v_add_u32 %s, %s, %s' % (vr(G_TA[0]), sr(S_RING), vr(G_T[2])))
    for k in (1, 2, 3):
        a.i('v_xor_b32 %s, %d, %s' % (vr(G_TA[k]), 32 * k, vr(G_TA[0])))
    a.i('v_add_u32 %s, %d, %s' % (vr(G_UB[0]), PB, vr(G_T[3])))
    a.i('v_xor_b32 %s, 64, %s' % (vr(G_UB[1]), vr(G_UB[0])))
    a.i('v_lshlrev_b32 %s, 2, %s' % (vr(G_FLA), vr(V_LANE)))
    a.i('v_add_u32 %s, %d, %s' % (vr(G_FLA), FL, vr(G_FLA)))
    a.i('v_and_b32 %s, 15, %s' % (vr(G_ALA), vr(V_LANE)))
    a.i('v_lshlrev_b32 %s, 5, %s' % (vr(G_ALA), vr(G_ALA)))
    a.i('v_add_u32 %s, %d, %s' % (vr(G_ALA), SM, vr(G_ALA)))
    for k in range(80):
        a.i('v_mov_b32 %s, 0' % vr(176 + k))
    for k in range(20):
        for r in range(4):
            a.i('v_mov_b32 %s, 0' % vr(ACC_W(k // 5, k % 5) + r))
    if '--dswrite' in sys.argv:
        a.i('v_lshlrev_b32 v29, 4, v1')
        a.i('v_add_u32 v29, %s, v29' % sr(S_RING))
    barrier(a)
    for t in range(2):
        for u in range(4):
            for x in dma_unit(t * 8192 + u * 2048, u == 3):
                a.i(x)
    a.i('s_waitcnt vmcnt(12)')
    for x in a_reads(0, 0):
        a.i(x)
    a.i('s_waitcnt lgkmcnt(0)')
    barrier(a)
    a.i('s_mov_b32 %s, 2' % sr(S_P))

    pv_rare = []

    def gemm_tile(par, acc, bimm, n_a1, n_a0, refill, flag_tag=None, bar=True, next_a=True):
        fill = {}
        pre = []
        if flag_tag is not None:
            pre.append('ds_read_b32 %s, %s offset:%d' % (vr(G_T[6]), vr(G_FLA), par * 256))
        pre += b_reads(0, lambda i: bimm(i))
        pre.append('s_waitcnt vmcnt(%d)' % n_a1)
        pre += a_reads(1, par * 8192 + 4096)
        if flag_tag is not None:
            pre.append('v_cmp_ne_u32 vcc, 0, %s' % vr(G_T[6]))

            def br():
                a.i('s_cbranch_vccnz L_p%s_%s' % ('join' if '--norare' in sys.argv else 'rare', flag_tag))
                a.label('L_pjoin_%s' % flag_tag)
            pre.append(br)
            pv_rare.append((flag_tag, par))
        fill[-1] = pre
        spread(fill, b_reads(1, lambda i: bimm(i)), 5, 9)
        if refill:
            d = dma_unit(par * 8192, False) + dma_unit(par * 8192 + 2048, False)
            spread(fill, d, 10, 17)
            d = dma_unit(par * 8192 + 4096, False) + dma_unit(par * 8192 + 6144, True)
            fill.setdefault(20, []).append('s_waitcnt lgkmcnt(0)')
            spread(fill, d, 20, 27)
        if next_a:
            spread(fill, ['s_waitcnt vmcnt(%d)' % n_a0] + a_reads(0, (1 - par) * 8192), 28, 36)
        run_stream(a, gemm_mfmas(a, acc), fill)
        a.i('s_waitcnt lgkmcnt(0)')
        if bar:
            barrier(a)

    a.label('L_ploop')
    INLOOP[0] = True
    gemm_tile(0, ACC_O, lambda i: i * 2048, 8, 12, True, 'even')
    gemm_tile(1, ACC_O, lambda i: 10240 + i * 2048, 8, 12, True, 'odd')
    a.i('s_cmp_eq_u32 %s, 14' % sr(S_P))
    a.i('s_cbranch_scc0 L_pnosw')
    switch_to_wo(a, GT)
    a.label('L_pnosw')
    a.i('s_add_u32 %s, %s, 2' % (sr(S_P), sr(S_P)))
    a.i('s_cmp_lt_u32 %s, 18' % sr(S_P))
    a.i('s_cbranch_scc1 L_ploop')
    INLOOP[0] = False
    LT = G_BF(0, 0)
    for w in range(4):
        a.i('ds_read_b128 %s, %s offset:%d' % (vr(LT + w * 8, 4), vr(G_ALA), LS - SM + w * 512))
        a.i('ds_read_b32 %s, %s offset:%d' % (vr(LT + w * 8 + 4), vr(G_ALA), LS - SM + w * 512 + 16))
    for i in range(5):
        a.i('v_add_f32 %s, %s, %s' % (vr(G_AL + i), vr(LT + i), vr(LT + 8 + i)))
        a.i('v_add_f32 %s, %s, %s' % (vr(LT + 16 + i), vr(LT + 16 + i), vr(LT + 24 + i)))
        a.i('v_add_f32 %s, %s, %s' % (vr(G_AL + i), vr(G_AL + i), vr(LT + 16 + i)))
        a.i('v_rcp_f32 %s, %s' % (vr(G_AL + i), vr(G_AL + i)))
    a.i('v_add_u32 %s, %d, %s' % (vr(G_T[4]), OB, vr(G_T[4])))
    write_D(ACC_O, lambda i: i * 8192, scale=G_AL)
    a.i('v_add_u32 %s, %d, %s' % (vr(G_UB[0]), OB, vr(G_T[3])))
    a.i('v_xor_b32 %s, 64, %s' % (vr(G_UB[1]), vr(G_UB[0])))
    barrier(a)
    a.label('L_oproj')
    a.fence(4)
    for tau in range(4):
        gemm_tile(tau & 1, ACC_W, lambda i, tau=tau: (i * 4 + tau) * 2048,
                  n_a1=[8, 8, 8, 0][tau], n_a0=[12, 12, 4, 0][tau], refill=tau < 2, bar=False, next_a=tau < 3)
    stamp(a)
    a.i('v_lshlrev_b32 %s, 4, %s' % (vr(GT[0]), vr(V_LANE)))
    a.i('s_mul_i32 %s, %s, 10240' % (sr(S_T0), sr(S_CG)))
    k = 0
    for i in range(5):
        for ap in range(2):
            R0, R1 = ACC_W(2 * ap, i), ACC_W(2 * ap + 1, i)
            a.i('v_cvt_pk_bf16_f32 %s, %s, %s' % (vr(R0), vr(R0), vr(R0 + 1)))
            a.i('v_cvt_pk_bf16_f32 %s, %s, %s' % (vr(R0 + 1), vr(R0 + 2), vr(R0 + 3)))
            a.i('v_cvt_pk_bf16_f32 %s, %s, %s' % (vr(R0 + 2), vr(R1), vr(R1 + 1)))
            a.i('v_cvt_pk_bf16_f32 %s, %s, %s' % (vr(R0 + 3), vr(R1 + 2), vr(R1 + 3)))
            a.i('buffer_store_dwordx4 %s, %s, %s, %s offen offset:%d' % (vr(R0, 4), vr(GT[0]), sr(SRD_PO, 4), sr(S_T0), (k % 4) * 1024))
            k += 1
            if k % 4 == 0:
                a.i('s_add_u32 %s, %s, 4096' % (sr(S_T0), sr(S_T0)))
    a.label('L_fin')
    stamp_flush(a)
    a.label('L_end')
    a.i('s_endpgm')
    a.reset()
    for tag, par in pv_rare:
        a.label('L_prare_%s' % tag)
        a.i('ds_read_b128 %s, %s offset:%d' % (vr(G_AL, 4), vr(G_ALA), AL - SM + par * 512))
        a.i('ds_read_b32 %s, %s offset:%d' % (vr(G_AL + 4), vr(G_ALA), AL - SM + par * 512 + 16))
        a.i('s_waitcnt lgkmcnt(0)')
        a.fence(9)
        for ai in range(4):
            for i in range(5):
                for r in range(4):
                    R = ACC_O(ai, i) + r
                    a.i('v_mul_f32 %s, %s, %s' % (vr(R), vr(R), vr(G_AL + i)))
        a.fence(4)
        a.i('s_branch L_pjoin_%s' % tag)
        a.reset()


def gen_reduce(a, name):
    a.raw('.globl %s' % name)
    a.raw('.p2align 8')
    a.raw('.type %s,@function' % name)
    a.label(name)
    a.i('s_cmp_ge_u32 s2, 280')
    a.i('s_cbranch_scc1 R_end')
    a.i('s_load_dwordx2 s[4:5], s[0:1], 40')
    a.i('s_load_dwordx2 s[6:7], s[0:1], 56')
    a.i('v_lshrrev_b32 v2, 6, v0')
    a.i('v_and_b32 v1, 63, v0')
    a.i('v_readfirstlane_b32 s8, v2')
    a.i('s_lshl_b32 s9, s2, 2')
    a.i('s_add_u32 s8, s8, s9')
    a.i('s_mov_b32 s9, %d' % ((1 << 32) // 70 + 1))
    a.i('s_mul_hi_u32 s10, s8, s9')
    a.i('s_mul_i32 s11, s10, 70')
    a.i('s_sub_u32 s11, s8, s11')
    a.i('s_mov_b32 s9, %d' % ((1 << 32) // 10 + 1))
    a.i('s_mul_hi_u32 s12, s11, s9')
    a.i('s_mul_i32 s13, s12, 10')
    a.i('s_sub_u32 s13, s11, s13')
    a.i('s_lshr_b32 s14, s13, 1')
    a.i('s_and_b32 s13, s13, 1')
    a.i('s_mul_i32 s15, s10, %d' % (16 * 71680))
    a.i('s_waitcnt lgkmcnt(0)')
    a.i('s_add_u32 s16, s6, s15')
    a.i('s_addc_u32 s17, s7, 0')
    a.i('s_mov_b32 s18, %d' % (16 * 71680))
    a.i('s_mov_b32 s19, 0x20000')
    a.i('s_mov_b32 s20, s4')
    a.i('s_mov_b32 s21, s5')
    a.i('s_mov_b32 s22, %d' % (1280 * 448 * 2))
    a.i('s_mov_b32 s23, 0x20000')
    a.i('s_lshl_b32 s24, s11, 10')
    a.i('v_lshlrev_b32 v2, 4, v1')
    for h in range(16):
        a.i('buffer_load_dwordx4 %s, v2, s[16:19], s24 offen' % vr(16 + 4 * h, 4))
        if h < 15:
            a.i('s_add_u32 s24, s24, 71680')
    a.i('s_mul_i32 s25, s10, 80')
    a.i('s_lshl_b32 s26, s14, 4')
    a.i('s_add_u32 s25, s25, s26')
    a.i('s_mul_i32 s25, s25, 896')
    a.i('s_lshl_b32 s26, s12, 7')
    a.i('s_add_u32 s25, s25, s26')
    a.i('s_lshl_b32 s26, s13, 6')
    a.i('s_add_u32 s25, s25, s26')
    a.i('v_and_b32 v3, 15, v1')
    a.i('v_mul_u32_u24 v3, 896, v3')
    a.i('v_lshrrev_b32 v4, 4, v1')
    a.i('v_lshlrev_b32 v4, 3, v4')
    a.i('v_add_u32 v3, v3, v4')
    a.i('s_mov_b32 s27, 0xffff0000')
    for h in range(16):
        a.i('s_waitcnt vmcnt(%d)' % (15 - h))
        for r in range(4):
            src = 16 + 4 * h + r
            if h == 0:
                a.i('v_lshlrev_b32 %s, 16, %s' % (vr(8 + 2 * r), vr(src)))
                a.i('v_and_b32 %s, s27, %s' % (vr(9 + 2 * r), vr(src)))
            else:
                a.i('v_lshlrev_b32 v5, 16, %s' % vr(src))
                a.i('v_and_b32 v6, s27, %s' % vr(src))
                a.i('v_add_f32 %s, %s, v5' % (vr(8 + 2 * r), vr(8 + 2 * r)))
                a.i('v_add_f32 %s, %s, v6' % (vr(9 + 2 * r), vr(9 + 2 * r)))
    for r in range(4):
        a.i('v_cvt_pk_bf16_f32 %s, %s, %s' % (vr(16 + r), vr(8 + 2 * r), vr(9 + 2 * r)))
    a.i('buffer_store_dwordx2 v[16:17], v3, s[20:23], s25 offen')
    a.i('buffer_store_dwordx2 v[18:19], v3, s[20:23], s25 offen offset:32')
    a.label('R_end')
    a.i('s_endpgm')
    a.reset()


HEADER = """; Kernarg layout for this problem (64 bytes, ptrs only, base s[0:1]):
;   offset   0: d_in[0] x  shape=(8, 160, 448) dtype=bfloat16
;   offset   8: d_in[1] k_cache  shape=(8, 8, 1024, 256) dtype=bfloat16
;   offset  16: d_in[2] v_cache  shape=(8, 8, 1024, 256) dtype=bfloat16
;   offset  24: d_in[3] wq  shape=(448, 4096) dtype=bfloat16
;   offset  32: d_in[4] wo  shape=(4096, 448) dtype=bfloat16
;   offset  40: d_out     shape=(8, 160, 448) dtype=bfloat16
;   offset  48: d_debug   256 bytes
;   offset  56: d_ws      268435456 bytes workspace
; Generated by gen/gen.py (own generator script).
; @launch kernel=standalone__gqa_block_cached__near_ridge_kernel grid=(256,1,1) block=(512,1,1) lds=%d
; @launch kernel=gqa_reduce_kernel grid=(280,1,1) block=(256,1,1) lds=0
.amdgcn_target "amdgcn-amd-amdhsa--gfx950"
.text
""" % LDS_BYTES


def kd(name, vgpr, sgpr):
    return """.amdhsa_kernel %s
  .amdhsa_next_free_vgpr %d
  .amdhsa_next_free_sgpr %d
  .amdhsa_accum_offset %d
  .amdhsa_group_segment_fixed_size 0
  .amdhsa_kernarg_size 64
  .amdhsa_user_sgpr_count 2
  .amdhsa_user_sgpr_kernarg_segment_ptr 1
  .amdhsa_system_sgpr_workgroup_id_x 1
.end_amdhsa_kernel
""" % (name, vgpr, sgpr, (vgpr + 3) // 4 * 4)


def main():
    out = sys.argv[1] if len(sys.argv) > 1 and not sys.argv[1].startswith('--') else 'standalone__gqa_block_cached__near_ridge.s'
    a = Asm()
    gen_main(a, 'standalone__gqa_block_cached__near_ridge_kernel')
    gen_reduce(a, 'gqa_reduce_kernel')
    txt = HEADER + a.text() + '.section .rodata,"a"\n.p2align 6\n' + \
        kd('standalone__gqa_block_cached__near_ridge_kernel', 256, 96) + '.p2align 6\n' + kd('gqa_reduce_kernel', 80, 32)
    open(out, 'w').write(txt)
    print('wrote', out, a.nins, 'instructions')


if __name__ == '__main__':
    main()
```

```python
import struct, sys, math
from asmlib import Asm, vr, sr

ARGS = sys.argv[1:]
def opt(name, default=None):
    for x in ARGS:
        if x.startswith('--' + name + '='):
            return x.split('=', 1)[1]
    return default
def flag(name):
    return ('--' + name) in ARGS

K1 = 1024
KR0 = 64 * K1
PB = 128 * K1
SM = 152 * K1
FL = SM
AL = SM + 512
RM = SM + 1536
OB = 112 * K1
WSLOT = [128 * K1, 64 * K1, 96 * K1]
XSLOT = [40 * K1, 0, 10 * K1]
QB = 0
LDS_BYTES = 160 * K1


def f32hex(x):
    return '0x%08x' % struct.unpack('<I', struct.pack('<f', x))[0]


CSCALE = math.log2(math.e) / 16.0
THR = 8.0

S_X, S_K, S_V, S_WQ, S_WO, S_OUT, S_DBG, S_WS = 4, 6, 8, 10, 12, 14, 16, 18
S_WAVE, S_W, S_B, S_HKV, S_H, S_GRP = 20, 21, 22, 23, 24, 25
S_T0, S_T1, S_T2, S_T3 = 26, 27, 28, 29
S_C = 30
SRD_ST, SRD_WQ, SRD_X, SRD_WO, SRD_PO = 32, 36, 40, 44, 48
S_SOFF, S_STEPU, S_STEPL, S_RING, S_P, S_LO = 52, 53, 54, 55, 56, 57
S_CG = 58
S_XL = [59, 60, 61]
S_XG = [62, 63, 64]
S_WCUR, S_WN1, S_WN2, S_XCUR, S_XN1, S_XN2 = 65, 66, 67, 68, 69, 70
S_WQOFF = 71
S_PEND = 80
S_PEND2 = 81

V_LANE = 1
G_TA = [2, 3, 4, 5]
G_UB = [6, 7]
V_PAT = [8, 9]
G_FLA = 10
G_ALA = 11
G_AL = 12
G_T = [17, 18, 19, 20, 21, 22, 23]
G_BF = lambda e, i: 72 + e * 20 + i * 4
G_AF = lambda e, a: 112 + e * 16 + a * 4
ACC_O = lambda a, i: 176 + (a * 5 + i) * 4


def ACC_W(a, i):
    k = a * 5 + i
    return 144 + k * 4 if k < 8 else 24 + (k - 8) * 4


Q_UA = [2, 3]
Q_PWA = 4
Q_FLA = 5
Q_T = [6, 7, 18, 16, 17, 18, 19]
Q_PWA2 = 10
Q_L = 11
Q_MQ = lambda i: 20 + 4 * i
Q_KF = lambda k: 40 + k * 4
Q_S = lambda par, i: 56 + par * 20 + i * 4
Q_Q = lambda i, s: 96 + (i * 8 + s) * 4

MFMA = 'v_mfma_f32_16x16x32_bf16'
STAMPS = flag('stamps')
KVPOL = ' nt' if flag('nt') else ''
ROLE = ['q']
QLAG = flag('qlag')
PD = [int(x) for x in opt('pdma', '10,13,16,19,10,13,16,19').split(',')]
INLOOP = [False]


def stamp(a):
    if not STAMPS:
        return
    a.i('s_memrealtime s[72:73]' if flag('rt') else 's_memtime s[72:73]')
    a.i('s_waitcnt lgkmcnt(0)')
    a.i('s_mov_b32 m0, s74')
    a.i('s_nop 0')
    a.i('v_writelane_b32 v0, s72, m0')
    a.i('s_add_u32 s74, s74, 1')


def barrier(a):
    if flag('pre'):
        stamp(a)
    a.i('s_barrier')
    stamp(a)


def stamp_init(a):
    if not STAMPS:
        return
    a.i('s_mov_b32 s74, 0')
    a.i('s_lshl_b32 s75, s2, 3')
    a.i('s_add_u32 s75, s75, %s' % sr(S_WAVE))
    a.i('s_lshl_b32 s75, s75, 8')
    a.i('s_add_u32 s75, s75, %d' % (128 << 20))
    a.i('s_add_u32 s76, %s, s75' % sr(S_WS))
    a.i('s_addc_u32 s77, %s, 0' % sr(S_WS + 1))
    a.i('s_mov_b32 s78, 256')
    a.i('s_mov_b32 s79, 0x20000')
    a.i('v_mov_b32 v0, 0')
    a.i('s_memrealtime s[72:73]')
    a.i('s_waitcnt lgkmcnt(0)')
    a.i('v_writelane_b32 v0, s72, 62')
    stamp(a)


def stamp_flush(a):
    if not STAMPS:
        return
    a.i('s_waitcnt vmcnt(0)')
    stamp(a)
    a.i('s_memrealtime s[72:73]')
    a.i('s_waitcnt lgkmcnt(0)')
    a.i('v_writelane_b32 v0, s72, 63')
    a.i('v_lshlrev_b32 v2, 2, %s' % vr(V_LANE))
    a.i('buffer_store_dword v0, v2, s[76:79], 0 offen')


def mfma(a, d, A, B, c=None):
    a.i('%s %s, %s, %s, %s' % (MFMA, vr(d, 4), vr(A, 4), vr(B, 4), vr(d, 4) if c is None else c))


def build_srd(a, srd, ptr, off_sgpr, nrec):
    a.i('s_add_u32 %s, %s, %s' % (sr(srd), sr(ptr), sr(off_sgpr)))
    a.i('s_addc_u32 %s, %s, 0' % (sr(srd + 1), sr(ptr + 1)))
    a.i('s_mov_b32 %s, %s' % (sr(srd + 2), nrec))
    a.i('s_mov_b32 %s, 0x20000' % sr(srd + 3))


def pat_U(a, dst, tmp, R, sub=True):
    t0, t1 = tmp
    a.i('v_lshrrev_b32 %s, 3, %s' % (vr(t1), vr(V_LANE)))
    a.i('v_and_b32 %s, 7, %s' % (vr(t0), vr(V_LANE)))
    a.i('v_xor_b32 %s, %s, %s' % (vr(t0), vr(t0), vr(t1)))
    a.i('v_lshlrev_b32 %s, 4, %s' % (vr(t0), vr(t0)))
    a.i('v_mul_u32_u24 %s, %d, %s' % (vr(t1), R, vr(t1)))
    a.i('v_add_u32 %s, %s, %s' % (vr(dst[0]), vr(t0), vr(t1)))
    a.i('v_add_u32 %s, %d, %s' % (vr(dst[1]), 8 * R - (1024 if sub else 0), vr(dst[0])))


def pat_T(a, dst, tmp, R):
    t0, t1 = tmp
    a.i('v_lshrrev_b32 %s, 3, %s' % (vr(t0), vr(V_LANE)))
    a.i('v_and_b32 %s, 2, %s' % (vr(t0), vr(t0)))
    a.i('v_and_b32 %s, 7, %s' % (vr(t1), vr(V_LANE)))
    a.i('v_xor_b32 %s, %s, %s' % (vr(t0), vr(t0), vr(t1)))
    a.i('v_lshlrev_b32 %s, 4, %s' % (vr(t0), vr(t0)))
    a.i('v_lshrrev_b32 %s, 3, %s' % (vr(t1), vr(V_LANE)))
    a.i('v_mul_u32_u24 %s, %d, %s' % (vr(t1), R, vr(t1)))
    a.i('v_add_u32 %s, %s, %s' % (vr(dst[0]), vr(t0), vr(t1)))
    a.i('v_xor_b32 %s, 64, %s' % (vr(t0), vr(t0)))
    a.i('v_add_u32 %s, %s, %s' % (vr(dst[1]), vr(t0), vr(t1)))
    a.i('v_add_u32 %s, %d, %s' % (vr(dst[1]), 8 * R - 1024, vr(dst[1])))


def addr_U_read(a, dst, tmp, base_sgpr=None, base_imm=0):
    t0, t1 = tmp
    a.i('v_and_b32 %s, 15, %s' % (vr(t0), vr(V_LANE)))
    a.i('v_and_b32 %s, 7, %s' % (vr(t1), vr(V_LANE)))
    a.i('v_lshlrev_b32 %s, 7, %s' % (vr(t0), vr(t0)))
    a.i('v_lshrrev_b32 %s, 4, %s' % (vr(dst[0]), vr(V_LANE)))
    a.i('v_xor_b32 %s, %s, %s' % (vr(t1), vr(t1), vr(dst[0])))
    a.i('v_lshlrev_b32 %s, 4, %s' % (vr(t1), vr(t1)))
    a.i('v_add_u32 %s, %s, %s' % (vr(dst[0]), vr(t0), vr(t1)))
    if base_imm:
        a.i('v_add_u32 %s, %d, %s' % (vr(dst[0]), base_imm, vr(dst[0])))
    if base_sgpr is not None:
        a.i('v_add_u32 %s, %s, %s' % (vr(dst[0]), sr(base_sgpr), vr(dst[0])))
    a.i('v_xor_b32 %s, 64, %s' % (vr(dst[1]), vr(dst[0])))


def addr_T_read(a, dst, tmp, base_sgpr=None):
    t0, t1 = tmp
    a.i('v_lshrrev_b32 %s, 4, %s' % (vr(t0), vr(V_LANE)))
    a.i('v_lshlrev_b32 %s, 10, %s' % (vr(t0), vr(t0)))
    a.i('v_bfe_u32 %s, %s, 2, 2' % (vr(t1), vr(V_LANE)))
    a.i('v_lshlrev_b32 %s, 7, %s' % (vr(t1), vr(t1)))
    a.i('v_add_u32 %s, %s, %s' % (vr(t0), vr(t0), vr(t1)))
    a.i('v_and_b32 %s, 3, %s' % (vr(t1), vr(V_LANE)))
    a.i('v_lshlrev_b32 %s, 3, %s' % (vr(t1), vr(t1)))
    a.i('v_add_u32 %s, %s, %s' % (vr(t0), vr(t0), vr(t1)))
    a.i('v_bfe_u32 %s, %s, 3, 2' % (vr(t1), vr(V_LANE)))
    a.i('v_lshlrev_b32 %s, 5, %s' % (vr(t1), vr(t1)))
    a.i('v_add_u32 %s, %s, %s' % (vr(dst[0]), vr(t0), vr(t1)))
    if base_sgpr is not None:
        a.i('v_add_u32 %s, %s, %s' % (vr(dst[0]), sr(base_sgpr), vr(dst[0])))
    for k in (1, 2, 3):
        a.i('v_xor_b32 %s, %d, %s' % (vr(dst[k]), 32 * k, vr(dst[0])))


def addr_D_write(a, dst, tmp, chunk2_sgpr=None):
    t0, t1 = tmp
    a.i('v_and_b32 %s, 15, %s' % (vr(t0), vr(V_LANE)))
    a.i('v_and_b32 %s, 7, %s' % (vr(t1), vr(V_LANE)))
    a.i('v_lshlrev_b32 %s, 7, %s' % (vr(t0), vr(t0)))
    a.i('v_lshrrev_b32 %s, 5, %s' % (vr(dst), vr(V_LANE)))
    a.i('v_xor_b32 %s, %s, %s' % (vr(t1), vr(t1), vr(dst)))
    a.i('v_lshlrev_b32 %s, 4, %s' % (vr(t1), vr(t1)))
    a.i('v_add_u32 %s, %s, %s' % (vr(t0), vr(t0), vr(t1)))
    a.i('v_bfe_u32 %s, %s, 4, 1' % (vr(t1), vr(V_LANE)))
    a.i('v_lshlrev_b32 %s, 3, %s' % (vr(t1), vr(t1)))
    a.i('v_add_u32 %s, %s, %s' % (vr(dst), vr(t0), vr(t1)))
    if chunk2_sgpr is not None:
        a.i('v_xor_b32 %s, %s, %s' % (vr(dst), sr(chunk2_sgpr), vr(dst)))


def dma_unit(lds_off, last):
    if flag('nodma') or flag('nodma' + ROLE[0]):
        return ['s_nop 0'] * 4
    return [
        's_add_u32 m0, %s, %d' % (sr(S_RING), lds_off),
        'buffer_load_dwordx4 %s, %s, %s offen%s lds' % (vr(V_PAT[0]), sr(SRD_ST, 4), sr(S_SOFF), KVPOL),
        'buffer_load_dwordx4 %s, %s, %s offen offset:1024%s lds' % (vr(V_PAT[1]), sr(SRD_ST, 4), sr(S_SOFF), KVPOL),
        's_add_u32 %s, %s, %s' % (sr(S_SOFF), sr(S_SOFF), sr(S_STEPL if last else S_STEPU)),
    ]


def place_dma(fill, lds_off, last, m_a, m_b):
    d = dma_unit(lds_off, last)
    fill.setdefault(m_a - 1, []).append(d[0])
    fill.setdefault(m_a, []).append(d[1])
    fill.setdefault(m_b, []).extend([d[2], d[3]])


def switch_to_wo(a, tmp):
    for k in range(3):
        a.i('s_mov_b32 %s, %s' % (sr(SRD_ST + k), sr(SRD_WO + k)))
    a.i('s_lshl_b32 %s, %s, 7' % (sr(S_SOFF), sr(S_CG)))
    a.i('s_mov_b32 %s, %d' % (sr(S_STEPU), 16 * 896))
    a.i('s_mov_b32 %s, %d' % (sr(S_STEPL), 16 * 896))
    pat_T(a, V_PAT, tmp, 896)


def run_stream(a, mf, fill):
    def emit(lst):
        for x in lst:
            if callable(x):
                x()
            else:
                if INLOOP[0]:
                    if flag('nopw') and x.startswith('ds_write'):
                        continue
                    if flag('notr') and x.startswith('ds_read_b64_tr'):
                        continue
                    if flag('nokr') and x.startswith('ds_read_b128') and ROLE[0] == 'q':
                        continue
                    if flag('nopr') and x.startswith('ds_read_b128') and ROLE[0] == 'p':
                        continue
                    if flag('novalu') and x.startswith('v_') and ROLE[0] == 'q' and not x.startswith('v_cmp'):
                        continue
                a.i(x)
    for m in sorted(k for k in fill if k < 0):
        emit(fill[m])
    for m, f in enumerate(mf):
        f()
        emit(fill.get(m, []))
    for m in sorted(k for k in fill if k >= len(mf)):
        emit(fill[m])


def spread(fill, items, m0, m1):
    n = len(items)
    span = m1 - m0 + 1
    for k, it in enumerate(items):
        m = m0 + (k * span) // n
        fill.setdefault(m, []).append(it)


def a_reads(e_dst, imm):
    out = []
    for ai in range(4):
        for hh in range(2):
            out.append('ds_read_b64_tr_b16 %s, %s offset:%d' % (vr(G_AF(e_dst, ai) + 2 * hh, 2), vr(G_TA[ai]), imm + hh * 512))
    return out


def b_reads(e, imm_of_i):
    return ['ds_read_b128 %s, %s offset:%d' % (vr(G_BF(e, i), 4), vr(G_UB[e]), imm_of_i(i)) for i in range(5)]


def half_mfmas(a, acc, e):
    return [(lambda ai=ai, i=i: mfma(a, acc(ai, i), G_AF(e, ai), G_BF(e, i))) for ai in range(4) for i in range(5)]


def xreduce(a, op, v, t):
    a.i('v_mov_b32 %s, %s' % (vr(t), vr(v)))
    a.i('v_permlane32_swap_b32 %s, %s' % (vr(v), vr(t)))
    a.i('%s %s, %s, %s' % (op, vr(v), vr(v), vr(t)))
    a.i('v_mov_b32 %s, %s' % (vr(t), vr(v)))
    a.i('v_permlane16_swap_b32 %s, %s' % (vr(v), vr(t)))
    a.i('%s %s, %s, %s' % (op, vr(v), vr(v), vr(t)))


def gen_main(a, name):
    a.raw('.globl %s' % name)
    a.raw('.p2align 8')
    a.raw('.type %s,@function' % name)
    a.label(name)
    a.i('s_cmp_ge_u32 s2, 256')
    a.i('s_cbranch_scc1 L_end')
    a.i('s_load_dwordx16 s[4:19], s[0:1], 0')
    a.i('v_and_b32 %s, 63, v0' % vr(V_LANE))
    a.i('v_lshrrev_b32 v2, 6, v0')
    a.i('v_readfirstlane_b32 %s, v2' % sr(S_WAVE))
    a.i('s_and_b32 %s, s2, 7' % sr(S_HKV))
    a.i('s_lshr_b32 %s, s2, 5' % sr(S_B))
    a.i('s_bfe_u32 %s, s2, 0x10004' % sr(S_T0))
    a.i('s_bfe_u32 %s, s2, 0x10003' % sr(S_T1))
    a.i('s_lshl_b32 %s, %s, 1' % (sr(S_H), sr(S_HKV)))
    a.i('s_add_u32 %s, %s, %s' % (sr(S_H), sr(S_H), sr(S_T0)))
    a.i('s_lshl_b32 %s, %s, 1' % (sr(S_GRP), sr(S_B)))
    a.i('s_add_u32 %s, %s, %s' % (sr(S_GRP), sr(S_GRP), sr(S_T1)))
    a.i('s_and_b32 %s, %s, 3' % (sr(S_W), sr(S_WAVE)))
    a.i('s_cmp_ge_u32 %s, 4' % sr(S_WAVE))
    a.i('s_cbranch_scc1 L_pv')

    def common_srds():
        a.i('s_mul_i32 %s, %s, %d' % (sr(S_T0), sr(S_H), 229376))
        build_srd(a, SRD_WO, S_WO, S_T0, 229376)
        a.i('s_lshl_b32 %s, %s, 4' % (sr(S_T0), sr(S_GRP)))
        a.i('s_add_u32 %s, %s, %s' % (sr(S_T0), sr(S_T0), sr(S_H)))
        a.i('s_mul_i32 %s, %s, %d' % (sr(S_T0), sr(S_T0), 71680))
        build_srd(a, SRD_PO, S_WS, S_T0, 71680)
        a.i('s_lshl_b32 %s, %s, 3' % (sr(S_T0), sr(S_B)))
        a.i('s_add_u32 %s, %s, %s' % (sr(S_T0), sr(S_T0), sr(S_HKV)))
        if flag('kvsame'):
            a.i('s_mov_b32 %s, %s' % (sr(S_T0), sr(S_HKV)))
        a.i('s_lshl_b32 %s, %s, 19' % (sr(S_T2), sr(S_T0)))

    LWQ = [100, 101]
    LX = [102, 103]
    LT = (104, 105)
    pat_T(a, LWQ, LT, 8192)
    pat_U(a, LX, LT, 896, sub=False)
    a.i('s_and_b32 %s, %s, 1' % (sr(S_T0), sr(S_W)))
    a.i('s_cmp_eq_u32 %s, 1' % sr(S_T0))
    a.i('s_cselect_b64 vcc, -1, 0')
    a.i('v_cndmask_b32 %s, %s, %s, vcc' % (vr(LX[0]), vr(LX[0]), vr(LX[1])))
    for k in range(3):
        a.i('s_add_u32 %s, %s, %d' % (sr(S_T0), sr(S_W), 4 * k))
        if k == 2:
            a.i('s_add_u32 %s, %s, 4' % (sr(S_T1), sr(S_W)))
            a.i('s_cmp_ge_u32 %s, 10' % sr(S_T0))
            a.i('s_cselect_b32 %s, %s, %s' % (sr(S_T0), sr(S_T1), sr(S_T0)))
        a.i('s_lshl_b32 %s, %s, 10' % (sr(S_XL[k]), sr(S_T0)))
        a.i('s_lshr_b32 %s, %s, 1' % (sr(S_T0), sr(S_T0)))
        a.i('s_mul_i32 %s, %s, %d' % (sr(S_XG[k]), sr(S_T0), 16 * 896))
    a.i('s_lshl_b32 %s, %s, 7' % (sr(S_WQOFF), sr(S_W)))
    a.i('s_lshl_b32 %s, %s, 13' % (sr(S_T3), sr(S_W)))
    a.i('s_lshl_b32 %s, %s, 9' % (sr(S_T0), sr(S_H)))
    a.i('s_sub_u32 %s, %d, %s' % (sr(S_T1), 448 * 8192, sr(S_T0)))
    a.i('s_mul_i32 %s, %s, %d' % (sr(S_T2), sr(S_GRP), 71680))
    a.i('s_waitcnt lgkmcnt(0)')
    build_srd(a, SRD_WQ, S_WQ, S_T0, sr(S_T1))
    build_srd(a, SRD_X, S_X, S_T2, 71680)

    def issue_tile(c):
        sl = c % 3
        for k in range(3):
            a.i('s_add_u32 m0, %s, %d' % (sr(S_XL[k]), XSLOT[sl]))
            a.i('buffer_load_dwordx4 %s, %s, %s offen lds' % (vr(LX[0]), sr(SRD_X, 4), sr(S_XG[k])))
            a.i('s_add_u32 %s, %s, 128' % (sr(S_XG[k]), sr(S_XG[k])))
        for u in range(4):
            a.i('s_add_u32 m0, %s, %d' % (sr(S_T3), WSLOT[sl] + u * 2048))
            a.i('buffer_load_dwordx4 %s, %s, %s offen lds' % (vr(LWQ[0]), sr(SRD_WQ, 4), sr(S_WQOFF)))
            a.i('buffer_load_dwordx4 %s, %s, %s offen offset:1024 lds' % (vr(LWQ[1]), sr(SRD_WQ, 4), sr(S_WQOFF)))
            a.i('s_add_u32 %s, %s, %d' % (sr(S_WQOFF), sr(S_WQOFF), 16 * 8192))

    for c in range(2):
        issue_tile(c)
    stamp_init(a)
    common_srds()
    build_srd(a, SRD_ST, S_K, S_T2, 524288)
    a.i('s_mov_b32 %s, %s' % (sr(S_CG), sr(S_W)))
    a.i('s_cmp_eq_u32 %s, 3' % sr(S_W))
    a.i('s_cselect_b32 %s, 0, %s' % (sr(SRD_WO + 2), sr(SRD_WO + 2)))
    T2 = (Q_T[0], Q_T[1])
    pat_U(a, V_PAT, T2, 512)
    a.i('s_lshl_b32 %s, %s, 13' % (sr(S_SOFF), sr(S_W)))
    a.i('s_mov_b32 %s, 128' % sr(S_STEPU))
    a.i('s_mov_b32 %s, %d' % (sr(S_STEPL), 32768 - 384))
    a.i('s_lshl_b32 %s, %s, 14' % (sr(S_RING), sr(S_W)))
    a.i('s_add_u32 %s, %s, %d' % (sr(S_RING), sr(S_RING), KR0))
    a.i('s_lshl_b32 %s, %s, 5' % (sr(S_T0), sr(S_W)))
    addr_D_write(a, Q_PWA, T2, S_T0)
    a.i('v_add_u32 %s, %d, %s' % (vr(Q_PWA), PB, vr(Q_PWA)))
    a.i('v_bfe_u32 %s, %s, 4, 1' % (vr(T2[0]), vr(V_LANE)))
    a.i('v_mul_u32_u24 %s, %d, %s' % (vr(T2[0]), 2040, vr(T2[0])))
    a.i('v_add_u32 %s, %s, %s' % (vr(Q_PWA2), vr(T2[0]), vr(Q_PWA)))
    a.i('v_mov_b32 %s, %d' % (vr(Q_FLA), FL))
    for i in range(5):
        a.i('v_mov_b32 %s, 0' % vr(Q_L + i))
        for r in range(4):
            a.i('v_mov_b32 %s, 0' % vr(Q_MQ(i) + r))
    addr_U_read(a, Q_UA, T2)
    for c in range(7):
        n = 11 if c < 6 else 0
        a.i('s_waitcnt vmcnt(%d)' % n)
        barrier(a)
        if c <= 4:
            issue_tile(c + 2)
    for t in range(2):
        for u in range(4):
            if QLAG and t == 1 and u == 3:
                continue
            for x in dma_unit(t * 8192 + u * 2048, u == 3):
                a.i(x)
    barrier(a)
    QA = [Q_T[0], Q_T[1]]
    for e in range(2):
        a.i('v_mov_b32 %s, %s' % (vr(QA[e]), vr(Q_UA[e])))
        a.i('v_add_u32 %s, %s, %s' % (vr(Q_UA[e]), sr(S_RING), vr(Q_UA[e])))

    def qread(i, s):
        return 'ds_read_b128 %s, %s offset:%d' % (vr(Q_Q(i, s), 4), vr(QA[s & 1]), QB + (i * 4 + (s >> 1)) * 2048)

    def kread(par, s, buf):
        return 'ds_read_b128 %s, %s offset:%d' % (vr(Q_KF(buf), 4), vr(Q_UA[s & 1]), par * 8192 + (s >> 1) * 2048)

    a.i('s_waitcnt vmcnt(12)')
    a.i(kread(0, 0, 0))
    a.i(kread(0, 1, 1))
    a.i('s_waitcnt lgkmcnt(0)')
    a.i('s_mov_b32 %s, 0' % sr(S_P))
    barrier(a)

    q_rare = []
    q_setf = []

    def qk_phase(par, do_mfma, do_soft, tag):
        pp = 1 - par
        fill = {}
        mf = []
        if do_mfma:
            order = [(s, i) for s in range(6) for i in range(5)] + [(s, i) for i in range(5) for s in (6, 7)]
            for (s, i) in order:
                mf.append(lambda s=s, i=i: mfma(a, Q_S(par, i), Q_KF(s % 4), Q_Q(i, s), vr(Q_MQ(i), 4) if s == 0 else None))
            reads = [(0, 2, 0, 2), (1, 3, 0, 3), (5, 4, 0, 0), (10, 5, 0, 1), (15, 6, 0, 2), (20, 7, 0, 3),
                     (25, 0, 1, 0), (30, 1, 1, 1)]
            refills = [(3, 8, 0, 0), (16, 21, 1, 0), (26, 29, 2, 0), (33, 37, 3, 0)]
            if opt('qdma'):
                q = [int(x) for x in opt('qdma').split(',')]
                refills = [(q[2 * u], q[2 * u + 1], u, 0) for u in range(4)]
            if QLAG:
                q = [int(x) for x in opt('qdma', '2,7,12,17,22,27,32,37').split(',')]
                refills = [(q[0], q[1], 3, -1), (q[2], q[3], 0, 0), (q[4], q[5], 1, 0), (q[6], q[7], 2, 0)]
            ev = []
            for (m, s, dt, buf) in reads:
                ev.append((m, 0, 'need', dt, s >> 1, s, buf))
            for (ma, mb, u, dt) in refills:
                ev.append((ma, 1, 'dma', u, dt))
                ev.append((mb, 1, 'dma', u, dt))
            ev.sort(key=lambda e: (e[0], e[1]))
            issued = []
            need_n = {}
            for ph in range(4):
                for e in ev:
                    if e[2] == 'dma':
                        issued.append((ph + 2 + e[4], e[3]))
                    elif ph == 3:
                        key = (ph + e[3], e[4])
                        last = max(k for k, x in enumerate(issued) if x == key)
                        need_n[e[5]] = len(issued) - 1 - last
            for (m, s, dt, buf) in reads:
                if s % 2 == 0:
                    fill.setdefault(m, []).append('s_waitcnt vmcnt(%d)' % need_n[s])
                fill.setdefault(m, []).append(kread(pp if dt else par, s, buf))
            for (ma, mb, u, dt) in refills:
                place_dma(fill, (pp if dt else par) * 8192 + u * 2048, u == 3, ma, mb)
                if QLAG and dt and tag == 'even':
                    def sw():
                        a.i('s_cmp_eq_u32 %s, 14' % sr(S_P))
                        a.i('s_cbranch_scc0 L_qnosw2')
                        switch_to_wo(a, (Q_T[5], Q_T[6]))
                        a.label('L_qnosw2')
                    fill.setdefault(mb, []).append(sw)
        if tag == 'p0':
            qr = [qread(i, s) for s in range(8) for i in range(5)]
            fill.setdefault(-1, []).extend(qr[:10])
            for k, x in enumerate(qr[10:]):
                fill.setdefault(k * 2 // 3, []).append(x)
        if do_soft:
            fill.setdefault(-1, []).append('ds_read_b32 %s, %s offset:%d' % (vr(Q_T[2]), vr(Q_FLA), pp * 4))
            chk = ['v_cmp_eq_u32 vcc, %s, %s' % (sr(S_P), vr(Q_T[2]))]

            def br():
                a.i('s_cbranch_vccnz L_q%s_%s' % ('join' if flag('norare') else 'rare', tag))
                a.label('L_qjoin_%s' % tag)
            chk.append(br)
            q_rare.append((tag, par, do_mfma))
            soft = []
            for i in range(5):
                S = Q_S(pp, i)
                t0, t1 = (Q_T[0], Q_T[1]) if i % 2 == 0 else (Q_T[3], Q_T[4])
                for r in range(4):
                    soft.append('v_exp_f32 %s, %s' % (vr(S + r), vr(S + r)))
                soft.append('v_add_f32 %s, %s, %s' % (vr(t0), vr(S), vr(S + 1)))
                soft.append('v_add_f32 %s, %s, %s' % (vr(t1), vr(S + 2), vr(S + 3)))
                D = S if i % 2 == 0 else Q_S(pp, i - 1) + 2
                if flag('pw64'):
                    D = S
                soft.append('v_cvt_pk_bf16_f32 %s, %s, %s' % (vr(D), vr(S), vr(S + 1)))
                soft.append('v_cvt_pk_bf16_f32 %s, %s, %s' % (vr(D + 1), vr(S + 2), vr(S + 3)))
                soft.append('v_add_f32 %s, %s, %s' % (vr(t0), vr(t0), vr(t1)))
                if i == 4 or flag('pw64'):
                    soft.append('ds_write_b64 %s, %s offset:%d' % (vr(Q_PWA), vr(S, 2), pp * 10240 + i * 2048))
                elif i % 2 == 1:
                    A = Q_S(pp, i - 1)
                    soft.append('v_permlane16_swap_b32 %s, %s' % (vr(A), vr(A + 2)))
                    soft.append('v_permlane16_swap_b32 %s, %s' % (vr(A + 1), vr(A + 3)))
                    soft.append('ds_write_b128 %s, %s offset:%d' % (vr(Q_PWA2), vr(A, 4), pp * 10240 + (i - 1) * 2048))
                soft.append('v_add_f32 %s, %s, %s' % (vr(Q_L + i), vr(Q_L + i), vr(t0)))
            if do_mfma:
                fill.setdefault(5, []).extend(chk)
                if opt('wpos'):
                    wr = [x for x in soft if x.startswith('ds_write')]
                    soft = [x for x in soft if not x.startswith('ds_write')]
                    wp = [int(x) for x in opt('wpos').split(',')]
                    spread(fill, soft, 6, int(opt('softend', 31)))
                    for k, x in enumerate(wr):
                        fill.setdefault(wp[k] if len(wp) > 1 else wp[0], []).append(x)
                else:
                    spread(fill, soft, 6, int(opt('softend', 31)))
            else:
                fill.setdefault(-1, []).extend(chk + soft)
        if tag == 'p0':
            M = [Q_S(1, 0) + k for k in range(5)]
            t5, adw, ad4 = Q_S(1, 0) + 5, Q_S(1, 0) + 6, Q_S(1, 0) + 7
            pre = ['v_and_b32 %s, 15, %s' % (vr(ad4), vr(V_LANE)),
                   'v_lshlrev_b32 %s, 7, %s' % (vr(ad4), vr(ad4)),
                   's_lshl_b32 %s, %s, 2' % (sr(S_T0), sr(S_W)),
                   's_add_u32 %s, %s, %d' % (sr(S_T0), sr(S_T0), RM),
                   'v_add_u32 %s, %s, %s' % (vr(ad4), sr(S_T0), vr(ad4)),
                   'v_bfe_u32 %s, %s, 4, 1' % (vr(adw), vr(V_LANE)),
                   'v_lshlrev_b32 %s, 5, %s' % (vr(adw), vr(adw)),
                   'v_lshrrev_b32 %s, 5, %s' % (vr(t5), vr(V_LANE)),
                   'v_lshlrev_b32 %s, 4, %s' % (vr(t5), vr(t5)),
                   'v_add3_u32 %s, %s, %s, %s' % (vr(adw), vr(adw), vr(t5), vr(ad4))]
            spread(fill, pre, 22, 31)
            for i in range(5):
                S = Q_S(par, i)
                fill.setdefault(min(34 + 2 * i, 40), []).extend([
                    'v_max3_f32 %s, %s, %s, %s' % (vr(M[i]), vr(S), vr(S + 1), vr(S + 2)),
                    'v_max_f32 %s, %s, %s' % (vr(M[i]), vr(M[i]), vr(S + 3))])

            def red0():
                a.i('v_permlane32_swap_b32 %s, %s' % (vr(M[0]), vr(M[1])))
                a.i('v_permlane32_swap_b32 %s, %s' % (vr(M[2]), vr(M[3])))
                a.i('v_max_f32 %s, %s, %s' % (vr(M[0]), vr(M[0]), vr(M[1])))
                a.i('v_max_f32 %s, %s, %s' % (vr(M[2]), vr(M[2]), vr(M[3])))
                xreduce(a, 'v_max_f32', M[4], t5)
                a.i('v_permlane16_swap_b32 %s, %s' % (vr(M[0]), vr(M[2])))
                a.i('v_max_f32 %s, %s, %s' % (vr(M[0]), vr(M[0]), vr(M[2])))
                a.i('ds_write_b32 %s, %s offset:64' % (vr(ad4), vr(M[4])))
                a.i('ds_write_b32 %s, %s' % (vr(adw), vr(M[0])))
            fill.setdefault(41, []).append(red0)
        elif do_mfma:
            M0_, M1_ = Q_T[5], Q_T[6]
            for i in range(5):
                S = Q_S(par, i)
                m = min(34 + 2 * i, 40)
                if i == 0:
                    ops = ['v_max3_f32 %s, %s, %s, %s' % (vr(M0_), vr(S), vr(S + 1), vr(S + 2)),
                           'v_mov_b32 %s, %s' % (vr(M1_), vr(S + 3))]
                else:
                    ops = ['v_max3_f32 %s, %s, %s, %s' % (vr(M0_), vr(M0_), vr(S), vr(S + 1)),
                           'v_max3_f32 %s, %s, %s, %s' % (vr(M1_), vr(M1_), vr(S + 2), vr(S + 3))]
                fill.setdefault(m, []).extend(ops)

            def endchk():
                a.i('v_max_f32 %s, %s, %s' % (vr(M0_), vr(M0_), vr(M1_)))
                a.i('v_cmp_lt_f32 vcc, %s, %s' % (f32hex(THR), vr(M0_)))
                a.i('s_cbranch_vccnz L_q%s_%s' % ('setj' if flag('norare') else 'setf', tag))
                a.label('L_qsetj_%s' % tag)
            fill.setdefault(41, []).append(endchk)
            q_setf.append((tag, par))
        run_stream(a, mf, fill)
        a.i('s_add_u32 %s, %s, 1' % (sr(S_P), sr(S_P)))
        a.i('s_waitcnt lgkmcnt(0)')
        barrier(a)

    qk_phase(0, True, False, 'p0')
    ad = Q_T[0]
    a.i('v_and_b32 %s, 15, %s' % (vr(ad), vr(V_LANE)))
    a.i('v_lshlrev_b32 %s, 7, %s' % (vr(ad), vr(ad)))
    a.i('v_add_u32 %s, %d, %s' % (vr(ad), RM, vr(ad)))
    for i in range(5):
        a.i('ds_read_b128 %s, %s offset:%d' % (vr(Q_S(1, i), 4), vr(ad), 16 * i))
    for i in range(5):
        R = Q_S(1, i)
        a.i('v_max3_f32 %s, %s, %s, %s' % (vr(R), vr(R), vr(R + 1), vr(R + 2)))
        a.i('v_max_f32 %s, %s, %s' % (vr(R), vr(R), vr(R + 3)))
        for r in range(4):
            a.i('v_sub_f32 %s, 0, %s' % (vr(Q_MQ(i) + r), vr(R)))
    for i in range(5):
        for r in range(4):
            a.i('v_add_f32 %s, %s, %s' % (vr(Q_S(0, i) + r), vr(Q_S(0, i) + r), vr(Q_MQ(i))))
    a.label('L_qloop')
    INLOOP[0] = True
    qk_phase(1, True, True, 'odd')
    a.i('s_cmp_eq_u32 %s, 16' % sr(S_P))
    a.i('s_cbranch_scc1 L_qdone')
    if not QLAG:
        a.i('s_cmp_eq_u32 %s, 14' % sr(S_P))
        a.i('s_cbranch_scc0 L_qnosw')
        switch_to_wo(a, (Q_T[0], Q_T[1]))
        a.label('L_qnosw')
    qk_phase(0, True, True, 'even')
    a.i('s_branch L_qloop')
    a.reset()
    a.label('L_qdone')
    INLOOP[0] = False
    if QLAG:
        for x in dma_unit(8192 + 3 * 2048, True):
            a.i(x)
    qk_phase(0, False, True, 'p16')
    ad4, adw, t5 = Q_T[0], Q_T[1], Q_T[3]
    a.i('v_and_b32 %s, 15, %s' % (vr(ad4), vr(V_LANE)))
    a.i('v_lshlrev_b32 %s, 7, %s' % (vr(ad4), vr(ad4)))
    a.i('s_lshl_b32 %s, %s, 2' % (sr(S_T0), sr(S_W)))
    a.i('s_add_u32 %s, %s, %d' % (sr(S_T0), sr(S_T0), RM))
    a.i('v_add_u32 %s, %s, %s' % (vr(ad4), sr(S_T0), vr(ad4)))
    a.i('v_bfe_u32 %s, %s, 4, 1' % (vr(adw), vr(V_LANE)))
    a.i('v_lshlrev_b32 %s, 5, %s' % (vr(adw), vr(adw)))
    a.i('v_lshrrev_b32 %s, 5, %s' % (vr(t5), vr(V_LANE)))
    a.i('v_lshlrev_b32 %s, 4, %s' % (vr(t5), vr(t5)))
    a.i('v_add3_u32 %s, %s, %s, %s' % (vr(adw), vr(adw), vr(t5), vr(ad4)))
    L = [Q_L + i for i in range(5)]
    a.i('v_permlane32_swap_b32 %s, %s' % (vr(L[0]), vr(L[1])))
    a.i('v_permlane32_swap_b32 %s, %s' % (vr(L[2]), vr(L[3])))
    a.i('v_add_f32 %s, %s, %s' % (vr(L[0]), vr(L[0]), vr(L[1])))
    a.i('v_add_f32 %s, %s, %s' % (vr(L[2]), vr(L[2]), vr(L[3])))
    xreduce(a, 'v_add_f32', L[4], t5)
    a.i('v_permlane16_swap_b32 %s, %s' % (vr(L[0]), vr(L[2])))
    a.i('v_add_f32 %s, %s, %s' % (vr(L[0]), vr(L[0]), vr(L[2])))
    a.i('ds_write_b32 %s, %s offset:64' % (vr(ad4), vr(L[4])))
    a.i('ds_write_b32 %s, %s' % (vr(adw), vr(L[0])))
    a.i('s_waitcnt lgkmcnt(0)')
    addr_T_read(a, G_TA, (G_T[0], G_T[1]), S_RING)
    addr_U_read(a, G_UB, (G_T[0], G_T[1]), base_imm=OB)
    for k in range(20):
        for r in range(4):
            a.i('v_mov_b32 %s, 0' % vr(ACC_W(k // 5, k % 5) + r))
    a.i('s_waitcnt vmcnt(0)')
    barrier(a)
    barrier(a)
    a.i('s_cmp_eq_u32 %s, 3' % sr(S_W))
    a.i('s_cbranch_scc1 L_fin')
    a.i('s_branch L_oproj')
    a.reset()
    for tag, par in q_setf:
        a.label('L_qsetf_%s' % tag)
        a.i('s_add_u32 %s, %s, 1' % (sr(S_T0), sr(S_P)))
        a.i('v_mov_b32 %s, %s' % (vr(Q_T[5]), sr(S_T0)))
        a.i('ds_write_b32 %s, %s offset:%d' % (vr(Q_FLA), vr(Q_T[5]), par * 4))
        a.i('s_branch L_qsetj_%s' % tag)
        a.reset()
    for tag, par, has_cur in q_rare:
        pp = 1 - par
        a.label('L_qrare_%s' % tag)
        a.fence(10)
        ad, t0, mx = Q_T[1], Q_T[0], Q_T[6]
        a.i('v_and_b32 %s, 15, %s' % (vr(ad), vr(V_LANE)))
        a.i('v_lshlrev_b32 %s, 5, %s' % (vr(ad), vr(ad)))
        a.i('v_add_u32 %s, %d, %s' % (vr(ad), SM, vr(ad)))
        a.i('s_lshl_b32 %s, %s, 9' % (sr(S_T0), sr(S_W)))
        a.i('v_add_u32 %s, %s, %s' % (vr(Q_T[3]), sr(S_T0), vr(ad)))
        for i in range(5):
            S = Q_S(pp, i)
            a.i('v_max3_f32 %s, %s, %s, %s' % (vr(mx), vr(S), vr(S + 1), vr(S + 2)))
            a.i('v_max_f32 %s, %s, %s' % (vr(mx), vr(mx), vr(S + 3)))
            xreduce(a, 'v_max_f32', mx, t0)
            a.i('ds_write_b32 %s, %s offset:%d' % (vr(Q_T[3]), vr(mx), RM - SM + 4 * i))
        a.i('s_waitcnt lgkmcnt(0)')
        a.i('s_barrier')
        for i in range(5):
            r4 = [Q_T[3], Q_T[4], Q_T[5], Q_T[0]]
            for w in range(4):
                a.i('ds_read_b32 %s, %s offset:%d' % (vr(r4[w]), vr(ad), RM - SM + w * 512 + 4 * i))
            a.i('v_max3_f32 %s, %s, %s, %s' % (vr(mx), vr(r4[0]), vr(r4[1]), vr(r4[2])))
            a.i('v_max3_f32 %s, %s, %s, %s' % (vr(mx), vr(mx), vr(r4[3]), 0))
            for r in range(4):
                a.i('v_sub_f32 %s, %s, %s' % (vr(Q_S(pp, i) + r), vr(Q_S(pp, i) + r), vr(mx)))
                if has_cur:
                    a.i('v_sub_f32 %s, %s, %s' % (vr(Q_S(par, i) + r), vr(Q_S(par, i) + r), vr(mx)))
                a.i('v_sub_f32 %s, %s, %s' % (vr(Q_MQ(i) + r), vr(Q_MQ(i) + r), vr(mx)))
            a.i('v_exp_f32 %s, -%s' % (vr(t0), vr(mx)))
            a.i('v_mul_f32 %s, %s, %s' % (vr(Q_L + i), vr(Q_L + i), vr(t0)))
            a.i('ds_write_b32 %s, %s offset:%d' % (vr(ad), vr(t0), AL - SM + pp * 512 + 4 * i))
        a.i('s_waitcnt lgkmcnt(0)')
        a.fence(4)
        a.i('s_branch L_qjoin_%s' % tag)
        a.reset()

    a.label('L_pv')
    ROLE[0] = 'p'
    GT = (G_T[0], G_T[1])
    addr_T_read(a, G_TA, GT)
    a.i('v_mov_b32 %s, %s' % (vr(G_T[2]), vr(G_TA[0])))
    addr_U_read(a, G_UB, GT)
    a.i('v_mov_b32 %s, %s' % (vr(G_T[3]), vr(G_UB[0])))
    for k in range(80):
        a.i('v_mov_b32 %s, 0' % vr(176 + k))
    a.i('s_waitcnt lgkmcnt(0)')
    stamp_init(a)
    common_srds()
    build_srd(a, SRD_ST, S_V, S_T2, 524288)
    a.i('s_add_u32 %s, %s, 3' % (sr(S_CG), sr(S_W)))
    a.i('s_mov_b32 %s, %s' % (sr(S_C), f32hex(CSCALE)))
    a.i('s_mov_b32 %s, %s' % (sr(S_C + 1), f32hex(CSCALE)))
    a.i('s_lshl_b32 %s, %s, 13' % (sr(S_T0), sr(S_W)))
    a.i('s_add_u32 %s, %s, %d' % (sr(S_WCUR), sr(S_T0), WSLOT[0]))
    a.i('s_add_u32 %s, %s, %d' % (sr(S_WN1), sr(S_T0), WSLOT[1]))
    a.i('s_add_u32 %s, %s, %d' % (sr(S_WN2), sr(S_T0), WSLOT[2]))
    a.i('s_mov_b32 %s, %d' % (sr(S_XCUR), XSLOT[0]))
    a.i('s_mov_b32 %s, %d' % (sr(S_XN1), XSLOT[1]))
    a.i('s_mov_b32 %s, %d' % (sr(S_XN2), XSLOT[2]))
    a.i('s_mov_b32 %s, 0' % sr(S_P))

    def q_addr_update():
        out = ['v_add_u32 %s, %s, %s' % (vr(G_TA[0]), sr(S_WCUR), vr(G_T[2])),
               'v_add_u32 %s, %s, %s' % (vr(G_UB[0]), sr(S_XCUR), vr(G_T[3]))]
        for k in (1, 2, 3):
            out.append('v_xor_b32 %s, %d, %s' % (vr(G_TA[k]), 32 * k, vr(G_TA[0])))
        out.append('v_xor_b32 %s, 64, %s' % (vr(G_UB[1]), vr(G_UB[0])))
        out += ['s_mov_b32 %s, %s' % (sr(S_T0), sr(S_WCUR)), 's_mov_b32 %s, %s' % (sr(S_WCUR), sr(S_WN1)),
                's_mov_b32 %s, %s' % (sr(S_WN1), sr(S_WN2)), 's_mov_b32 %s, %s' % (sr(S_WN2), sr(S_T0)),
                's_mov_b32 %s, %s' % (sr(S_T0), sr(S_XCUR)), 's_mov_b32 %s, %s' % (sr(S_XCUR), sr(S_XN1)),
                's_mov_b32 %s, %s' % (sr(S_XN1), sr(S_XN2)), 's_mov_b32 %s, %s' % (sr(S_XN2), sr(S_T0))]
        return out

    XI = lambda i: i * 2048
    for x in q_addr_update():
        a.i(x)
    barrier(a)
    A0 = a_reads(0, 0)
    for x in A0[0:2] + b_reads(0, XI) + A0[2:]:
        a.i(x)
    a.label('L_qproj')
    fill = {}
    spread(fill, b_reads(1, XI) + a_reads(1, 4096), 1, 8)
    spread(fill, q_addr_update(), 12, 19)
    run_stream(a, half_mfmas(a, ACC_O, 0), fill)
    a.i('s_waitcnt lgkmcnt(0)')
    barrier(a)
    fill = {}
    A0 = a_reads(0, 0)
    spread(fill, A0[0:2] + b_reads(0, XI) + A0[2:], 0, 9)
    fill.setdefault(17, []).extend(['s_add_u32 %s, %s, 1' % (sr(S_P), sr(S_P)), 's_cmp_lt_u32 %s, 7' % sr(S_P)])
    run_stream(a, half_mfmas(a, ACC_O, 1), fill)
    a.i('s_cbranch_scc1 L_qproj')
    a.i('s_waitcnt lgkmcnt(0)')

    WA = [G_T[4], G_T[5], G_T[6], G_T[0]]

    def write_D_addr():
        return ['v_xor_b32 %s, %d, %s' % (vr(WA[ai]), 32 * ai, vr(G_T[4])) for ai in range(1, 4)]

    def write_D_ops(acc, ai, i, imm, scale):
        R = acc(ai, i)
        return ['v_pk_mul_f32 %s, %s, %s' % (vr(R, 2), vr(R, 2), scale),
                'v_pk_mul_f32 %s, %s, %s' % (vr(R + 2, 2), vr(R + 2, 2), scale),
                'v_cvt_pk_bf16_f32 %s, %s, %s' % (vr(R), vr(R), vr(R + 1)),
                'v_cvt_pk_bf16_f32 %s, %s, %s' % (vr(R + 1), vr(R + 2), vr(R + 3)),
                'ds_write_b64 %s, %s offset:%d' % (vr(WA[ai]), vr(R, 2), imm)]

    def write_D(acc, base_imm_of_i, scale):
        for x in write_D_addr():
            a.i(x)
        for ai in range(4):
            for i in range(5):
                for x in write_D_ops(acc, ai, i, base_imm_of_i(i), scale(i)):
                    a.i(x)
        a.i('s_waitcnt lgkmcnt(0)')

    addr_D_write(a, G_T[4], GT)
    a.i('s_lshl_b32 %s, %s, 11' % (sr(S_T0), sr(S_W)))
    a.i('v_add_u32 %s, %s, %s' % (vr(G_T[4]), sr(S_T0), vr(G_T[4])))
    a.i('v_mov_b32 %s, %d' % (vr(G_FLA), FL))
    a.i('v_mov_b32 %s, 0' % vr(G_AL))
    a.i('v_mov_b32 %s, 0' % vr(G_AL + 1))
    a.i('ds_write_b64 %s, %s' % (vr(G_FLA), vr(G_AL, 2)))
    write_D(ACC_O, lambda i: QB + i * 8192, lambda i: sr(S_C, 2))
    barrier(a)
    pat_T(a, V_PAT, GT, 512)
    a.i('s_lshl_b32 %s, %s, 7' % (sr(S_SOFF), sr(S_W)))
    a.i('s_mov_b32 %s, 8192' % sr(S_STEPU))
    a.i('s_mov_b32 %s, 8192' % sr(S_STEPL))
    a.i('s_lshl_b32 %s, %s, 14' % (sr(S_RING), sr(S_W)))
    a.i('v_add_u32 %s, %s, %s' % (vr(G_TA[0]), sr(S_RING), vr(G_T[2])))
    for k in (1, 2, 3):
        a.i('v_xor_b32 %s, %d, %s' % (vr(G_TA[k]), 32 * k, vr(G_TA[0])))
    a.i('v_add_u32 %s, %d, %s' % (vr(G_UB[0]), PB, vr(G_T[3])))
    a.i('v_xor_b32 %s, 64, %s' % (vr(G_UB[1]), vr(G_UB[0])))
    a.i('v_and_b32 %s, 15, %s' % (vr(G_ALA), vr(V_LANE)))
    a.i('v_lshlrev_b32 %s, 5, %s' % (vr(G_ALA), vr(G_ALA)))
    a.i('v_add_u32 %s, %d, %s' % (vr(G_ALA), SM, vr(G_ALA)))
    for k in range(80):
        a.i('v_mov_b32 %s, 0' % vr(176 + k))
    for k in range(20):
        for r in range(4):
            a.i('v_mov_b32 %s, 0' % vr(ACC_W(k // 5, k % 5) + r))
    for r in range(20):
        a.i('v_mov_b32 %s, 0' % vr(G_BF(1, 0) + r))
    for r in range(16):
        a.i('v_mov_b32 %s, 0' % vr(G_AF(1, 0) + r))
    a.i('s_mov_b32 %s, 0' % sr(S_PEND))
    barrier(a)
    for k in range(6):
        for x in dma_unit(k * 2048, False):
            a.i(x)
    barrier(a)
    a.i('s_mov_b32 %s, 2' % sr(S_P))

    pv_rare = []
    pv_sync = []

    def gemm_phase(par, acc, bimm, vm, refill, tag=None, bar=True, part1_mfma=True, reads=True):
        fill = {}
        if reads:
            pre = []
            if tag is not None:
                pre.append('ds_read_b32 %s, %s offset:%d' % (vr(G_T[6]), vr(G_FLA), (1 - par) * 4))
            pre += b_reads(0, bimm)
            pre.append('s_waitcnt vmcnt(%d)' % vm[0])
            pre += a_reads(0, par * 8192)
            if part1_mfma:
                spread(fill, pre, 0, 9)
            else:
                fill[-1] = pre
        if tag is not None:
            def br():
                a.i('v_cmp_eq_u32 vcc, %s, %s' % (sr(S_P), vr(G_T[6])))
                a.i('s_cbranch_vccnz L_p%s_%s' % ('syncj' if flag('norare') else 'sync', tag))
                a.label('L_psyncj_%s' % tag)
            fill.setdefault(6, []).append(br)
            pv_sync.append(tag)
        if refill[0]:
            place_dma(fill, (1 - par) * 8192 + 4096, False, PD[0], PD[1])
            place_dma(fill, (1 - par) * 8192 + 6144, True, PD[2], PD[3])
        run_stream(a, half_mfmas(a, acc, 1) if part1_mfma else [], fill)
        if not reads:
            return
        if tag is not None:
            a.i('s_cmp_lg_u32 %s, 0' % sr(S_PEND))
            a.i('s_cbranch_scc1 L_prare_%s' % tag)
            a.label('L_pjoin_%s' % tag)
            a.i('s_mov_b32 %s, %s' % (sr(S_PEND), sr(S_PEND2)))
            pv_rare.append((tag, par))
            if tag == 'even':
                a.i('s_cmp_eq_u32 %s, 16' % sr(S_P))
                a.i('s_cbranch_scc0 L_pnosw')
                switch_to_wo(a, GT)
                a.label('L_pnosw')
        a.i('s_waitcnt lgkmcnt(0)')
        fill = {}
        spread(fill, b_reads(1, bimm) + ['s_waitcnt vmcnt(%d)' % vm[1]] + a_reads(1, par * 8192 + 4096), 0, 9)
        if refill[1]:
            place_dma(fill, par * 8192, False, PD[4], PD[5])
            place_dma(fill, par * 8192 + 2048, False, PD[6], PD[7])
        if tag is not None:
            fill.setdefault(14, []).extend(['s_add_u32 %s, %s, 1' % (sr(S_P), sr(S_P)), 's_mov_b32 %s, 0' % sr(S_PEND2)])
        run_stream(a, half_mfmas(a, acc, 0), fill)
        a.i('s_waitcnt lgkmcnt(0)')
        if bar:
            barrier(a)

    a.i('s_mov_b32 %s, 0' % sr(S_PEND2))
    a.label('L_ploop')
    INLOOP[0] = True
    gemm_phase(0, ACC_O, lambda i: i * 2048, (8, 8), (True, True), 'even')
    gemm_phase(1, ACC_O, lambda i: 10240 + i * 2048, (8, 8), (True, True), 'odd')
    a.i('s_cmp_lt_u32 %s, 18' % sr(S_P))
    a.i('s_cbranch_scc1 L_ploop')
    INLOOP[0] = False
    LT = G_BF(0, 0)
    RI = G_AF(0, 0)
    fill = {}
    pre = ['v_and_b32 %s, 15, %s' % (vr(G_T[1]), vr(V_LANE)),
           'v_lshlrev_b32 %s, 7, %s' % (vr(G_T[1]), vr(G_T[1])),
           'v_add_u32 %s, %d, %s' % (vr(G_T[1]), RM, vr(G_T[1]))]
    pre += ['ds_read_b128 %s, %s offset:%d' % (vr(LT + 4 * i, 4), vr(G_T[1]), 16 * i) for i in range(5)]
    fill[-1] = pre
    place_dma(fill, 8192 + 4096, False, 1, 2)
    place_dma(fill, 8192 + 6144, True, 4, 5)
    fill.setdefault(0, []).append('v_add_u32 %s, %d, %s' % (vr(G_T[4]), OB, vr(G_T[4])))
    fill.setdefault(3, []).extend(write_D_addr())
    rc = []
    for i in range(5):
        R = LT + 4 * i
        rc += ['v_add_f32 %s, %s, %s' % (vr(R), vr(R), vr(R + 1)),
               'v_add_f32 %s, %s, %s' % (vr(R + 2), vr(R + 2), vr(R + 3)),
               'v_add_f32 %s, %s, %s' % (vr(R), vr(R), vr(R + 2)),
               'v_rcp_f32 %s, %s' % (vr(RI + 2 * i), vr(R)),
               'v_rcp_f32 %s, %s' % (vr(RI + 2 * i + 1), vr(R))]
    spread(fill, rc, 5, 10)
    for ai in range(4):
        for i in range(5):
            m = 11 + (ai * 5 + i) * 3 // 5
            fill.setdefault(max(m, ai * 5 + i + 3), []).extend(write_D_ops(ACC_O, ai, i, i * 8192, vr(RI + 2 * i, 2)))
    run_stream(a, half_mfmas(a, ACC_O, 1), fill)
    a.i('s_waitcnt lgkmcnt(0)')
    a.i('v_add_u32 %s, %d, %s' % (vr(G_UB[0]), OB, vr(G_T[3])))
    a.i('v_xor_b32 %s, 64, %s' % (vr(G_UB[1]), vr(G_UB[0])))
    barrier(a)
    a.label('L_oproj')
    a.fence(4)
    OI = lambda tau: (lambda i: (i * 4 + tau) * 2048)
    gemm_phase(0, ACC_W, OI(0), (12, 8), (False, True), None, bar=False, part1_mfma=False)
    gemm_phase(1, ACC_W, OI(1), (8, 8), (True, True), None, bar=False)
    gemm_phase(0, ACC_W, OI(2), (8, 8), (True, False), None, bar=False)
    gemm_phase(1, ACC_W, OI(3), (4, 0), (False, False), None, bar=False)
    gemm_phase(0, ACC_W, None, None, (False, False), None, reads=False)
    stamp(a)
    a.i('v_lshlrev_b32 %s, 4, %s' % (vr(GT[0]), vr(V_LANE)))
    a.i('s_mul_i32 %s, %s, 10240' % (sr(S_T0), sr(S_CG)))
    k = 0
    for i in range(5):
        for ap in range(2):
            R0, R1 = ACC_W(2 * ap, i), ACC_W(2 * ap + 1, i)
            a.i('v_cvt_pk_bf16_f32 %s, %s, %s' % (vr(R0), vr(R0), vr(R0 + 1)))
            a.i('v_cvt_pk_bf16_f32 %s, %s, %s' % (vr(R0 + 1), vr(R0 + 2), vr(R0 + 3)))
            a.i('v_cvt_pk_bf16_f32 %s, %s, %s' % (vr(R0 + 2), vr(R1), vr(R1 + 1)))
            a.i('v_cvt_pk_bf16_f32 %s, %s, %s' % (vr(R0 + 3), vr(R1 + 2), vr(R1 + 3)))
            a.i('buffer_store_dwordx4 %s, %s, %s, %s offen offset:%d' % (vr(R0, 4), vr(GT[0]), sr(SRD_PO, 4), sr(S_T0), (k % 4) * 1024))
            k += 1
            if k % 4 == 0:
                a.i('s_add_u32 %s, %s, 4096' % (sr(S_T0), sr(S_T0)))
    a.label('L_fin')
    stamp_flush(a)
    a.label('L_end')
    a.i('s_endpgm')
    a.reset()
    for tag in pv_sync:
        a.label('L_psync_%s' % tag)
        a.i('s_barrier')
        a.i('s_mov_b32 %s, 1' % sr(S_PEND2))
        a.i('s_branch L_psyncj_%s' % tag)
        a.reset()
    for tag, par in pv_rare:
        a.label('L_prare_%s' % tag)
        a.i('ds_read_b128 %s, %s offset:%d' % (vr(G_AL, 4), vr(G_ALA), AL - SM + par * 512))
        a.i('ds_read_b32 %s, %s offset:%d' % (vr(G_AL + 4), vr(G_ALA), AL - SM + par * 512 + 16))
        a.i('s_waitcnt lgkmcnt(0)')
        a.fence(10)
        for ai in range(4):
            for i in range(5):
                for r in range(4):
                    R = ACC_O(ai, i) + r
                    a.i('v_mul_f32 %s, %s, %s' % (vr(R), vr(R), vr(G_AL + i)))
        a.fence(4)
        a.i('s_branch L_pjoin_%s' % tag)
        a.reset()


from gen import gen_reduce, HEADER, kd


def main():
    out = ARGS[0] if ARGS and not ARGS[0].startswith('--') else 'standalone__gqa_block_cached__near_ridge.s'
    a = Asm()
    gen_main(a, 'standalone__gqa_block_cached__near_ridge_kernel')
    gen_reduce(a, 'gqa_reduce_kernel')
    txt = HEADER + a.text() + '.section .rodata,"a"\n.p2align 6\n' + \
        kd('standalone__gqa_block_cached__near_ridge_kernel', 256, 96) + '.p2align 6\n' + kd('gqa_reduce_kernel', 80, 32)
    open(out, 'w').write(txt)
    print('wrote', out, a.nins, 'instructions')


if __name__ == '__main__':
    main()
```

```python
import struct, sys, math
from asmlib import Asm, vr, sr

ARGS = sys.argv[1:]
def opt(name, default=None):
    for x in ARGS:
        if x.startswith('--' + name + '='):
            return x.split('=', 1)[1]
    return default
def flag(name):
    return ('--' + name) in ARGS

K1 = 1024
KR0 = 64 * K1
PB = 128 * K1
SM = 152 * K1
FL = SM
AL = SM + 512
RM = SM + 1536
OB = 112 * K1
WSLOT = [128 * K1, 64 * K1, 96 * K1]
XSLOT = [40 * K1, 0, 10 * K1]
QB = 0
LDS_BYTES = 160 * K1


def f32hex(x):
    return '0x%08x' % struct.unpack('<I', struct.pack('<f', x))[0]


CSCALE = math.log2(math.e) / 16.0
THR = 8.0

S_X, S_K, S_V, S_WQ, S_WO, S_OUT, S_DBG, S_WS = 4, 6, 8, 10, 12, 14, 16, 18
S_WAVE, S_W, S_B, S_HKV, S_H, S_GRP = 20, 21, 22, 23, 24, 25
S_T0, S_T1, S_T2, S_T3 = 26, 27, 28, 29
S_C = 30
SRD_ST, SRD_WQ, SRD_X, SRD_WO, SRD_PO = 32, 36, 40, 44, 48
S_SOFF, S_STEPU, S_STEPL, S_RING, S_P, S_LO = 52, 53, 54, 55, 56, 57
S_CG = 58
S_XL = [59, 60, 61]
S_XG = [62, 63, 64]
S_WCUR, S_WN1, S_WN2, S_XCUR, S_XN1, S_XN2 = 65, 66, 67, 68, 69, 70
S_WQOFF = 71
S_PEND = 80
S_PEND2 = 81

V_LANE = 1
G_TA = [2, 3, 4, 5]
G_UB = [6, 7]
V_PAT = [8, 9]
G_FLA = 10
G_ALA = 11
G_AL = 12
G_T = [17, 18, 19, 20, 21, 22, 23]
G_BF = lambda e, i: 72 + e * 20 + i * 4
G_AF = lambda e, a: 112 + e * 16 + a * 4
ACC_O = lambda a, i: 176 + (a * 5 + i) * 4


def ACC_W(a, i):
    k = a * 5 + i
    return 144 + k * 4 if k < 8 else 24 + (k - 8) * 4


Q_UA = [2, 3]
Q_PWA = 4
Q_FLA = 5
Q_T = [6, 7, 18, 16, 17, 18, 19]
Q_PWA2 = 10
Q_L = 11
Q_MQ = lambda i: 20 + 4 * i
Q_KF = lambda k: 40 + k * 4
Q_S = lambda par, i: 56 + par * 20 + i * 4
Q_Q = lambda i, s: 96 + (i * 8 + s) * 4

MFMA = 'v_mfma_f32_16x16x32_bf16'
STAMPS = flag('stamps')
KVPOL = ' nt' if flag('nt') else ''
ROLE = ['q']
QLAG = flag('qlag')
PD = [int(x) for x in opt('pdma', '10,13,16,19,10,13,16,19').split(',')]
INLOOP = [False]


def stamp(a):
    if not STAMPS:
        return
    a.i('s_memrealtime s[72:73]' if flag('rt') else 's_memtime s[72:73]')
    a.i('s_waitcnt lgkmcnt(0)')
    a.i('s_mov_b32 m0, s74')
    a.i('s_nop 0')
    a.i('v_writelane_b32 v0, s72, m0')
    a.i('s_add_u32 s74, s74, 1')


def barrier(a):
    if flag('pre'):
        stamp(a)
    a.i('s_barrier')
    stamp(a)


def stamp_init(a):
    if not STAMPS:
        return
    a.i('s_mov_b32 s74, 0')
    a.i('s_lshl_b32 s75, s2, 3')
    a.i('s_add_u32 s75, s75, %s' % sr(S_WAVE))
    a.i('s_lshl_b32 s75, s75, 8')
    a.i('s_add_u32 s75, s75, %d' % (128 << 20))
    a.i('s_add_u32 s76, %s, s75' % sr(S_WS))
    a.i('s_addc_u32 s77, %s, 0' % sr(S_WS + 1))
    a.i('s_mov_b32 s78, 256')
    a.i('s_mov_b32 s79, 0x20000')
    a.i('v_mov_b32 v0, 0')
    a.i('s_memrealtime s[72:73]')
    a.i('s_waitcnt lgkmcnt(0)')
    a.i('v_writelane_b32 v0, s72, 62')
    stamp(a)


def stamp_flush(a):
    if not STAMPS:
        return
    a.i('s_waitcnt vmcnt(0)')
    stamp(a)
    a.i('s_memrealtime s[72:73]')
    a.i('s_waitcnt lgkmcnt(0)')
    a.i('v_writelane_b32 v0, s72, 63')
    a.i('v_lshlrev_b32 v2, 2, %s' % vr(V_LANE))
    if flag('dbg'):
        a.i('s_cmp_eq_u32 s2, %s' % opt('dbgwg', '0'))
        a.i('s_cbranch_scc0 L_end')
        a.i('s_cmp_eq_u32 %s, 4' % sr(S_WAVE))
        a.i('s_cbranch_scc0 L_end')
        a.i('s_mov_b32 s76, %s' % sr(S_DBG))
        a.i('s_mov_b32 s77, %s' % sr(S_DBG + 1))
        a.i('s_mov_b32 s78, 64')
        a.i('v_readlane_b32 s72, v0, 0')
        a.i('s_nop 4')
        a.i('v_subrev_u32 v0, s72, v0')
        a.i('v_lshlrev_b32 v2, 1, %s' % vr(V_LANE))
        a.i('v_and_b32 v3, 1, %s' % vr(V_LANE))
        a.i('v_lshlrev_b32 v3, 10, v3')
        a.i('v_add_u32 v2, v2, v3')
    a.i('buffer_store_dword v0, v2, s[76:79], 0 offen')


def mfma(a, d, A, B, c=None):
    a.i('%s %s, %s, %s, %s' % (MFMA, vr(d, 4), vr(A, 4), vr(B, 4), vr(d, 4) if c is None else c))


def build_srd(a, srd, ptr, off_sgpr, nrec):
    a.i('s_add_u32 %s, %s, %s' % (sr(srd), sr(ptr), sr(off_sgpr)))
    a.i('s_addc_u32 %s, %s, 0' % (sr(srd + 1), sr(ptr + 1)))
    a.i('s_mov_b32 %s, %s' % (sr(srd + 2), nrec))
    a.i('s_mov_b32 %s, 0x20000' % sr(srd + 3))


def pat_U(a, dst, tmp, R, sub=True):
    t0, t1 = tmp
    a.i('v_lshrrev_b32 %s, 3, %s' % (vr(t1), vr(V_LANE)))
    a.i('v_and_b32 %s, 7, %s' % (vr(t0), vr(V_LANE)))
    a.i('v_xor_b32 %s, %s, %s' % (vr(t0), vr(t0), vr(t1)))
    a.i('v_lshlrev_b32 %s, 4, %s' % (vr(t0), vr(t0)))
    a.i('v_mul_u32_u24 %s, %d, %s' % (vr(t1), R, vr(t1)))
    a.i('v_add_u32 %s, %s, %s' % (vr(dst[0]), vr(t0), vr(t1)))
    a.i('v_add_u32 %s, %d, %s' % (vr(dst[1]), 8 * R - (1024 if sub else 0), vr(dst[0])))


def pat_T(a, dst, tmp, R):
    t0, t1 = tmp
    a.i('v_lshrrev_b32 %s, 3, %s' % (vr(t0), vr(V_LANE)))
    a.i('v_and_b32 %s, 2, %s' % (vr(t0), vr(t0)))
    a.i('v_and_b32 %s, 7, %s' % (vr(t1), vr(V_LANE)))
    a.i('v_xor_b32 %s, %s, %s' % (vr(t0), vr(t0), vr(t1)))
    a.i('v_lshlrev_b32 %s, 4, %s' % (vr(t0), vr(t0)))
    a.i('v_lshrrev_b32 %s, 3, %s' % (vr(t1), vr(V_LANE)))
    a.i('v_mul_u32_u24 %s, %d, %s' % (vr(t1), R, vr(t1)))
    a.i('v_add_u32 %s, %s, %s' % (vr(dst[0]), vr(t0), vr(t1)))
    a.i('v_xor_b32 %s, 64, %s' % (vr(t0), vr(t0)))
    a.i('v_add_u32 %s, %s, %s' % (vr(dst[1]), vr(t0), vr(t1)))
    a.i('v_add_u32 %s, %d, %s' % (vr(dst[1]), 8 * R - 1024, vr(dst[1])))


def addr_U_read(a, dst, tmp, base_sgpr=None, base_imm=0):
    t0, t1 = tmp
    a.i('v_and_b32 %s, 15, %s' % (vr(t0), vr(V_LANE)))
    a.i('v_and_b32 %s, 7, %s' % (vr(t1), vr(V_LANE)))
    a.i('v_lshlrev_b32 %s, 7, %s' % (vr(t0), vr(t0)))
    a.i('v_lshrrev_b32 %s, 4, %s' % (vr(dst[0]), vr(V_LANE)))
    a.i('v_xor_b32 %s, %s, %s' % (vr(t1), vr(t1), vr(dst[0])))
    a.i('v_lshlrev_b32 %s, 4, %s' % (vr(t1), vr(t1)))
    a.i('v_add_u32 %s, %s, %s' % (vr(dst[0]), vr(t0), vr(t1)))
    if base_imm:
        a.i('v_add_u32 %s, %d, %s' % (vr(dst[0]), base_imm, vr(dst[0])))
    if base_sgpr is not None:
        a.i('v_add_u32 %s, %s, %s' % (vr(dst[0]), sr(base_sgpr), vr(dst[0])))
    a.i('v_xor_b32 %s, 64, %s' % (vr(dst[1]), vr(dst[0])))


def addr_T_read(a, dst, tmp, base_sgpr=None):
    t0, t1 = tmp
    a.i('v_lshrrev_b32 %s, 4, %s' % (vr(t0), vr(V_LANE)))
    a.i('v_lshlrev_b32 %s, 10, %s' % (vr(t0), vr(t0)))
    a.i('v_bfe_u32 %s, %s, 2, 2' % (vr(t1), vr(V_LANE)))
    a.i('v_lshlrev_b32 %s, 7, %s' % (vr(t1), vr(t1)))
    a.i('v_add_u32 %s, %s, %s' % (vr(t0), vr(t0), vr(t1)))
    a.i('v_and_b32 %s, 3, %s' % (vr(t1), vr(V_LANE)))
    a.i('v_lshlrev_b32 %s, 3, %s' % (vr(t1), vr(t1)))
    a.i('v_add_u32 %s, %s, %s' % (vr(t0), vr(t0), vr(t1)))
    a.i('v_bfe_u32 %s, %s, 3, 2' % (vr(t1), vr(V_LANE)))
    a.i('v_lshlrev_b32 %s, 5, %s' % (vr(t1), vr(t1)))
    a.i('v_add_u32 %s, %s, %s' % (vr(dst[0]), vr(t0), vr(t1)))
    if base_sgpr is not None:
        a.i('v_add_u32 %s, %s, %s' % (vr(dst[0]), sr(base_sgpr), vr(dst[0])))
    for k in (1, 2, 3):
        a.i('v_xor_b32 %s, %d, %s' % (vr(dst[k]), 32 * k, vr(dst[0])))


def addr_D_write(a, dst, tmp, chunk2_sgpr=None):
    t0, t1 = tmp
    a.i('v_and_b32 %s, 15, %s' % (vr(t0), vr(V_LANE)))
    a.i('v_and_b32 %s, 7, %s' % (vr(t1), vr(V_LANE)))
    a.i('v_lshlrev_b32 %s, 7, %s' % (vr(t0), vr(t0)))
    a.i('v_lshrrev_b32 %s, 5, %s' % (vr(dst), vr(V_LANE)))
    a.i('v_xor_b32 %s, %s, %s' % (vr(t1), vr(t1), vr(dst)))
    a.i('v_lshlrev_b32 %s, 4, %s' % (vr(t1), vr(t1)))
    a.i('v_add_u32 %s, %s, %s' % (vr(t0), vr(t0), vr(t1)))
    a.i('v_bfe_u32 %s, %s, 4, 1' % (vr(t1), vr(V_LANE)))
    a.i('v_lshlrev_b32 %s, 3, %s' % (vr(t1), vr(t1)))
    a.i('v_add_u32 %s, %s, %s' % (vr(dst), vr(t0), vr(t1)))
    if chunk2_sgpr is not None:
        a.i('v_xor_b32 %s, %s, %s' % (vr(dst), sr(chunk2_sgpr), vr(dst)))


def dma_unit(lds_off, last):
    if flag('nodma') or flag('nodma' + ROLE[0]):
        return ['s_nop 0'] * 4
    return [
        's_add_u32 m0, %s, %d' % (sr(S_RING), lds_off),
        'buffer_load_dwordx4 %s, %s, %s offen%s lds' % (vr(V_PAT[0]), sr(SRD_ST, 4), sr(S_SOFF), KVPOL),
        'buffer_load_dwordx4 %s, %s, %s offen offset:1024%s lds' % (vr(V_PAT[1]), sr(SRD_ST, 4), sr(S_SOFF), KVPOL),
        's_add_u32 %s, %s, %s' % (sr(S_SOFF), sr(S_SOFF), sr(S_STEPL if last else S_STEPU)),
    ]


def place_dma(fill, lds_off, last, m_a, m_b):
    d = dma_unit(lds_off, last)
    fill.setdefault(m_a - 1, []).append(d[0])
    fill.setdefault(m_a, []).append(d[1])
    fill.setdefault(m_b, []).extend([d[2], d[3]])


def switch_to_wo(a, tmp):
    for k in range(3):
        a.i('s_mov_b32 %s, %s' % (sr(SRD_ST + k), sr(SRD_WO + k)))
    a.i('s_lshl_b32 %s, %s, 7' % (sr(S_SOFF), sr(S_CG)))
    a.i('s_mov_b32 %s, %d' % (sr(S_STEPU), 16 * 896))
    a.i('s_mov_b32 %s, %d' % (sr(S_STEPL), 16 * 896))
    pat_T(a, V_PAT, tmp, 896)


def run_stream(a, mf, fill):
    def emit(lst):
        for x in lst:
            if callable(x):
                x()
            else:
                if INLOOP[0]:
                    if flag('nopw') and x.startswith('ds_write'):
                        continue
                    if flag('notr') and x.startswith('ds_read_b64_tr'):
                        continue
                    if flag('nokr') and x.startswith('ds_read_b128') and ROLE[0] == 'q':
                        continue
                    if flag('nopr') and x.startswith('ds_read_b128') and ROLE[0] == 'p':
                        continue
                    if flag('novalu') and x.startswith('v_') and ROLE[0] == 'q' and not x.startswith('v_cmp'):
                        continue
                a.i(x)
    for m in sorted(k for k in fill if k < 0):
        emit(fill[m])
    for m, f in enumerate(mf):
        f()
        emit(fill.get(m, []))
    for m in sorted(k for k in fill if k >= len(mf)):
        emit(fill[m])


def spread(fill, items, m0, m1):
    n = len(items)
    span = m1 - m0 + 1
    for k, it in enumerate(items):
        m = m0 + (k * span) // n
        fill.setdefault(m, []).append(it)


def a_reads(e_dst, imm):
    out = []
    for ai in range(4):
        for hh in range(2):
            out.append('ds_read_b64_tr_b16 %s, %s offset:%d' % (vr(G_AF(e_dst, ai) + 2 * hh, 2), vr(G_TA[ai]), imm + hh * 512))
    return out


def b_reads(e, imm_of_i):
    return ['ds_read_b128 %s, %s offset:%d' % (vr(G_BF(e, i), 4), vr(G_UB[e]), imm_of_i(i)) for i in range(5)]


def half_mfmas(a, acc, e):
    return [(lambda ai=ai, i=i: mfma(a, acc(ai, i), G_AF(e, ai), G_BF(e, i))) for ai in range(4) for i in range(5)]


def xreduce(a, op, v, t):
    a.i('v_mov_b32 %s, %s' % (vr(t), vr(v)))
    a.i('v_permlane32_swap_b32 %s, %s' % (vr(v), vr(t)))
    a.i('%s %s, %s, %s' % (op, vr(v), vr(v), vr(t)))
    a.i('v_mov_b32 %s, %s' % (vr(t), vr(v)))
    a.i('v_permlane16_swap_b32 %s, %s' % (vr(v), vr(t)))
    a.i('%s %s, %s, %s' % (op, vr(v), vr(v), vr(t)))


def gen_main(a, name):
    a.raw('.globl %s' % name)
    a.raw('.p2align 8')
    a.raw('.type %s,@function' % name)
    a.label(name)
    a.i('s_cmp_ge_u32 s2, 256')
    a.i('s_cbranch_scc1 L_end')
    a.i('s_load_dwordx16 s[4:19], s[0:1], 0')
    a.i('v_and_b32 %s, 63, v0' % vr(V_LANE))
    a.i('v_lshrrev_b32 v2, 6, v0')
    a.i('v_readfirstlane_b32 %s, v2' % sr(S_WAVE))
    if flag('badmap'):
        a.i('s_and_b32 s26, s2, 3')
        a.i('s_lshl_b32 s26, s26, 3')
        a.i('s_bfe_u32 s27, s2, 0x30002')
        a.i('s_and_b32 s2, s2, 0xe0')
        a.i('s_or_b32 s2, s2, s26')
        a.i('s_or_b32 s2, s2, s27')
    a.i('s_and_b32 %s, s2, 7' % sr(S_HKV))
    a.i('s_lshr_b32 %s, s2, 5' % sr(S_B))
    a.i('s_bfe_u32 %s, s2, 0x10004' % sr(S_T0))
    a.i('s_bfe_u32 %s, s2, 0x10003' % sr(S_T1))
    a.i('s_lshl_b32 %s, %s, 1' % (sr(S_H), sr(S_HKV)))
    a.i('s_add_u32 %s, %s, %s' % (sr(S_H), sr(S_H), sr(S_T0)))
    a.i('s_lshl_b32 %s, %s, 1' % (sr(S_GRP), sr(S_B)))
    a.i('s_add_u32 %s, %s, %s' % (sr(S_GRP), sr(S_GRP), sr(S_T1)))
    a.i('s_and_b32 %s, %s, 3' % (sr(S_W), sr(S_WAVE)))
    a.i('s_cmp_ge_u32 %s, 4' % sr(S_WAVE))
    a.i('s_cbranch_scc1 L_pv')

    def common_srds():
        a.i('s_mul_i32 %s, %s, %d' % (sr(S_T0), sr(S_H), 229376))
        build_srd(a, SRD_WO, S_WO, S_T0, 229376)
        a.i('s_lshl_b32 %s, %s, 4' % (sr(S_T0), sr(S_GRP)))
        a.i('s_add_u32 %s, %s, %s' % (sr(S_T0), sr(S_T0), sr(S_H)))
        a.i('s_mul_i32 %s, %s, %d' % (sr(S_T0), sr(S_T0), 71680))
        build_srd(a, SRD_PO, S_WS, S_T0, 71680)
        a.i('s_lshl_b32 %s, %s, 3' % (sr(S_T0), sr(S_B)))
        a.i('s_add_u32 %s, %s, %s' % (sr(S_T0), sr(S_T0), sr(S_HKV)))
        if flag('kvsame'):
            a.i('s_mov_b32 %s, %s' % (sr(S_T0), sr(S_HKV)))
        a.i('s_lshl_b32 %s, %s, 19' % (sr(S_T2), sr(S_T0)))

    LWQ = [100, 101]
    LX = [102, 103]
    LT = (104, 105)
    pat_T(a, LWQ, LT, 8192)
    pat_U(a, LX, LT, 896, sub=False)
    a.i('s_and_b32 %s, %s, 1' % (sr(S_T0), sr(S_W)))
    a.i('s_cmp_eq_u32 %s, 1' % sr(S_T0))
    a.i('s_cselect_b64 vcc, -1, 0')
    a.i('v_cndmask_b32 %s, %s, %s, vcc' % (vr(LX[0]), vr(LX[0]), vr(LX[1])))
    for k in range(3):
        a.i('s_add_u32 %s, %s, %d' % (sr(S_T0), sr(S_W), 4 * k))
        if k == 2:
            a.i('s_add_u32 %s, %s, 4' % (sr(S_T1), sr(S_W)))
            a.i('s_cmp_ge_u32 %s, 10' % sr(S_T0))
            a.i('s_cselect_b32 %s, %s, %s' % (sr(S_T0), sr(S_T1), sr(S_T0)))
        a.i('s_lshl_b32 %s, %s, 10' % (sr(S_XL[k]), sr(S_T0)))
        a.i('s_lshr_b32 %s, %s, 1' % (sr(S_T0), sr(S_T0)))
        a.i('s_mul_i32 %s, %s, %d' % (sr(S_XG[k]), sr(S_T0), 16 * 896))
    a.i('s_lshl_b32 %s, %s, 7' % (sr(S_WQOFF), sr(S_W)))
    a.i('s_lshl_b32 %s, %s, 13' % (sr(S_T3), sr(S_W)))
    a.i('s_lshl_b32 %s, %s, 9' % (sr(S_T0), sr(S_H)))
    a.i('s_sub_u32 %s, %d, %s' % (sr(S_T1), 448 * 8192, sr(S_T0)))
    a.i('s_mul_i32 %s, %s, %d' % (sr(S_T2), sr(S_GRP), 71680))
    a.i('s_waitcnt lgkmcnt(0)')
    build_srd(a, SRD_WQ, S_WQ, S_T0, sr(S_T1))
    build_srd(a, SRD_X, S_X, S_T2, 71680)

    def issue_tile(c):
        sl = c % 3
        for k in range(3):
            a.i('s_add_u32 m0, %s, %d' % (sr(S_XL[k]), XSLOT[sl]))
            a.i('buffer_load_dwordx4 %s, %s, %s offen lds' % (vr(LX[0]), sr(SRD_X, 4), sr(S_XG[k])))
            a.i('s_add_u32 %s, %s, 128' % (sr(S_XG[k]), sr(S_XG[k])))
        for u in range(4):
            a.i('s_add_u32 m0, %s, %d' % (sr(S_T3), WSLOT[sl] + u * 2048))
            a.i('buffer_load_dwordx4 %s, %s, %s offen lds' % (vr(LWQ[0]), sr(SRD_WQ, 4), sr(S_WQOFF)))
            a.i('buffer_load_dwordx4 %s, %s, %s offen offset:1024 lds' % (vr(LWQ[1]), sr(SRD_WQ, 4), sr(S_WQOFF)))
            a.i('s_add_u32 %s, %s, %d' % (sr(S_WQOFF), sr(S_WQOFF), 16 * 8192))

    for c in range(2):
        issue_tile(c)
    stamp_init(a)
    common_srds()
    build_srd(a, SRD_ST, S_K, S_T2, 524288)
    a.i('s_mov_b32 %s, %s' % (sr(S_CG), sr(S_W)))
    a.i('s_cmp_eq_u32 %s, 3' % sr(S_W))
    a.i('s_cselect_b32 %s, 0, %s' % (sr(SRD_WO + 2), sr(SRD_WO + 2)))
    T2 = (Q_T[0], Q_T[1])
    pat_U(a, V_PAT, T2, 512)
    a.i('s_lshl_b32 %s, %s, 13' % (sr(S_SOFF), sr(S_W)))
    a.i('s_mov_b32 %s, 128' % sr(S_STEPU))
    a.i('s_mov_b32 %s, %d' % (sr(S_STEPL), 32768 - 384))
    a.i('s_lshl_b32 %s, %s, 14' % (sr(S_RING), sr(S_W)))
    a.i('s_add_u32 %s, %s, %d' % (sr(S_RING), sr(S_RING), KR0))
    a.i('s_lshl_b32 %s, %s, 5' % (sr(S_T0), sr(S_W)))
    addr_D_write(a, Q_PWA, T2, S_T0)
    a.i('v_add_u32 %s, %d, %s' % (vr(Q_PWA), PB, vr(Q_PWA)))
    a.i('v_bfe_u32 %s, %s, 4, 1' % (vr(T2[0]), vr(V_LANE)))
    a.i('v_mul_u32_u24 %s, %d, %s' % (vr(T2[0]), 2040, vr(T2[0])))
    a.i('v_add_u32 %s, %s, %s' % (vr(Q_PWA2), vr(T2[0]), vr(Q_PWA)))
    a.i('v_mov_b32 %s, %d' % (vr(Q_FLA), FL))
    for i in range(5):
        a.i('v_mov_b32 %s, 0' % vr(Q_L + i))
        for r in range(4):
            a.i('v_mov_b32 %s, 0' % vr(Q_MQ(i) + r))
    addr_U_read(a, Q_UA, T2)
    for c in range(7):
        n = 11 if c < 6 else 0
        a.i('s_waitcnt vmcnt(%d)' % n)
        barrier(a)
        if c <= 4:
            issue_tile(c + 2)
    for t in range(2):
        for u in range(4):
            if QLAG and t == 1 and u == 3:
                continue
            for x in dma_unit(t * 8192 + u * 2048, u == 3):
                a.i(x)
    barrier(a)
    QA = [Q_T[0], Q_T[1]]
    for e in range(2):
        a.i('v_mov_b32 %s, %s' % (vr(QA[e]), vr(Q_UA[e])))
        a.i('v_add_u32 %s, %s, %s' % (vr(Q_UA[e]), sr(S_RING), vr(Q_UA[e])))

    def qread(i, s):
        return 'ds_read_b128 %s, %s offset:%d' % (vr(Q_Q(i, s), 4), vr(QA[s & 1]), QB + (i * 4 + (s >> 1)) * 2048)

    def kread(par, s, buf):
        return 'ds_read_b128 %s, %s offset:%d' % (vr(Q_KF(buf), 4), vr(Q_UA[s & 1]), par * 8192 + (s >> 1) * 2048)

    a.i('s_waitcnt vmcnt(12)')
    a.i(kread(0, 0, 0))
    a.i(kread(0, 1, 1))
    a.i('s_waitcnt lgkmcnt(0)')
    a.i('s_mov_b32 %s, 0' % sr(S_P))
    barrier(a)

    q_rare = []
    q_setf = []

    def qk_phase(par, do_mfma, do_soft, tag):
        pp = 1 - par
        fill = {}
        mf = []
        if do_mfma:
            order = [(s, i) for s in range(6) for i in range(5)] + [(s, i) for i in range(5) for s in (6, 7)]
            for (s, i) in order:
                mf.append(lambda s=s, i=i: mfma(a, Q_S(par, i), Q_KF(s % 4), Q_Q(i, s), vr(Q_MQ(i), 4) if s == 0 else None))
            reads = [(0, 2, 0, 2), (1, 3, 0, 3), (5, 4, 0, 0), (10, 5, 0, 1), (15, 6, 0, 2), (20, 7, 0, 3),
                     (25, 0, 1, 0), (30, 1, 1, 1)]
            refills = [(3, 8, 0, 0), (16, 21, 1, 0), (26, 29, 2, 0), (33, 37, 3, 0)]
            if opt('qdma'):
                q = [int(x) for x in opt('qdma').split(',')]
                refills = [(q[2 * u], q[2 * u + 1], u, 0) for u in range(4)]
            if QLAG:
                q = [int(x) for x in opt('qdma', '2,7,12,17,22,27,32,37').split(',')]
                refills = [(q[0], q[1], 3, -1), (q[2], q[3], 0, 0), (q[4], q[5], 1, 0), (q[6], q[7], 2, 0)]
            ev = []
            for (m, s, dt, buf) in reads:
                ev.append((m, 0, 'need', dt, s >> 1, s, buf))
            for (ma, mb, u, dt) in refills:
                ev.append((ma, 1, 'dma', u, dt))
                ev.append((mb, 1, 'dma', u, dt))
            ev.sort(key=lambda e: (e[0], e[1]))
            issued = []
            need_n = {}
            for ph in range(4):
                for e in ev:
                    if e[2] == 'dma':
                        issued.append((ph + 2 + e[4], e[3]))
                    elif ph == 3:
                        key = (ph + e[3], e[4])
                        last = max(k for k, x in enumerate(issued) if x == key)
                        need_n[e[5]] = len(issued) - 1 - last
            for (m, s, dt, buf) in reads:
                if s % 2 == 0:
                    fill.setdefault(m, []).append('s_waitcnt vmcnt(%d)' % need_n[s])
                fill.setdefault(m, []).append(kread(pp if dt else par, s, buf))
            for (ma, mb, u, dt) in refills:
                place_dma(fill, (pp if dt else par) * 8192 + u * 2048, u == 3, ma, mb)
                if QLAG and dt and tag == 'even':
                    def sw():
                        a.i('s_cmp_eq_u32 %s, 14' % sr(S_P))
                        a.i('s_cbranch_scc0 L_qnosw2')
                        switch_to_wo(a, (Q_T[5], Q_T[6]))
                        a.label('L_qnosw2')
                    fill.setdefault(mb, []).append(sw)
        if tag == 'p0':
            qr = [qread(i, s) for s in range(8) for i in range(5)]
            fill.setdefault(-1, []).extend(qr[:10])
            for k, x in enumerate(qr[10:]):
                fill.setdefault(k * 2 // 3, []).append(x)
        if do_soft:
            fill.setdefault(-1, []).append('ds_read_b32 %s, %s offset:%d' % (vr(Q_T[2]), vr(Q_FLA), pp * 4))
            chk = ['v_cmp_eq_u32 vcc, %s, %s' % (sr(S_P), vr(Q_T[2]))]

            def br():
                a.i('s_cbranch_vccnz L_q%s_%s' % ('join' if flag('norare') else 'rare', tag))
                a.label('L_qjoin_%s' % tag)
            chk.append(br)
            q_rare.append((tag, par, do_mfma))
            soft = []
            for i in range(5):
                S = Q_S(pp, i)
                t0, t1 = (Q_T[0], Q_T[1]) if i % 2 == 0 else (Q_T[3], Q_T[4])
                for r in range(4):
                    soft.append('v_exp_f32 %s, %s' % (vr(S + r), vr(S + r)))
                soft.append('v_add_f32 %s, %s, %s' % (vr(t0), vr(S), vr(S + 1)))
                soft.append('v_add_f32 %s, %s, %s' % (vr(t1), vr(S + 2), vr(S + 3)))
                D = S if i % 2 == 0 else Q_S(pp, i - 1) + 2
                if flag('pw64'):
                    D = S
                soft.append('v_cvt_pk_bf16_f32 %s, %s, %s' % (vr(D), vr(S), vr(S + 1)))
                soft.append('v_cvt_pk_bf16_f32 %s, %s, %s' % (vr(D + 1), vr(S + 2), vr(S + 3)))
                soft.append('v_add_f32 %s, %s, %s' % (vr(t0), vr(t0), vr(t1)))
                if i == 4 or flag('pw64'):
                    soft.append('ds_write_b64 %s, %s offset:%d' % (vr(Q_PWA), vr(S, 2), pp * 10240 + i * 2048))
                elif i % 2 == 1:
                    A = Q_S(pp, i - 1)
                    soft.append('v_permlane16_swap_b32 %s, %s' % (vr(A), vr(A + 2)))
                    soft.append('v_permlane16_swap_b32 %s, %s' % (vr(A + 1), vr(A + 3)))
                    soft.append('ds_write_b128 %s, %s offset:%d' % (vr(Q_PWA2), vr(A, 4), pp * 10240 + (i - 1) * 2048))
                soft.append('v_add_f32 %s, %s, %s' % (vr(Q_L + i), vr(Q_L + i), vr(t0)))
            if do_mfma:
                fill.setdefault(5, []).extend(chk)
                if opt('wpos'):
                    wr = [x for x in soft if x.startswith('ds_write')]
                    soft = [x for x in soft if not x.startswith('ds_write')]
                    wp = [int(x) for x in opt('wpos').split(',')]
                    spread(fill, soft, 6, int(opt('softend', 31)))
                    for k, x in enumerate(wr):
                        fill.setdefault(wp[k] if len(wp) > 1 else wp[0], []).append(x)
                else:
                    spread(fill, soft, 6, int(opt('softend', 31)))
            else:
                fill.setdefault(-1, []).extend(chk + soft)
        if tag == 'p0':
            M = [Q_S(1, 0) + k for k in range(5)]
            t5, adw, ad4 = Q_S(1, 0) + 5, Q_S(1, 0) + 6, Q_S(1, 0) + 7
            pre = ['v_and_b32 %s, 15, %s' % (vr(ad4), vr(V_LANE)),
                   'v_lshlrev_b32 %s, 7, %s' % (vr(ad4), vr(ad4)),
                   's_lshl_b32 %s, %s, 2' % (sr(S_T0), sr(S_W)),
                   's_add_u32 %s, %s, %d' % (sr(S_T0), sr(S_T0), RM),
                   'v_add_u32 %s, %s, %s' % (vr(ad4), sr(S_T0), vr(ad4)),
                   'v_bfe_u32 %s, %s, 4, 1' % (vr(adw), vr(V_LANE)),
                   'v_lshlrev_b32 %s, 5, %s' % (vr(adw), vr(adw)),
                   'v_lshrrev_b32 %s, 5, %s' % (vr(t5), vr(V_LANE)),
                   'v_lshlrev_b32 %s, 4, %s' % (vr(t5), vr(t5)),
                   'v_add3_u32 %s, %s, %s, %s' % (vr(adw), vr(adw), vr(t5), vr(ad4))]
            spread(fill, pre, 22, 31)
            for i in range(5):
                S = Q_S(par, i)
                fill.setdefault(min(34 + 2 * i, 40), []).extend([
                    'v_max3_f32 %s, %s, %s, %s' % (vr(M[i]), vr(S), vr(S + 1), vr(S + 2)),
                    'v_max_f32 %s, %s, %s' % (vr(M[i]), vr(M[i]), vr(S + 3))])

            def red0():
                a.i('v_permlane32_swap_b32 %s, %s' % (vr(M[0]), vr(M[1])))
                a.i('v_permlane32_swap_b32 %s, %s' % (vr(M[2]), vr(M[3])))
                a.i('v_max_f32 %s, %s, %s' % (vr(M[0]), vr(M[0]), vr(M[1])))
                a.i('v_max_f32 %s, %s, %s' % (vr(M[2]), vr(M[2]), vr(M[3])))
                xreduce(a, 'v_max_f32', M[4], t5)
                a.i('v_permlane16_swap_b32 %s, %s' % (vr(M[0]), vr(M[2])))
                a.i('v_max_f32 %s, %s, %s' % (vr(M[0]), vr(M[0]), vr(M[2])))
                a.i('ds_write_b32 %s, %s offset:64' % (vr(ad4), vr(M[4])))
                a.i('ds_write_b32 %s, %s' % (vr(adw), vr(M[0])))
            fill.setdefault(41, []).append(red0)
        elif do_mfma:
            M0_, M1_ = Q_T[5], Q_T[6]
            for i in range(5):
                S = Q_S(par, i)
                m = min(34 + 2 * i, 40)
                if i == 0:
                    ops = ['v_max3_f32 %s, %s, %s, %s' % (vr(M0_), vr(S), vr(S + 1), vr(S + 2)),
                           'v_mov_b32 %s, %s' % (vr(M1_), vr(S + 3))]
                else:
                    ops = ['v_max3_f32 %s, %s, %s, %s' % (vr(M0_), vr(M0_), vr(S), vr(S + 1)),
                           'v_max3_f32 %s, %s, %s, %s' % (vr(M1_), vr(M1_), vr(S + 2), vr(S + 3))]
                fill.setdefault(m, []).extend(ops)

            def endchk():
                a.i('v_max_f32 %s, %s, %s' % (vr(M0_), vr(M0_), vr(M1_)))
                a.i('v_cmp_lt_f32 vcc, %s, %s' % (f32hex(THR), vr(M0_)))
                a.i('s_cbranch_vccnz L_q%s_%s' % ('setj' if flag('norare') else 'setf', tag))
                a.label('L_qsetj_%s' % tag)
            fill.setdefault(41, []).append(endchk)
            q_setf.append((tag, par))
        run_stream(a, mf, fill)
        a.i('s_add_u32 %s, %s, 1' % (sr(S_P), sr(S_P)))
        a.i('s_waitcnt lgkmcnt(0)')
        barrier(a)

    qk_phase(0, True, False, 'p0')
    ad = Q_T[0]
    a.i('v_and_b32 %s, 15, %s' % (vr(ad), vr(V_LANE)))
    a.i('v_lshlrev_b32 %s, 7, %s' % (vr(ad), vr(ad)))
    a.i('v_add_u32 %s, %d, %s' % (vr(ad), RM, vr(ad)))
    for i in range(5):
        a.i('ds_read_b128 %s, %s offset:%d' % (vr(Q_S(1, i), 4), vr(ad), 16 * i))
    for i in range(5):
        R = Q_S(1, i)
        a.i('v_max3_f32 %s, %s, %s, %s' % (vr(R), vr(R), vr(R + 1), vr(R + 2)))
        a.i('v_max_f32 %s, %s, %s' % (vr(R), vr(R), vr(R + 3)))
        for r in range(4):
            a.i('v_sub_f32 %s, 0, %s' % (vr(Q_MQ(i) + r), vr(R)))
    for i in range(5):
        for r in range(4):
            a.i('v_add_f32 %s, %s, %s' % (vr(Q_S(0, i) + r), vr(Q_S(0, i) + r), vr(Q_MQ(i))))
    a.label('L_qloop')
    INLOOP[0] = True
    qk_phase(1, True, True, 'odd')
    a.i('s_cmp_eq_u32 %s, 16' % sr(S_P))
    a.i('s_cbranch_scc1 L_qdone')
    if not QLAG:
        a.i('s_cmp_eq_u32 %s, 14' % sr(S_P))
        a.i('s_cbranch_scc0 L_qnosw')
        switch_to_wo(a, (Q_T[0], Q_T[1]))
        a.label('L_qnosw')
    qk_phase(0, True, True, 'even')
    a.i('s_branch L_qloop')
    a.reset()
    a.label('L_qdone')
    INLOOP[0] = False
    if QLAG:
        for x in dma_unit(8192 + 3 * 2048, True):
            a.i(x)
    qk_phase(0, False, True, 'p16')
    ad4, adw, t5 = Q_T[0], Q_T[1], Q_T[3]
    a.i('v_and_b32 %s, 15, %s' % (vr(ad4), vr(V_LANE)))
    a.i('v_lshlrev_b32 %s, 7, %s' % (vr(ad4), vr(ad4)))
    a.i('s_lshl_b32 %s, %s, 2' % (sr(S_T0), sr(S_W)))
    a.i('s_add_u32 %s, %s, %d' % (sr(S_T0), sr(S_T0), RM))
    a.i('v_add_u32 %s, %s, %s' % (vr(ad4), sr(S_T0), vr(ad4)))
    a.i('v_bfe_u32 %s, %s, 4, 1' % (vr(adw), vr(V_LANE)))
    a.i('v_lshlrev_b32 %s, 5, %s' % (vr(adw), vr(adw)))
    a.i('v_lshrrev_b32 %s, 5, %s' % (vr(t5), vr(V_LANE)))
    a.i('v_lshlrev_b32 %s, 4, %s' % (vr(t5), vr(t5)))
    a.i('v_add3_u32 %s, %s, %s, %s' % (vr(adw), vr(adw), vr(t5), vr(ad4)))
    L = [Q_L + i for i in range(5)]
    a.i('v_permlane32_swap_b32 %s, %s' % (vr(L[0]), vr(L[1])))
    a.i('v_permlane32_swap_b32 %s, %s' % (vr(L[2]), vr(L[3])))
    a.i('v_add_f32 %s, %s, %s' % (vr(L[0]), vr(L[0]), vr(L[1])))
    a.i('v_add_f32 %s, %s, %s' % (vr(L[2]), vr(L[2]), vr(L[3])))
    xreduce(a, 'v_add_f32', L[4], t5)
    a.i('v_permlane16_swap_b32 %s, %s' % (vr(L[0]), vr(L[2])))
    a.i('v_add_f32 %s, %s, %s' % (vr(L[0]), vr(L[0]), vr(L[2])))
    a.i('ds_write_b32 %s, %s offset:64' % (vr(ad4), vr(L[4])))
    a.i('ds_write_b32 %s, %s' % (vr(adw), vr(L[0])))
    a.i('s_waitcnt lgkmcnt(0)')
    addr_T_read(a, G_TA, (G_T[0], G_T[1]), S_RING)
    addr_U_read(a, G_UB, (G_T[0], G_T[1]), base_imm=OB)
    for k in range(20):
        for r in range(4):
            a.i('v_mov_b32 %s, 0' % vr(ACC_W(k // 5, k % 5) + r))
    a.i('s_waitcnt vmcnt(0)')
    barrier(a)
    barrier(a)
    a.i('s_cmp_eq_u32 %s, 3' % sr(S_W))
    a.i('s_cbranch_scc1 L_fin')
    a.i('s_branch L_oproj')
    a.reset()
    for tag, par in q_setf:
        a.label('L_qsetf_%s' % tag)
        a.i('s_add_u32 %s, %s, 1' % (sr(S_T0), sr(S_P)))
        a.i('v_mov_b32 %s, %s' % (vr(Q_T[5]), sr(S_T0)))
        a.i('ds_write_b32 %s, %s offset:%d' % (vr(Q_FLA), vr(Q_T[5]), par * 4))
        a.i('s_branch L_qsetj_%s' % tag)
        a.reset()
    for tag, par, has_cur in q_rare:
        pp = 1 - par
        a.label('L_qrare_%s' % tag)
        a.fence(10)
        ad, t0, mx = Q_T[1], Q_T[0], Q_T[6]
        a.i('v_and_b32 %s, 15, %s' % (vr(ad), vr(V_LANE)))
        a.i('v_lshlrev_b32 %s, 5, %s' % (vr(ad), vr(ad)))
        a.i('v_add_u32 %s, %d, %s' % (vr(ad), SM, vr(ad)))
        a.i('s_lshl_b32 %s, %s, 9' % (sr(S_T0), sr(S_W)))
        a.i('v_add_u32 %s, %s, %s' % (vr(Q_T[3]), sr(S_T0), vr(ad)))
        for i in range(5):
            S = Q_S(pp, i)
            a.i('v_max3_f32 %s, %s, %s, %s' % (vr(mx), vr(S), vr(S + 1), vr(S + 2)))
            a.i('v_max_f32 %s, %s, %s' % (vr(mx), vr(mx), vr(S + 3)))
            xreduce(a, 'v_max_f32', mx, t0)
            a.i('ds_write_b32 %s, %s offset:%d' % (vr(Q_T[3]), vr(mx), RM - SM + 4 * i))
        a.i('s_waitcnt lgkmcnt(0)')
        a.i('s_barrier')
        for i in range(5):
            r4 = [Q_T[3], Q_T[4], Q_T[5], Q_T[0]]
            for w in range(4):
                a.i('ds_read_b32 %s, %s offset:%d' % (vr(r4[w]), vr(ad), RM - SM + w * 512 + 4 * i))
            a.i('v_max3_f32 %s, %s, %s, %s' % (vr(mx), vr(r4[0]), vr(r4[1]), vr(r4[2])))
            a.i('v_max3_f32 %s, %s, %s, %s' % (vr(mx), vr(mx), vr(r4[3]), 0))
            for r in range(4):
                a.i('v_sub_f32 %s, %s, %s' % (vr(Q_S(pp, i) + r), vr(Q_S(pp, i) + r), vr(mx)))
                if has_cur:
                    a.i('v_sub_f32 %s, %s, %s' % (vr(Q_S(par, i) + r), vr(Q_S(par, i) + r), vr(mx)))
                a.i('v_sub_f32 %s, %s, %s' % (vr(Q_MQ(i) + r), vr(Q_MQ(i) + r), vr(mx)))
            a.i('v_exp_f32 %s, -%s' % (vr(t0), vr(mx)))
            a.i('v_mul_f32 %s, %s, %s' % (vr(Q_L + i), vr(Q_L + i), vr(t0)))
            a.i('ds_write_b32 %s, %s offset:%d' % (vr(ad), vr(t0), AL - SM + pp * 512 + 4 * i))
        a.i('s_waitcnt lgkmcnt(0)')
        a.fence(4)
        a.i('s_branch L_qjoin_%s' % tag)
        a.reset()

    a.label('L_pv')
    ROLE[0] = 'p'
    GT = (G_T[0], G_T[1])
    addr_T_read(a, G_TA, GT)
    a.i('v_mov_b32 %s, %s' % (vr(G_T[2]), vr(G_TA[0])))
    addr_U_read(a, G_UB, GT)
    a.i('v_mov_b32 %s, %s' % (vr(G_T[3]), vr(G_UB[0])))
    for k in range(80):
        a.i('v_mov_b32 %s, 0' % vr(176 + k))
    a.i('s_waitcnt lgkmcnt(0)')
    stamp_init(a)
    common_srds()
    build_srd(a, SRD_ST, S_V, S_T2, 524288)
    a.i('s_add_u32 %s, %s, 3' % (sr(S_CG), sr(S_W)))
    a.i('s_mov_b32 %s, %s' % (sr(S_C), f32hex(CSCALE)))
    a.i('s_mov_b32 %s, %s' % (sr(S_C + 1), f32hex(CSCALE)))
    a.i('s_lshl_b32 %s, %s, 13' % (sr(S_T0), sr(S_W)))
    a.i('s_add_u32 %s, %s, %d' % (sr(S_WCUR), sr(S_T0), WSLOT[0]))
    a.i('s_add_u32 %s, %s, %d' % (sr(S_WN1), sr(S_T0), WSLOT[1]))
    a.i('s_add_u32 %s, %s, %d' % (sr(S_WN2), sr(S_T0), WSLOT[2]))
    a.i('s_mov_b32 %s, %d' % (sr(S_XCUR), XSLOT[0]))
    a.i('s_mov_b32 %s, %d' % (sr(S_XN1), XSLOT[1]))
    a.i('s_mov_b32 %s, %d' % (sr(S_XN2), XSLOT[2]))
    a.i('s_mov_b32 %s, 0' % sr(S_P))

    def q_addr_update():
        out = ['v_add_u32 %s, %s, %s' % (vr(G_TA[0]), sr(S_WCUR), vr(G_T[2])),
               'v_add_u32 %s, %s, %s' % (vr(G_UB[0]), sr(S_XCUR), vr(G_T[3]))]
        for k in (1, 2, 3):
            out.append('v_xor_b32 %s, %d, %s' % (vr(G_TA[k]), 32 * k, vr(G_TA[0])))
        out.append('v_xor_b32 %s, 64, %s' % (vr(G_UB[1]), vr(G_UB[0])))
        out += ['s_mov_b32 %s, %s' % (sr(S_T0), sr(S_WCUR)), 's_mov_b32 %s, %s' % (sr(S_WCUR), sr(S_WN1)),
                's_mov_b32 %s, %s' % (sr(S_WN1), sr(S_WN2)), 's_mov_b32 %s, %s' % (sr(S_WN2), sr(S_T0)),
                's_mov_b32 %s, %s' % (sr(S_T0), sr(S_XCUR)), 's_mov_b32 %s, %s' % (sr(S_XCUR), sr(S_XN1)),
                's_mov_b32 %s, %s' % (sr(S_XN1), sr(S_XN2)), 's_mov_b32 %s, %s' % (sr(S_XN2), sr(S_T0))]
        return out

    XI = lambda i: i * 2048
    for x in q_addr_update():
        a.i(x)
    barrier(a)
    A0 = a_reads(0, 0)
    for x in A0[0:2] + b_reads(0, XI) + A0[2:]:
        a.i(x)
    a.label('L_qproj')
    fill = {}
    spread(fill, b_reads(1, XI) + a_reads(1, 4096), 1, 8)
    spread(fill, q_addr_update(), 12, 19)
    run_stream(a, half_mfmas(a, ACC_O, 0), fill)
    a.i('s_waitcnt lgkmcnt(0)')
    barrier(a)
    fill = {}
    A0 = a_reads(0, 0)
    spread(fill, A0[0:2] + b_reads(0, XI) + A0[2:], 0, 9)
    fill.setdefault(17, []).extend(['s_add_u32 %s, %s, 1' % (sr(S_P), sr(S_P)), 's_cmp_lt_u32 %s, 7' % sr(S_P)])
    run_stream(a, half_mfmas(a, ACC_O, 1), fill)
    a.i('s_cbranch_scc1 L_qproj')
    a.i('s_waitcnt lgkmcnt(0)')

    WA = [G_T[4], G_T[5], G_T[6], G_T[0]]

    def write_D_addr():
        return ['v_xor_b32 %s, %d, %s' % (vr(WA[ai]), 32 * ai, vr(G_T[4])) for ai in range(1, 4)]

    def write_D_ops(acc, ai, i, imm, scale):
        R = acc(ai, i)
        return ['v_pk_mul_f32 %s, %s, %s' % (vr(R, 2), vr(R, 2), scale),
                'v_pk_mul_f32 %s, %s, %s' % (vr(R + 2, 2), vr(R + 2, 2), scale),
                'v_cvt_pk_bf16_f32 %s, %s, %s' % (vr(R), vr(R), vr(R + 1)),
                'v_cvt_pk_bf16_f32 %s, %s, %s' % (vr(R + 1), vr(R + 2), vr(R + 3)),
                'ds_write_b64 %s, %s offset:%d' % (vr(WA[ai]), vr(R, 2), imm)]

    def write_D(acc, base_imm_of_i, scale):
        for x in write_D_addr():
            a.i(x)
        for ai in range(4):
            for i in range(5):
                for x in write_D_ops(acc, ai, i, base_imm_of_i(i), scale(i)):
                    a.i(x)
        a.i('s_waitcnt lgkmcnt(0)')

    addr_D_write(a, G_T[4], GT)
    a.i('s_lshl_b32 %s, %s, 11' % (sr(S_T0), sr(S_W)))
    a.i('v_add_u32 %s, %s, %s' % (vr(G_T[4]), sr(S_T0), vr(G_T[4])))
    a.i('v_mov_b32 %s, %d' % (vr(G_FLA), FL))
    a.i('v_mov_b32 %s, 0' % vr(G_AL))
    a.i('v_mov_b32 %s, 0' % vr(G_AL + 1))
    a.i('ds_write_b64 %s, %s' % (vr(G_FLA), vr(G_AL, 2)))
    write_D(ACC_O, lambda i: QB + i * 8192, lambda i: sr(S_C, 2))
    barrier(a)
    pat_T(a, V_PAT, GT, 512)
    a.i('s_lshl_b32 %s, %s, 7' % (sr(S_SOFF), sr(S_W)))
    a.i('s_mov_b32 %s, 8192' % sr(S_STEPU))
    a.i('s_mov_b32 %s, 8192' % sr(S_STEPL))
    a.i('s_lshl_b32 %s, %s, 14' % (sr(S_RING), sr(S_W)))
    a.i('v_add_u32 %s, %s, %s' % (vr(G_TA[0]), sr(S_RING), vr(G_T[2])))
    for k in (1, 2, 3):
        a.i('v_xor_b32 %s, %d, %s' % (vr(G_TA[k]), 32 * k, vr(G_TA[0])))
    a.i('v_add_u32 %s, %d, %s' % (vr(G_UB[0]), PB, vr(G_T[3])))
    a.i('v_xor_b32 %s, 64, %s' % (vr(G_UB[1]), vr(G_UB[0])))
    a.i('v_and_b32 %s, 15, %s' % (vr(G_ALA), vr(V_LANE)))
    a.i('v_lshlrev_b32 %s, 5, %s' % (vr(G_ALA), vr(G_ALA)))
    a.i('v_add_u32 %s, %d, %s' % (vr(G_ALA), SM, vr(G_ALA)))
    for k in range(80):
        a.i('v_mov_b32 %s, 0' % vr(176 + k))
    for k in range(20):
        for r in range(4):
            a.i('v_mov_b32 %s, 0' % vr(ACC_W(k // 5, k % 5) + r))
    for r in range(20):
        a.i('v_mov_b32 %s, 0' % vr(G_BF(1, 0) + r))
    for r in range(16):
        a.i('v_mov_b32 %s, 0' % vr(G_AF(1, 0) + r))
    a.i('s_mov_b32 %s, 0' % sr(S_PEND))
    barrier(a)
    for k in range(6):
        for x in dma_unit(k * 2048, False):
            a.i(x)
    barrier(a)
    a.i('s_mov_b32 %s, 2' % sr(S_P))

    pv_rare = []
    pv_sync = []

    def gemm_phase(par, acc, bimm, vm, refill, tag=None, bar=True, part1_mfma=True, reads=True):
        fill = {}
        if reads:
            pre = []
            if tag is not None:
                pre.append('ds_read_b32 %s, %s offset:%d' % (vr(G_T[6]), vr(G_FLA), (1 - par) * 4))
            pre += b_reads(0, bimm)
            pre.append('s_waitcnt vmcnt(%d)' % vm[0])
            pre += a_reads(0, par * 8192)
            if part1_mfma:
                spread(fill, pre, 0, 9)
            else:
                fill[-1] = pre
        if tag is not None:
            def br():
                a.i('v_cmp_eq_u32 vcc, %s, %s' % (sr(S_P), vr(G_T[6])))
                a.i('s_cbranch_vccnz L_p%s_%s' % ('syncj' if flag('norare') else 'sync', tag))
                a.label('L_psyncj_%s' % tag)
            fill.setdefault(6, []).append(br)
            pv_sync.append(tag)
        if refill[0]:
            place_dma(fill, (1 - par) * 8192 + 4096, False, PD[0], PD[1])
            place_dma(fill, (1 - par) * 8192 + 6144, True, PD[2], PD[3])
        run_stream(a, half_mfmas(a, acc, 1) if part1_mfma else [], fill)
        if not reads:
            return
        if tag is not None:
            a.i('s_cmp_lg_u32 %s, 0' % sr(S_PEND))
            a.i('s_cbranch_scc1 L_prare_%s' % tag)
            a.label('L_pjoin_%s' % tag)
            a.i('s_mov_b32 %s, %s' % (sr(S_PEND), sr(S_PEND2)))
            pv_rare.append((tag, par))
            if tag == 'even':
                a.i('s_cmp_eq_u32 %s, 16' % sr(S_P))
                a.i('s_cbranch_scc0 L_pnosw')
                switch_to_wo(a, GT)
                a.label('L_pnosw')
        a.i('s_waitcnt lgkmcnt(0)')
        fill = {}
        spread(fill, b_reads(1, bimm) + ['s_waitcnt vmcnt(%d)' % vm[1]] + a_reads(1, par * 8192 + 4096), 0, 9)
        if refill[1]:
            place_dma(fill, par * 8192, False, PD[4], PD[5])
            place_dma(fill, par * 8192 + 2048, False, PD[6], PD[7])
        if tag is not None:
            fill.setdefault(14, []).extend(['s_add_u32 %s, %s, 1' % (sr(S_P), sr(S_P)), 's_mov_b32 %s, 0' % sr(S_PEND2)])
        run_stream(a, half_mfmas(a, acc, 0), fill)
        a.i('s_waitcnt lgkmcnt(0)')
        if bar:
            barrier(a)

    a.i('s_mov_b32 %s, 0' % sr(S_PEND2))
    a.label('L_ploop')
    INLOOP[0] = True
    gemm_phase(0, ACC_O, lambda i: i * 2048, (8, 8), (True, True), 'even')
    gemm_phase(1, ACC_O, lambda i: 10240 + i * 2048, (8, 8), (True, True), 'odd')
    a.i('s_cmp_lt_u32 %s, 18' % sr(S_P))
    a.i('s_cbranch_scc1 L_ploop')
    INLOOP[0] = False
    LT = G_BF(0, 0)
    RI = G_AF(0, 0)
    fill = {}
    pre = ['v_and_b32 %s, 15, %s' % (vr(G_T[1]), vr(V_LANE)),
           'v_lshlrev_b32 %s, 7, %s' % (vr(G_T[1]), vr(G_T[1])),
           'v_add_u32 %s, %d, %s' % (vr(G_T[1]), RM, vr(G_T[1]))]
    pre += ['ds_read_b128 %s, %s offset:%d' % (vr(LT + 4 * i, 4), vr(G_T[1]), 16 * i) for i in range(5)]
    fill[-1] = pre
    place_dma(fill, 8192 + 4096, False, 1, 2)
    place_dma(fill, 8192 + 6144, True, 4, 5)
    fill.setdefault(0, []).append('v_add_u32 %s, %d, %s' % (vr(G_T[4]), OB, vr(G_T[4])))
    fill.setdefault(3, []).extend(write_D_addr())
    rc = []
    for i in range(5):
        R = LT + 4 * i
        rc += ['v_add_f32 %s, %s, %s' % (vr(R), vr(R), vr(R + 1)),
               'v_add_f32 %s, %s, %s' % (vr(R + 2), vr(R + 2), vr(R + 3)),
               'v_add_f32 %s, %s, %s' % (vr(R), vr(R), vr(R + 2)),
               'v_rcp_f32 %s, %s' % (vr(RI + 2 * i), vr(R)),
               'v_rcp_f32 %s, %s' % (vr(RI + 2 * i + 1), vr(R))]
    spread(fill, rc, 5, 10)
    for ai in range(4):
        for i in range(5):
            m = 11 + (ai * 5 + i) * 3 // 5
            fill.setdefault(max(m, ai * 5 + i + 3), []).extend(write_D_ops(ACC_O, ai, i, i * 8192, vr(RI + 2 * i, 2)))
    run_stream(a, half_mfmas(a, ACC_O, 1), fill)
    a.i('s_waitcnt lgkmcnt(0)')
    a.i('v_add_u32 %s, %d, %s' % (vr(G_UB[0]), OB, vr(G_T[3])))
    a.i('v_xor_b32 %s, 64, %s' % (vr(G_UB[1]), vr(G_UB[0])))
    barrier(a)
    a.label('L_oproj')
    a.fence(4)
    OI = lambda tau: (lambda i: (i * 4 + tau) * 2048)
    gemm_phase(0, ACC_W, OI(0), (12, 8), (False, True), None, bar=False, part1_mfma=False)
    gemm_phase(1, ACC_W, OI(1), (8, 8), (True, True), None, bar=False)
    gemm_phase(0, ACC_W, OI(2), (8, 8), (True, False), None, bar=False)
    gemm_phase(1, ACC_W, OI(3), (4, 0), (False, False), None, bar=False)
    gemm_phase(0, ACC_W, None, None, (False, False), None, reads=False)
    stamp(a)
    a.i('v_lshlrev_b32 %s, 4, %s' % (vr(GT[0]), vr(V_LANE)))
    a.i('s_mul_i32 %s, %s, 10240' % (sr(S_T0), sr(S_CG)))
    k = 0
    for i in range(5):
        for ap in range(2):
            R0, R1 = ACC_W(2 * ap, i), ACC_W(2 * ap + 1, i)
            a.i('v_cvt_pk_bf16_f32 %s, %s, %s' % (vr(R0), vr(R0), vr(R0 + 1)))
            a.i('v_cvt_pk_bf16_f32 %s, %s, %s' % (vr(R0 + 1), vr(R0 + 2), vr(R0 + 3)))
            a.i('v_cvt_pk_bf16_f32 %s, %s, %s' % (vr(R0 + 2), vr(R1), vr(R1 + 1)))
            a.i('v_cvt_pk_bf16_f32 %s, %s, %s' % (vr(R0 + 3), vr(R1 + 2), vr(R1 + 3)))
            a.i('buffer_store_dwordx4 %s, %s, %s, %s offen offset:%d' % (vr(R0, 4), vr(GT[0]), sr(SRD_PO, 4), sr(S_T0), (k % 4) * 1024))
            k += 1
            if k % 4 == 0:
                a.i('s_add_u32 %s, %s, 4096' % (sr(S_T0), sr(S_T0)))
    a.label('L_fin')
    stamp_flush(a)
    a.label('L_end')
    a.i('s_endpgm')
    a.reset()
    for tag in pv_sync:
        a.label('L_psync_%s' % tag)
        a.i('s_barrier')
        a.i('s_mov_b32 %s, 1' % sr(S_PEND2))
        a.i('s_branch L_psyncj_%s' % tag)
        a.reset()
    for tag, par in pv_rare:
        a.label('L_prare_%s' % tag)
        a.i('ds_read_b128 %s, %s offset:%d' % (vr(G_AL, 4), vr(G_ALA), AL - SM + par * 512))
        a.i('ds_read_b32 %s, %s offset:%d' % (vr(G_AL + 4), vr(G_ALA), AL - SM + par * 512 + 16))
        a.i('s_waitcnt lgkmcnt(0)')
        a.fence(10)
        for ai in range(4):
            for i in range(5):
                for r in range(4):
                    R = ACC_O(ai, i) + r
                    a.i('v_mul_f32 %s, %s, %s' % (vr(R), vr(R), vr(G_AL + i)))
        a.fence(4)
        a.i('s_branch L_pjoin_%s' % tag)
        a.reset()


from gen import gen_reduce, HEADER, kd


def main():
    out = ARGS[0] if ARGS and not ARGS[0].startswith('--') else 'standalone__gqa_block_cached__near_ridge.s'
    a = Asm()
    gen_main(a, 'standalone__gqa_block_cached__near_ridge_kernel')
    gen_reduce(a, 'gqa_reduce_kernel')
    txt = HEADER + a.text() + '.section .rodata,"a"\n.p2align 6\n' + \
        kd('standalone__gqa_block_cached__near_ridge_kernel', 256, 96) + '.p2align 6\n' + kd('gqa_reduce_kernel', 80, 32)
    open(out, 'w').write(txt)
    print('wrote', out, a.nins, 'instructions')


if __name__ == '__main__':
    main()
```

```python
import struct, sys, math
from asmlib import Asm, vr, sr

K1 = 1024
VR = lambda w: w * 16 * K1
KR0 = 64 * K1
PB = 128 * K1
SM = 152 * K1
MX = SM
FL = SM + 1024
AL = SM + 1536
LS = SM + 2560
OB = 112 * K1
WSLOT = [128 * K1, 64 * K1, 96 * K1]
XSLOT = [40 * K1, 0, 10 * K1]
QB = 0
LDS_BYTES = 160 * K1


def f32hex(x):
    return '0x%08x' % struct.unpack('<I', struct.pack('<f', x))[0]


CSCALE = math.log2(math.e) / 16.0
THR = 8.0

S_X, S_K, S_V, S_WQ, S_WO, S_OUT, S_DBG, S_WS = 4, 6, 8, 10, 12, 14, 16, 18
S_WAVE, S_W, S_B, S_HKV, S_H, S_GRP = 20, 21, 22, 23, 24, 25
S_T0, S_T1, S_T2, S_T3 = 26, 27, 28, 29
SRD_ST, SRD_WQ, SRD_X, SRD_WO, SRD_PO = 32, 36, 40, 44, 48
S_SOFF, S_STEPU, S_STEPL, S_RING, S_P, S_C = 52, 53, 54, 55, 56, 57
S_CG = 58
S_XL = [59, 60, 61]
S_XG = [62, 63, 64]
S_WCUR, S_WN1, S_WN2, S_XCUR, S_XN1, S_XN2 = 65, 66, 67, 68, 69, 70
S_WQOFF = 71

V_LANE = 1
G_TA = [2, 3, 4, 5]
G_UB = [6, 7]
V_PAT = [8, 9]
G_FLA = 10
G_ALA = 11
G_AL = 12
G_T = [17, 18, 19, 20, 21, 22, 23]
G_BF = lambda e, i: 72 + e * 20 + i * 4
G_AF = lambda e, a: 112 + e * 16 + a * 4
ACC_O = lambda a, i: 176 + (a * 5 + i) * 4


def ACC_W(a, i):
    k = a * 5 + i
    return 144 + k * 4 if k < 8 else 24 + (k - 8) * 4


Q_UA = [2, 3]
Q_PWA = 4
Q_MXW = 5
Q_MX4 = 6
Q_FLW = 7
Q_FLAG = 10
Q_TMP = [11, 12, 13, 14, 15, 16, 17, 18, 19, 20, 21, 22, 23]
Q_TMAX = 24
Q_L = 30
Q_MC = 35
Q_KF = lambda k: 40 + k * 4
Q_S = lambda par, i: 56 + par * 20 + i * 4
Q_Q = lambda i, s: 96 + (i * 8 + s) * 4

MFMA = 'v_mfma_f32_16x16x32_bf16'
STAMPS = '--stamps' in sys.argv
S_ST, S_STI = 72, 74
SRD_DB = 76


def stamp(a):
    if not STAMPS:
        return
    a.i('s_memtime s[72:73]')
    a.i('s_waitcnt lgkmcnt(0)')
    a.i('s_mov_b32 m0, s74')
    a.i('s_nop 0')
    a.i('v_writelane_b32 v0, s72, m0')
    a.i('s_add_u32 s74, s74, 1')


def barrier(a):
    if '--pre' in sys.argv:
        stamp(a)
    a.i('s_barrier')
    stamp(a)


def stamp_init(a):
    if not STAMPS:
        return
    a.i('s_mov_b32 s74, 0')
    a.i('s_lshl_b32 s75, s2, 3')
    a.i('s_add_u32 s75, s75, %s' % sr(S_WAVE))
    a.i('s_lshl_b32 s75, s75, 8')
    a.i('s_add_u32 s75, s75, %d' % (128 << 20))
    a.i('s_add_u32 s76, %s, s75' % sr(S_WS))
    a.i('s_addc_u32 s77, %s, 0' % sr(S_WS + 1))
    a.i('s_mov_b32 s78, 256')
    a.i('s_mov_b32 s79, 0x20000')
    a.i('v_mov_b32 v0, 0')
    a.i('s_memrealtime s[72:73]')
    a.i('s_waitcnt lgkmcnt(0)')
    a.i('v_writelane_b32 v0, s72, 62')
    stamp(a)


def stamp_flush(a):
    if not STAMPS:
        return
    a.i('s_waitcnt vmcnt(0)')
    stamp(a)
    a.i('s_memrealtime s[72:73]')
    a.i('s_waitcnt lgkmcnt(0)')
    a.i('v_writelane_b32 v0, s72, 63')
    a.i('v_lshlrev_b32 v2, 2, %s' % vr(V_LANE))
    a.i('buffer_store_dword v0, v2, s[76:79], 0 offen')


def mfma(a, d, A, B, c=None):
    a.i('%s %s, %s, %s, %s' % (MFMA, vr(d, 4), vr(A, 4), vr(B, 4), vr(d, 4) if c is None else c))


def build_srd(a, srd, ptr, off_sgpr, nrec):
    a.i('s_add_u32 %s, %s, %s' % (sr(srd), sr(ptr), sr(off_sgpr)))
    a.i('s_addc_u32 %s, %s, 0' % (sr(srd + 1), sr(ptr + 1)))
    a.i('s_mov_b32 %s, %s' % (sr(srd + 2), nrec))
    a.i('s_mov_b32 %s, 0x20000' % sr(srd + 3))


def pat_U(a, dst, tmp, R, hk_list=(0, 1), hk_sgpr=None, sub=True):
    t0, t1 = tmp
    a.i('s_mov_b32 %s, %d' % (sr(S_T3), R))
    for hk, d in zip(hk_list, dst):
        a.i('v_lshrrev_b32 %s, 4, %s' % (vr(t0), vr(V_LANE)))
        if hk:
            a.i('v_add_u32 %s, 4, %s' % (vr(t0), vr(t0)))
        a.i('v_and_b32 %s, 7, %s' % (vr(t1), vr(V_LANE)))
        a.i('v_xor_b32 %s, %s, %s' % (vr(t0), vr(t0), vr(t1)))
        a.i('v_lshlrev_b32 %s, 4, %s' % (vr(t0), vr(t0)))
        a.i('v_lshrrev_b32 %s, 3, %s' % (vr(t1), vr(V_LANE)))
        a.i('v_mul_lo_u32 %s, %s, %s' % (vr(t1), vr(t1), sr(S_T3)))
        a.i('v_add_u32 %s, %s, %s' % (vr(d), vr(t0), vr(t1)))
        if hk:
            a.i('v_add_u32 %s, %d, %s' % (vr(d), 8 * R - (1024 if sub else 0), vr(d)))


def pat_T(a, dst, tmp, R):
    t0, t1 = tmp
    a.i('s_mov_b32 %s, %d' % (sr(S_T3), R))
    for hk, d in zip((0, 1), dst):
        a.i('v_lshrrev_b32 %s, 3, %s' % (vr(t0), vr(V_LANE)))
        a.i('v_and_b32 %s, 2, %s' % (vr(t0), vr(t0)))
        if hk:
            a.i('v_or_b32 %s, 4, %s' % (vr(t0), vr(t0)))
        a.i('v_and_b32 %s, 7, %s' % (vr(t1), vr(V_LANE)))
        a.i('v_xor_b32 %s, %s, %s' % (vr(t0), vr(t0), vr(t1)))
        a.i('v_lshlrev_b32 %s, 4, %s' % (vr(t0), vr(t0)))
        a.i('v_lshrrev_b32 %s, 3, %s' % (vr(t1), vr(V_LANE)))
        a.i('v_mul_lo_u32 %s, %s, %s' % (vr(t1), vr(t1), sr(S_T3)))
        a.i('v_add_u32 %s, %s, %s' % (vr(d), vr(t0), vr(t1)))
        if hk:
            a.i('v_add_u32 %s, %d, %s' % (vr(d), 8 * R - 1024, vr(d)))


def addr_U_read(a, dst, tmp, base_sgpr=None, base_imm=0):
    t0, t1 = tmp
    a.i('v_and_b32 %s, 15, %s' % (vr(t0), vr(V_LANE)))
    a.i('v_lshrrev_b32 %s, 1, %s' % (vr(t1), vr(t0)))
    a.i('v_lshlrev_b32 %s, 7, %s' % (vr(t0), vr(t0)))
    a.i('v_lshrrev_b32 %s, 4, %s' % (vr(dst[0]), vr(V_LANE)))
    a.i('v_xor_b32 %s, %s, %s' % (vr(t1), vr(t1), vr(dst[0])))
    a.i('v_lshlrev_b32 %s, 4, %s' % (vr(t1), vr(t1)))
    a.i('v_add_u32 %s, %s, %s' % (vr(dst[0]), vr(t0), vr(t1)))
    if base_imm:
        a.i('v_add_u32 %s, %d, %s' % (vr(dst[0]), base_imm, vr(dst[0])))
    if base_sgpr is not None:
        a.i('v_add_u32 %s, %s, %s' % (vr(dst[0]), sr(base_sgpr), vr(dst[0])))
    a.i('v_xor_b32 %s, 64, %s' % (vr(dst[1]), vr(dst[0])))


def addr_T_read(a, dst, tmp, base_sgpr=None):
    t0, t1 = tmp
    a.i('v_lshrrev_b32 %s, 4, %s' % (vr(t0), vr(V_LANE)))
    a.i('v_lshlrev_b32 %s, 10, %s' % (vr(t0), vr(t0)))
    a.i('v_bfe_u32 %s, %s, 2, 2' % (vr(t1), vr(V_LANE)))
    a.i('v_lshlrev_b32 %s, 7, %s' % (vr(t1), vr(t1)))
    a.i('v_add_u32 %s, %s, %s' % (vr(t0), vr(t0), vr(t1)))
    a.i('v_and_b32 %s, 3, %s' % (vr(t1), vr(V_LANE)))
    a.i('v_lshlrev_b32 %s, 3, %s' % (vr(t1), vr(t1)))
    a.i('v_add_u32 %s, %s, %s' % (vr(t0), vr(t0), vr(t1)))
    a.i('v_bfe_u32 %s, %s, 3, 2' % (vr(t1), vr(V_LANE)))
    a.i('v_lshlrev_b32 %s, 5, %s' % (vr(t1), vr(t1)))
    a.i('v_add_u32 %s, %s, %s' % (vr(dst[0]), vr(t0), vr(t1)))
    if base_sgpr is not None:
        a.i('v_add_u32 %s, %s, %s' % (vr(dst[0]), sr(base_sgpr), vr(dst[0])))
    for k in (1, 2, 3):
        a.i('v_xor_b32 %s, %d, %s' % (vr(dst[k]), 32 * k, vr(dst[0])))


def addr_D_write(a, dst, tmp, chunk2_sgpr=None):
    t0, t1 = tmp
    a.i('v_and_b32 %s, 15, %s' % (vr(t0), vr(V_LANE)))
    a.i('v_lshrrev_b32 %s, 1, %s' % (vr(t1), vr(t0)))
    a.i('v_lshlrev_b32 %s, 7, %s' % (vr(t0), vr(t0)))
    a.i('v_lshrrev_b32 %s, 5, %s' % (vr(dst), vr(V_LANE)))
    a.i('v_xor_b32 %s, %s, %s' % (vr(t1), vr(t1), vr(dst)))
    a.i('v_lshlrev_b32 %s, 4, %s' % (vr(t1), vr(t1)))
    a.i('v_add_u32 %s, %s, %s' % (vr(t0), vr(t0), vr(t1)))
    a.i('v_bfe_u32 %s, %s, 4, 1' % (vr(t1), vr(V_LANE)))
    a.i('v_lshlrev_b32 %s, 3, %s' % (vr(t1), vr(t1)))
    a.i('v_add_u32 %s, %s, %s' % (vr(dst), vr(t0), vr(t1)))
    if chunk2_sgpr is not None:
        a.i('v_xor_b32 %s, %s, %s' % (vr(dst), sr(chunk2_sgpr), vr(dst)))


ROLE = ['q']
KVPOL = ' nt' if '--nt' in sys.argv else ''
INLOOP = [False]


def dma_unit(lds_off, last):
    if '--nodma' in sys.argv or ('--nodma' + ROLE[0]) in sys.argv:
        return ['s_nop 0'] * 4
    if '--kdirect' in sys.argv and ROLE[0] == 'q':
        d = 16
        return [
            's_nop 0',
            'buffer_load_dwordx4 %s, v29, %s, %s offen' % (vr(d, 4), sr(SRD_ST, 4), sr(S_SOFF)),
            'buffer_load_dwordx4 %s, v29, %s, %s offen offset:64' % (vr(d, 4), sr(SRD_ST, 4), sr(S_SOFF)),
            's_add_u32 %s, %s, %s' % (sr(S_SOFF), sr(S_SOFF), sr(S_STEPL if last else S_STEPU)),
        ]
    if '--dswrite' in sys.argv:
        d = 16 if ROLE[0] == 'q' else 12
        return [
            'ds_write_b128 v29, %s offset:%d' % (vr(d + 4, 4), lds_off),
            'buffer_load_dwordx4 %s, %s, %s, %s offen' % (vr(d, 4), vr(V_PAT[0]), sr(SRD_ST, 4), sr(S_SOFF)),
            'buffer_load_dwordx4 %s, %s, %s, %s offen offset:1024' % (vr(d, 4), vr(V_PAT[1]), sr(SRD_ST, 4), sr(S_SOFF)),
            'ds_write_b128 v29, %s offset:%d' % (vr(d + 4, 4), lds_off + 1024),
        ]
    if '--dmavgpr' in sys.argv:
        d = 16 if ROLE[0] == 'q' else 12
        return [
            's_add_u32 m0, %s, %d' % (sr(S_RING), lds_off),
            'buffer_load_dwordx4 %s, %s, %s, %s offen' % (vr(d, 4), vr(V_PAT[0]), sr(SRD_ST, 4), sr(S_SOFF)),
            'buffer_load_dwordx4 %s, %s, %s, %s offen offset:1024' % (vr(d, 4), vr(V_PAT[1]), sr(SRD_ST, 4), sr(S_SOFF)),
            's_add_u32 %s, %s, %s' % (sr(S_SOFF), sr(S_SOFF), sr(S_STEPL if last else S_STEPU)),
        ]
    return [
        's_add_u32 m0, %s, %d' % (sr(S_RING), lds_off),
        'buffer_load_dwordx4 %s, %s, %s offen%s lds' % (vr(V_PAT[0]), sr(SRD_ST, 4), sr(S_SOFF), KVPOL),
        'buffer_load_dwordx4 %s, %s, %s offen offset:1024%s lds' % (vr(V_PAT[1]), sr(SRD_ST, 4), sr(S_SOFF), KVPOL),
        's_add_u32 %s, %s, %s' % (sr(S_SOFF), sr(S_SOFF), sr(S_STEPL if last else S_STEPU)),
    ]


def switch_to_wo(a, tmp):
    for k in range(3):
        a.i('s_mov_b32 %s, %s' % (sr(SRD_ST + k), sr(SRD_WO + k)))
    a.i('s_lshl_b32 %s, %s, 7' % (sr(S_SOFF), sr(S_CG)))
    a.i('s_mov_b32 %s, %d' % (sr(S_STEPU), 16 * 896))
    a.i('s_mov_b32 %s, %d' % (sr(S_STEPL), 16 * 896))
    pat_T(a, V_PAT, tmp, 896)


def run_stream(a, mf, fill):
    def emit(lst):
        for x in lst:
            if callable(x):
                x()
            else:
                if INLOOP[0]:
                    if '--nopw' in sys.argv and (x.startswith('ds_write') or x.startswith('ds_max')):
                        continue
                    if '--notr' in sys.argv and x.startswith('ds_read_b64_tr'):
                        continue
                    if '--nokr' in sys.argv and x.startswith('ds_read_b128') and ROLE[0] == 'q' and ', v6 ' not in x:
                        continue
                    if '--nopr' in sys.argv and x.startswith('ds_read_b128') and ROLE[0] == 'p':
                        continue
                    if '--novalu' in sys.argv and x.startswith('v_') and ROLE[0] == 'q' and not x.startswith('v_cmp'):
                        continue
                a.i(x)
    emit(fill.get(-1, []))
    for m, f in enumerate(mf):
        f()
        emit(fill.get(m, []))
    for m in sorted(k for k in fill if k >= len(mf)):
        emit(fill[m])


def spread(fill, items, m0, m1):
    n = len(items)
    span = m1 - m0 + 1
    for k, it in enumerate(items):
        m = m0 + (k * span) // n
        fill.setdefault(m, []).append(it)


def a_reads(e_dst, imm):
    out = []
    for ai in range(4):
        for hh in range(2):
            out.append('ds_read_b64_tr_b16 %s, %s offset:%d' % (vr(G_AF(e_dst, ai) + 2 * hh, 2), vr(G_TA[ai]), imm + hh * 512))
    return out


def b_reads(e, imm_of_i):
    return ['ds_read_b128 %s, %s offset:%d' % (vr(G_BF(e, i), 4), vr(G_UB[e]), imm_of_i(i)) for i in range(5)]


def gemm_mfmas(a, acc):
    mf = []
    for e in range(2):
        for ai in range(4):
            for i in range(5):
                mf.append(lambda e=e, ai=ai, i=i: mfma(a, acc(ai, i), G_AF(e, ai), G_BF(e, i)))
    return mf


def gen_main(a, name):
    a.raw('.globl %s' % name)
    a.raw('.p2align 8')
    a.raw('.type %s,@function' % name)
    a.label(name)
    a.i('s_cmp_ge_u32 s2, 256')
    a.i('s_cbranch_scc1 L_end')
    a.i('s_load_dwordx16 s[4:19], s[0:1], 0')
    a.i('v_and_b32 %s, 63, v0' % vr(V_LANE))
    a.i('v_lshrrev_b32 v2, 6, v0')
    a.i('v_readfirstlane_b32 %s, v2' % sr(S_WAVE))
    a.i('s_and_b32 %s, s2, 7' % sr(S_HKV))
    a.i('s_lshr_b32 %s, s2, 5' % sr(S_B))
    a.i('s_bfe_u32 %s, s2, 0x10004' % sr(S_T0))
    a.i('s_bfe_u32 %s, s2, 0x10003' % sr(S_T1))
    a.i('s_lshl_b32 %s, %s, 1' % (sr(S_H), sr(S_HKV)))
    a.i('s_add_u32 %s, %s, %s' % (sr(S_H), sr(S_H), sr(S_T0)))
    a.i('s_lshl_b32 %s, %s, 1' % (sr(S_GRP), sr(S_B)))
    a.i('s_add_u32 %s, %s, %s' % (sr(S_GRP), sr(S_GRP), sr(S_T1)))
    a.i('s_and_b32 %s, %s, 3' % (sr(S_W), sr(S_WAVE)))
    a.i('s_mov_b32 %s, %s' % (sr(S_C), f32hex(CSCALE)))
    a.i('s_waitcnt lgkmcnt(0)')
    stamp_init(a)
    a.i('s_mul_i32 %s, %s, %d' % (sr(S_T0), sr(S_H), 229376))
    build_srd(a, SRD_WO, S_WO, S_T0, 229376)
    a.i('s_lshl_b32 %s, %s, 4' % (sr(S_T0), sr(S_GRP)))
    a.i('s_add_u32 %s, %s, %s' % (sr(S_T0), sr(S_T0), sr(S_H)))
    a.i('s_mul_i32 %s, %s, %d' % (sr(S_T0), sr(S_T0), 71680))
    build_srd(a, SRD_PO, S_WS, S_T0, 71680)
    a.i('s_lshl_b32 %s, %s, 3' % (sr(S_T0), sr(S_B)))
    a.i('s_add_u32 %s, %s, %s' % (sr(S_T0), sr(S_T0), sr(S_HKV)))
    if '--kvsame' in sys.argv:
        a.i('s_mov_b32 %s, %s' % (sr(S_T0), sr(S_HKV)))
    a.i('s_lshl_b32 %s, %s, 19' % (sr(S_T2), sr(S_T0)))
    a.i('s_cmp_ge_u32 %s, 4' % sr(S_WAVE))
    a.i('s_cbranch_scc1 L_pv')

    build_srd(a, SRD_ST, S_K, S_T2, 524288)
    a.i('s_lshl_b32 %s, %s, 9' % (sr(S_T0), sr(S_H)))
    a.i('s_sub_u32 %s, %d, %s' % (sr(S_T1), 448 * 8192, sr(S_T0)))
    build_srd(a, SRD_WQ, S_WQ, S_T0, sr(S_T1))
    a.i('s_mul_i32 %s, %s, %d' % (sr(S_T0), sr(S_GRP), 71680))
    build_srd(a, SRD_X, S_X, S_T0, 71680)
    a.i('s_mov_b32 %s, %s' % (sr(S_CG), sr(S_W)))
    a.i('s_cmp_eq_u32 %s, 3' % sr(S_W))
    a.i('s_cselect_b32 %s, 0, %s' % (sr(SRD_WO + 2), sr(SRD_WO + 2)))
    LWQ = [100, 101]
    LX = [102, 103]
    LT = (104, 105)
    pat_T(a, LWQ, LT, 8192)
    pat_U(a, LX, LT, 896, sub=False)
    a.i('s_and_b32 %s, %s, 1' % (sr(S_T0), sr(S_W)))
    a.i('s_cmp_eq_u32 %s, 1' % sr(S_T0))
    a.i('s_cselect_b64 vcc, -1, 0')
    a.i('v_cndmask_b32 %s, %s, %s, vcc' % (vr(LX[0]), vr(LX[0]), vr(LX[1])))
    for k in range(3):
        a.i('s_add_u32 %s, %s, %d' % (sr(S_T0), sr(S_W), 4 * k))
        if k == 2:
            a.i('s_add_u32 %s, %s, 4' % (sr(S_T1), sr(S_W)))
            a.i('s_cmp_ge_u32 %s, 10' % sr(S_T0))
            a.i('s_cselect_b32 %s, %s, %s' % (sr(S_T0), sr(S_T1), sr(S_T0)))
        a.i('s_lshl_b32 %s, %s, 10' % (sr(S_XL[k]), sr(S_T0)))
        a.i('s_lshr_b32 %s, %s, 1' % (sr(S_T0), sr(S_T0)))
        a.i('s_mul_i32 %s, %s, %d' % (sr(S_XG[k]), sr(S_T0), 16 * 896))
    a.i('s_lshl_b32 %s, %s, 7' % (sr(S_WQOFF), sr(S_W)))
    a.i('s_lshl_b32 %s, %s, 13' % (sr(S_T1), sr(S_W)))

    def issue_tile(c):
        sl = c % 3
        for k in range(3):
            a.i('s_add_u32 m0, %s, %d' % (sr(S_XL[k]), XSLOT[sl]))
            a.i('buffer_load_dwordx4 %s, %s, %s offen lds' % (vr(LX[0]), sr(SRD_X, 4), sr(S_XG[k])))
            a.i('s_add_u32 %s, %s, 128' % (sr(S_XG[k]), sr(S_XG[k])))
        for u in range(4):
            a.i('s_add_u32 m0, %s, %d' % (sr(S_T1), WSLOT[sl] + u * 2048))
            a.i('buffer_load_dwordx4 %s, %s, %s offen lds' % (vr(LWQ[0]), sr(SRD_WQ, 4), sr(S_WQOFF)))
            a.i('buffer_load_dwordx4 %s, %s, %s offen offset:1024 lds' % (vr(LWQ[1]), sr(SRD_WQ, 4), sr(S_WQOFF)))
            a.i('s_add_u32 %s, %s, %d' % (sr(S_WQOFF), sr(S_WQOFF), 16 * 8192))

    for c in range(3):
        issue_tile(c)
    T2 = (Q_TMP[0], Q_TMP[1])
    pat_U(a, V_PAT, T2, 512)
    a.i('s_lshl_b32 %s, %s, 13' % (sr(S_SOFF), sr(S_W)))
    a.i('s_mov_b32 %s, 128' % sr(S_STEPU))
    a.i('s_mov_b32 %s, %d' % (sr(S_STEPL), 32768 - 384))
    a.i('s_lshl_b32 %s, %s, 14' % (sr(S_RING), sr(S_W)))
    a.i('s_add_u32 %s, %s, %d' % (sr(S_RING), sr(S_RING), KR0))
    a.i('s_lshl_b32 %s, %s, 5' % (sr(S_T0), sr(S_W)))
    addr_D_write(a, Q_PWA, T2, S_T0)
    a.i('v_add_u32 %s, %d, %s' % (vr(Q_PWA), PB, vr(Q_PWA)))
    a.i('v_and_b32 %s, 15, %s' % (vr(T2[0]), vr(V_LANE)))
    a.i('v_lshlrev_b32 %s, 5, %s' % (vr(T2[0]), vr(T2[0])))
    a.i('v_add_u32 %s, %d, %s' % (vr(Q_MX4), SM, vr(T2[0])))
    a.i('v_bfe_u32 %s, %s, 4, 1' % (vr(T2[0]), vr(V_LANE)))
    a.i('v_lshlrev_b32 %s, 3, %s' % (vr(T2[0]), vr(T2[0])))
    a.i('v_lshrrev_b32 %s, 5, %s' % (vr(T2[1]), vr(V_LANE)))
    a.i('v_lshlrev_b32 %s, 2, %s' % (vr(T2[1]), vr(T2[1])))
    a.i('v_add3_u32 %s, %s, %s, %s' % (vr(Q_MXW), vr(Q_MX4), vr(T2[0]), vr(T2[1])))
    a.i('v_lshlrev_b32 %s, 2, %s' % (vr(T2[0]), vr(V_LANE)))
    a.i('v_add_u32 %s, %d, %s' % (vr(Q_FLW), FL, vr(T2[0])))
    for i in range(5):
        a.i('v_mov_b32 %s, 0' % vr(Q_L + i))
        a.i('v_mov_b32 %s, %s' % (vr(Q_MC + i), f32hex(-1e30)))
    addr_U_read(a, Q_UA, T2)
    for c in range(7):
        n = 22 if c == 0 else (11 if c < 6 else 0)
        a.i('s_waitcnt vmcnt(%d)' % n)
        barrier(a)
        if 1 <= c <= 4:
            issue_tile(c + 2)
    if '--dswrite' in sys.argv:
        a.i('v_lshlrev_b32 v29, 4, v1')
        a.i('v_add_u32 v29, %s, v29' % sr(S_RING))
    if '--kdirect' in sys.argv:
        a.i('v_and_b32 v29, 15, v1')
        a.i('v_lshlrev_b32 v29, 9, v29')
        a.i('v_lshrrev_b32 v16, 4, v1')
        a.i('v_lshlrev_b32 v16, 4, v16')
        a.i('v_add_u32 v29, v29, v16')
    for t in range(2):
        for u in range(4):
            for x in dma_unit(t * 8192 + u * 2048, u == 3):
                a.i(x)
    barrier(a)
    for i in range(5):
        for s in range(8):
            a.i('ds_read_b128 %s, %s offset:%d' % (vr(Q_Q(i, s), 4), vr(Q_UA[s & 1]), QB + (i * 4 + (s >> 1)) * 2048))
            if (i * 8 + s) % 12 == 11:
                a.i('s_waitcnt lgkmcnt(4)')
    a.i('s_waitcnt lgkmcnt(0)')
    for e in range(2):
        a.i('v_add_u32 %s, %s, %s' % (vr(Q_UA[e]), sr(S_RING), vr(Q_UA[e])))
    a.i('s_waitcnt vmcnt(12)')

    def kread(par, s, buf):
        if '--kdirect' in sys.argv:
            return 's_nop 0'
        return 'ds_read_b128 %s, %s offset:%d' % (vr(Q_KF(buf), 4), vr(Q_UA[s & 1]), par * 8192 + (s >> 1) * 2048)

    a.i(kread(0, 0, 0))
    a.i(kread(0, 1, 1))
    a.i('s_waitcnt lgkmcnt(0)')
    a.i('s_mov_b32 %s, 0' % sr(S_P))

    rare_blocks = []

    def qk_phase(par, do_mfma, do_soft, tag):
        pp = 1 - par
        fill = {}
        mf = []
        if do_mfma:
            order = [(s, i) for s in range(6) for i in range(5)] + [(s, i) for i in range(5) for s in (6, 7)]
            for (s, i) in order:
                mf.append(lambda s=s, i=i: mfma(a, Q_S(par, i), Q_KF(s % 4), Q_Q(i, s), '0' if s == 0 else None))
            reads = [(0, 2, 0, 2), (2, 3, 0, 3), (5, 4, 0, 0), (10, 5, 0, 1), (15, 6, 0, 2), (20, 7, 0, 3),
                     (25, 0, 1, 0), (30, 1, 1, 1)]
            refills = [(1, 0), (16, 1), (26, 2), (32, 3)]
            ev = []
            for (m, s, dt, buf) in reads:
                ev.append((m, 0, 'need', dt, s >> 1, s, buf))
            for (m, u) in refills:
                ev.append((m, 1, 'dma', u, 0))
                ev.append((m + 1, 1, 'dma', u, 1))
            ev.sort(key=lambda e: (e[0], e[1]))
            issued = []
            need_n = {}
            for ph in range(4):
                for e in ev:
                    if e[2] == 'dma':
                        issued.append((ph + 2, e[3]))
                    elif ph == 3:
                        key = (ph + e[3], e[4])
                        last = max(k for k, x in enumerate(issued) if x == key)
                        need_n[e[5]] = len(issued) - 1 - last
            for e in ev:
                m = e[0]
                if e[2] == 'need':
                    _, _, _, dt, u, s, buf = e
                    if s % 2 == 0:
                        fill.setdefault(m, []).append('s_waitcnt vmcnt(%d)' % need_n[s])
                    fill.setdefault(m, []).append(kread(pp if dt else par, s, buf))
                else:
                    d = dma_unit(par * 8192 + e[3] * 2048, e[3] == 3)
                    fill.setdefault(m, []).extend(d[0:2] if e[4] == 0 else d[2:4])
        soft = []
        if do_soft:
            pre = ['ds_read_b128 %s, %s offset:%d' % (vr(Q_TMAX, 4), vr(Q_MX4), pp * 512),
                   'ds_read_b32 %s, %s offset:%d' % (vr(Q_TMAX + 4), vr(Q_MX4), pp * 512 + 16),
                   'v_mov_b32 %s, 0' % vr(Q_FLAG)]
            fill.setdefault(-1, []).extend(pre)
            chk = []
            for i in range(5):
                chk.append('v_fma_f32 %s, %s, %s, -%s' % (vr(Q_TMP[i]), vr(Q_TMAX + i), sr(S_C), vr(Q_MC + i)))
            chk.append('v_max3_f32 %s, %s, %s, %s' % (vr(Q_TMP[0]), vr(Q_TMP[0]), vr(Q_TMP[1]), vr(Q_TMP[2])))
            chk.append('v_max3_f32 %s, %s, %s, %s' % (vr(Q_TMP[0]), vr(Q_TMP[0]), vr(Q_TMP[3]), vr(Q_TMP[4])))
            chk.append('v_cmp_lt_f32 vcc, %s, %s' % (f32hex(THR), vr(Q_TMP[0])))

            def br():
                a.i('s_cbranch_vccnz L_q%s_%s' % ('join' if '--norare' in sys.argv else 'rare', tag))
                a.label('L_qjoin_%s' % tag)
            chk.append(br)
            chk.append('ds_write_b32 %s, %s offset:%d' % (vr(Q_FLW), vr(Q_FLAG), pp * 256))
            rare_blocks.append((tag, pp))
            for i in range(5):
                S = Q_S(pp, i)
                for r in range(4):
                    soft.append('v_fma_f32 %s, %s, %s, -%s' % (vr(S + r), vr(S + r), sr(S_C), vr(Q_MC + i)))
                for r in range(4):
                    soft.append('v_exp_f32 %s, %s' % (vr(S + r), vr(S + r)))
                t0 = Q_TMP[5 + (i & 1) * 2]
                soft.append('v_add_f32 %s, %s, %s' % (vr(t0), vr(S), vr(S + 1)))
                soft.append('v_add_f32 %s, %s, %s' % (vr(t0 + 1), vr(S + 2), vr(S + 3)))
                soft.append('v_cvt_pk_bf16_f32 %s, %s, %s' % (vr(S), vr(S), vr(S + 1)))
                soft.append('v_cvt_pk_bf16_f32 %s, %s, %s' % (vr(S + 1), vr(S + 2), vr(S + 3)))
                soft.append('v_add_f32 %s, %s, %s' % (vr(t0), vr(t0), vr(t0 + 1)))
                soft.append('ds_write_b64 %s, %s offset:%d' % (vr(Q_PWA), vr(S, 2), pp * 10240 + i * 2048))
                soft.append('v_add_f32 %s, %s, %s' % (vr(Q_L + i), vr(Q_L + i), vr(t0)))
            if do_mfma:
                spread(fill, chk, 2, 4)
                spread(fill, soft, 5, 34)
            else:
                fill.setdefault(-1, []).extend(chk + soft)
        if do_mfma:
            M = [Q_TMP[9], Q_TMP[10], Q_TMP[11], Q_TMP[12], Q_TMP[4]]
            for i in range(5):
                S = Q_S(par, i)
                m = 35 + i if i < 4 else 40
                m = min(34 + 2 * i, 40)
                fill.setdefault(m, []).extend([
                    'v_max3_f32 %s, %s, %s, %s' % (vr(M[i]), vr(S), vr(S + 1), vr(S + 2)),
                    'v_max_f32 %s, %s, %s' % (vr(M[i]), vr(M[i]), vr(S + 3))])
            fill.setdefault(39, []).extend([
                'v_permlane32_swap_b32 %s, %s' % (vr(M[0]), vr(M[1])),
                'v_max_f32 %s, %s, %s' % (vr(M[0]), vr(M[0]), vr(M[1]))])
            fill.setdefault(41, []).extend([
                'ds_max_f32 %s, %s offset:%d' % (vr(Q_MX4), vr(M[4]), par * 512 + 16),
                'v_permlane32_swap_b32 %s, %s' % (vr(M[2]), vr(M[3])),
                'v_max_f32 %s, %s, %s' % (vr(M[2]), vr(M[2]), vr(M[3])),
                'v_permlane16_swap_b32 %s, %s' % (vr(M[0]), vr(M[2])),
                'v_max_f32 %s, %s, %s' % (vr(M[0]), vr(M[0]), vr(M[2])),
                'ds_max_f32 %s, %s offset:%d' % (vr(Q_MXW), vr(M[0]), par * 512)])
        run_stream(a, mf, fill)
        a.i('s_waitcnt lgkmcnt(0)')
        barrier(a)

    qk_phase(0, True, False, 'p0')
    a.i('s_mov_b32 %s, 1' % sr(S_P))
    a.label('L_qloop')
    INLOOP[0] = True
    qk_phase(1, True, True, 'odd')
    a.i('s_cmp_eq_u32 %s, 15' % sr(S_P))
    a.i('s_cbranch_scc1 L_qdone')
    a.i('s_cmp_eq_u32 %s, 13' % sr(S_P))
    a.i('s_cbranch_scc0 L_qnosw')
    switch_to_wo(a, (Q_TMP[0], Q_TMP[1]))
    a.label('L_qnosw')
    qk_phase(0, True, True, 'even')
    a.i('s_add_u32 %s, %s, 2' % (sr(S_P), sr(S_P)))
    a.i('s_branch L_qloop')
    a.reset()
    a.label('L_qdone')
    INLOOP[0] = False
    qk_phase(0, False, True, 'p16')
    L = [Q_L + i for i in range(5)]
    t = Q_TMP[0]
    a.i('v_permlane32_swap_b32 %s, %s' % (vr(L[0]), vr(L[1])))
    a.i('v_add_f32 %s, %s, %s' % (vr(L[0]), vr(L[0]), vr(L[1])))
    a.i('v_permlane32_swap_b32 %s, %s' % (vr(L[2]), vr(L[3])))
    a.i('v_add_f32 %s, %s, %s' % (vr(L[2]), vr(L[2]), vr(L[3])))
    a.i('v_permlane16_swap_b32 %s, %s' % (vr(L[0]), vr(L[2])))
    a.i('v_add_f32 %s, %s, %s' % (vr(L[0]), vr(L[0]), vr(L[2])))
    a.i('v_mov_b32 %s, %s' % (vr(t), vr(L[4])))
    a.i('v_permlane32_swap_b32 %s, %s' % (vr(L[4]), vr(t)))
    a.i('v_add_f32 %s, %s, %s' % (vr(L[4]), vr(L[4]), vr(t)))
    a.i('v_mov_b32 %s, %s' % (vr(t), vr(L[4])))
    a.i('v_permlane16_swap_b32 %s, %s' % (vr(L[4]), vr(t)))
    a.i('v_add_f32 %s, %s, %s' % (vr(L[4]), vr(L[4]), vr(t)))
    a.i('s_lshl_b32 %s, %s, 9' % (sr(S_T0), sr(S_W)))
    a.i('v_add_u32 %s, %s, %s' % (vr(Q_MXW), sr(S_T0), vr(Q_MXW)))
    a.i('v_add_u32 %s, %s, %s' % (vr(Q_MX4), sr(S_T0), vr(Q_MX4)))
    a.i('ds_write_b32 %s, %s offset:%d' % (vr(Q_MXW), vr(L[0]), LS - SM))
    a.i('ds_write_b32 %s, %s offset:%d' % (vr(Q_MX4), vr(L[4]), LS - SM + 16))
    a.i('s_waitcnt lgkmcnt(0)')
    addr_T_read(a, G_TA, (G_T[0], G_T[1]), S_RING)
    addr_U_read(a, G_UB, (G_T[0], G_T[1]), base_imm=OB)
    for k in range(20):
        for r in range(4):
            a.i('v_mov_b32 %s, 0' % vr(ACC_W(k // 5, k % 5) + r))
    a.i('s_waitcnt vmcnt(0)')
    for x in a_reads(0, 0):
        a.i(x)
    a.i('s_waitcnt lgkmcnt(0)')
    barrier(a)
    barrier(a)
    a.i('s_cmp_eq_u32 %s, 3' % sr(S_W))
    a.i('s_cbranch_scc1 L_fin')
    a.i('s_branch L_oproj')
    a.reset()
    for tag, pp in rare_blocks:
        a.label('L_qrare_%s' % tag)
        a.fence(4)
        for i in range(5):
            tm = Q_TMAX + i
            a.i('v_mul_f32 %s, %s, %s' % (vr(tm), sr(S_C), vr(tm)))
            a.i('v_max_f32 %s, %s, %s' % (vr(Q_TMP[i]), vr(tm), vr(Q_MC + i)))
            a.i('v_sub_f32 %s, %s, %s' % (vr(tm), vr(Q_MC + i), vr(Q_TMP[i])))
            a.i('v_exp_f32 %s, %s' % (vr(tm), vr(tm)))
            a.i('v_mov_b32 %s, %s' % (vr(Q_MC + i), vr(Q_TMP[i])))
            a.i('v_mul_f32 %s, %s, %s' % (vr(Q_L + i), vr(Q_L + i), vr(tm)))
        a.i('ds_write_b128 %s, %s offset:%d' % (vr(Q_MX4), vr(Q_TMAX, 4), AL - SM + pp * 512))
        a.i('ds_write_b32 %s, %s offset:%d' % (vr(Q_MX4), vr(Q_TMAX + 4), AL - SM + pp * 512 + 16))
        a.i('v_mov_b32 %s, 1.0' % vr(Q_FLAG))
        a.i('s_waitcnt lgkmcnt(0)')
        a.fence(4)
        a.i('s_branch L_qjoin_%s' % tag)
        a.reset()

    a.label('L_pv')
    ROLE[0] = 'p'
    build_srd(a, SRD_ST, S_V, S_T2, 524288)
    a.i('s_add_u32 %s, %s, 3' % (sr(S_CG), sr(S_W)))
    GT = (G_T[0], G_T[1])
    addr_T_read(a, G_TA, GT)
    a.i('v_mov_b32 %s, %s' % (vr(G_T[2]), vr(G_TA[0])))
    addr_U_read(a, G_UB, GT)
    a.i('v_mov_b32 %s, %s' % (vr(G_T[3]), vr(G_UB[0])))
    for k in range(80):
        a.i('v_mov_b32 %s, 0' % vr(176 + k))
    a.i('s_lshl_b32 %s, %s, 13' % (sr(S_T0), sr(S_W)))
    a.i('s_add_u32 %s, %s, %d' % (sr(S_WCUR), sr(S_T0), WSLOT[0]))
    a.i('s_add_u32 %s, %s, %d' % (sr(S_WN1), sr(S_T0), WSLOT[1]))
    a.i('s_add_u32 %s, %s, %d' % (sr(S_WN2), sr(S_T0), WSLOT[2]))
    a.i('s_mov_b32 %s, %d' % (sr(S_XCUR), XSLOT[0]))
    a.i('s_mov_b32 %s, %d' % (sr(S_XN1), XSLOT[1]))
    a.i('s_mov_b32 %s, %d' % (sr(S_XN2), XSLOT[2]))
    a.i('s_mov_b32 %s, 0' % sr(S_P))
    a.label('L_qproj')
    a.i('v_add_u32 %s, %s, %s' % (vr(G_TA[0]), sr(S_WCUR), vr(G_T[2])))
    a.i('v_add_u32 %s, %s, %s' % (vr(G_UB[0]), sr(S_XCUR), vr(G_T[3])))
    for k in (1, 2, 3):
        a.i('v_xor_b32 %s, %d, %s' % (vr(G_TA[k]), 32 * k, vr(G_TA[0])))
    a.i('v_xor_b32 %s, 64, %s' % (vr(G_UB[1]), vr(G_UB[0])))
    a.i('s_mov_b32 %s, %s' % (sr(S_T0), sr(S_WCUR)))
    a.i('s_mov_b32 %s, %s' % (sr(S_WCUR), sr(S_WN1)))
    a.i('s_mov_b32 %s, %s' % (sr(S_WN1), sr(S_WN2)))
    a.i('s_mov_b32 %s, %s' % (sr(S_WN2), sr(S_T0)))
    a.i('s_mov_b32 %s, %s' % (sr(S_T0), sr(S_XCUR)))
    a.i('s_mov_b32 %s, %s' % (sr(S_XCUR), sr(S_XN1)))
    a.i('s_mov_b32 %s, %s' % (sr(S_XN1), sr(S_XN2)))
    a.i('s_mov_b32 %s, %s' % (sr(S_XN2), sr(S_T0)))
    barrier(a)
    fill = {}
    A0 = a_reads(0, 0)
    B0 = b_reads(0, lambda i: i * 2048)
    fill[-1] = A0[0:2] + B0 + A0[2:]
    spread(fill, b_reads(1, lambda i: i * 2048) + a_reads(1, 4096), 2, 16)
    run_stream(a, gemm_mfmas(a, ACC_O), fill)
    a.i('s_add_u32 %s, %s, 1' % (sr(S_P), sr(S_P)))
    a.i('s_cmp_lt_u32 %s, 7' % sr(S_P))
    a.i('s_cbranch_scc1 L_qproj')

    def write_D(acc, base_imm_of_i, scale=None):
        for ai in range(4):
            d = G_T[5]
            if ai == 0:
                a.i('v_mov_b32 %s, %s' % (vr(d), vr(G_T[4])))
            else:
                a.i('v_xor_b32 %s, %d, %s' % (vr(d), 32 * ai, vr(G_T[4])))
            for i in range(5):
                R = acc(ai, i)
                if scale is not None:
                    for r in range(4):
                        a.i('v_mul_f32 %s, %s, %s' % (vr(R + r), vr(R + r), vr(scale + i)))
                a.i('v_cvt_pk_bf16_f32 %s, %s, %s' % (vr(R), vr(R), vr(R + 1)))
                a.i('v_cvt_pk_bf16_f32 %s, %s, %s' % (vr(R + 1), vr(R + 2), vr(R + 3)))
                a.i('ds_write_b64 %s, %s offset:%d' % (vr(d), vr(R, 2), base_imm_of_i(i)))
            a.i('s_waitcnt lgkmcnt(0)')

    addr_D_write(a, G_T[4], GT)
    a.i('s_lshl_b32 %s, %s, 11' % (sr(S_T0), sr(S_W)))
    a.i('v_add_u32 %s, %s, %s' % (vr(G_T[4]), sr(S_T0), vr(G_T[4])))
    write_D(ACC_O, lambda i: QB + i * 8192)
    a.i('s_cmp_eq_u32 %s, 3' % sr(S_W))
    a.i('s_cbranch_scc0 L_noinit')
    a.i('v_lshlrev_b32 %s, 4, %s' % (vr(GT[0]), vr(V_LANE)))
    a.i('v_add_u32 %s, %d, %s' % (vr(GT[0]), MX, vr(GT[0])))
    for r in range(4):
        a.i('v_mov_b32 %s, %s' % (vr(G_AL + r), f32hex(-3.0e38)))
    a.i('ds_write_b128 %s, %s' % (vr(GT[0]), vr(G_AL, 4)))
    a.i('s_waitcnt lgkmcnt(0)')
    a.label('L_noinit')
    barrier(a)
    pat_T(a, V_PAT, GT, 512)
    a.i('s_lshl_b32 %s, %s, 7' % (sr(S_SOFF), sr(S_W)))
    a.i('s_mov_b32 %s, 8192' % sr(S_STEPU))
    a.i('s_mov_b32 %s, 8192' % sr(S_STEPL))
    a.i('s_lshl_b32 %s, %s, 14' % (sr(S_RING), sr(S_W)))
    a.i('v_add_u32 %s, %s, %s' % (vr(G_TA[0]), sr(S_RING), vr(G_T[2])))
    for k in (1, 2, 3):
        a.i('v_xor_b32 %s, %d, %s' % (vr(G_TA[k]), 32 * k, vr(G_TA[0])))
    a.i('v_add_u32 %s, %d, %s' % (vr(G_UB[0]), PB, vr(G_T[3])))
    a.i('v_xor_b32 %s, 64, %s' % (vr(G_UB[1]), vr(G_UB[0])))
    a.i('v_lshlrev_b32 %s, 2, %s' % (vr(G_FLA), vr(V_LANE)))
    a.i('v_add_u32 %s, %d, %s' % (vr(G_FLA), FL, vr(G_FLA)))
    a.i('v_and_b32 %s, 15, %s' % (vr(G_ALA), vr(V_LANE)))
    a.i('v_lshlrev_b32 %s, 5, %s' % (vr(G_ALA), vr(G_ALA)))
    a.i('v_add_u32 %s, %d, %s' % (vr(G_ALA), SM, vr(G_ALA)))
    for k in range(80):
        a.i('v_mov_b32 %s, 0' % vr(176 + k))
    for k in range(20):
        for r in range(4):
            a.i('v_mov_b32 %s, 0' % vr(ACC_W(k // 5, k % 5) + r))
    if '--dswrite' in sys.argv:
        a.i('v_lshlrev_b32 v29, 4, v1')
        a.i('v_add_u32 v29, %s, v29' % sr(S_RING))
    barrier(a)
    for t in range(2):
        for u in range(4):
            for x in dma_unit(t * 8192 + u * 2048, u == 3):
                a.i(x)
    a.i('s_waitcnt vmcnt(12)')
    for x in a_reads(0, 0):
        a.i(x)
    a.i('s_waitcnt lgkmcnt(0)')
    barrier(a)
    a.i('s_mov_b32 %s, 2' % sr(S_P))

    pv_rare = []

    def gemm_tile(par, acc, bimm, n_a1, n_a0, refill, flag_tag=None, bar=True, next_a=True):
        fill = {}
        pre = []
        if flag_tag is not None:
            pre.append('ds_read_b32 %s, %s offset:%d' % (vr(G_T[6]), vr(G_FLA), par * 256))
        pre += b_reads(0, lambda i: bimm(i))
        pre.append('s_waitcnt vmcnt(%d)' % n_a1)
        pre += a_reads(1, par * 8192 + 4096)
        if flag_tag is not None:
            pre.append('v_cmp_ne_u32 vcc, 0, %s' % vr(G_T[6]))

            def br():
                a.i('s_cbranch_vccnz L_p%s_%s' % ('join' if '--norare' in sys.argv else 'rare', flag_tag))
                a.label('L_pjoin_%s' % flag_tag)
            pre.append(br)
            pv_rare.append((flag_tag, par))
        fill[-1] = pre
        spread(fill, b_reads(1, lambda i: bimm(i)), 5, 9)
        if refill:
            d = dma_unit(par * 8192, False) + dma_unit(par * 8192 + 2048, False)
            spread(fill, d, 10, 17)
            d = dma_unit(par * 8192 + 4096, False) + dma_unit(par * 8192 + 6144, True)
            fill.setdefault(20, []).append('s_waitcnt lgkmcnt(0)')
            spread(fill, d, 20, 27)
        if next_a:
            spread(fill, ['s_waitcnt vmcnt(%d)' % n_a0] + a_reads(0, (1 - par) * 8192), 28, 36)
        run_stream(a, gemm_mfmas(a, acc), fill)
        a.i('s_waitcnt lgkmcnt(0)')
        if bar:
            barrier(a)

    a.label('L_ploop')
    INLOOP[0] = True
    gemm_tile(0, ACC_O, lambda i: i * 2048, 8, 12, True, 'even')
    gemm_tile(1, ACC_O, lambda i: 10240 + i * 2048, 8, 12, True, 'odd')
    a.i('s_cmp_eq_u32 %s, 14' % sr(S_P))
    a.i('s_cbranch_scc0 L_pnosw')
    switch_to_wo(a, GT)
    a.label('L_pnosw')
    a.i('s_add_u32 %s, %s, 2' % (sr(S_P), sr(S_P)))
    a.i('s_cmp_lt_u32 %s, 18' % sr(S_P))
    a.i('s_cbranch_scc1 L_ploop')
    INLOOP[0] = False
    LT = G_BF(0, 0)
    for w in range(4):
        a.i('ds_read_b128 %s, %s offset:%d' % (vr(LT + w * 8, 4), vr(G_ALA), LS - SM + w * 512))
        a.i('ds_read_b32 %s, %s offset:%d' % (vr(LT + w * 8 + 4), vr(G_ALA), LS - SM + w * 512 + 16))
    for i in range(5):
        a.i('v_add_f32 %s, %s, %s' % (vr(G_AL + i), vr(LT + i), vr(LT + 8 + i)))
        a.i('v_add_f32 %s, %s, %s' % (vr(LT + 16 + i), vr(LT + 16 + i), vr(LT + 24 + i)))
        a.i('v_add_f32 %s, %s, %s' % (vr(G_AL + i), vr(G_AL + i), vr(LT + 16 + i)))
        a.i('v_rcp_f32 %s, %s' % (vr(G_AL + i), vr(G_AL + i)))
    a.i('v_add_u32 %s, %d, %s' % (vr(G_T[4]), OB, vr(G_T[4])))
    write_D(ACC_O, lambda i: i * 8192, scale=G_AL)
    a.i('v_add_u32 %s, %d, %s' % (vr(G_UB[0]), OB, vr(G_T[3])))
    a.i('v_xor_b32 %s, 64, %s' % (vr(G_UB[1]), vr(G_UB[0])))
    barrier(a)
    a.label('L_oproj')
    a.fence(4)
    for tau in range(4):
        gemm_tile(tau & 1, ACC_W, lambda i, tau=tau: (i * 4 + tau) * 2048,
                  n_a1=[8, 8, 8, 0][tau], n_a0=[12, 12, 4, 0][tau], refill=tau < 2, bar=False, next_a=tau < 3)
    stamp(a)
    a.i('v_lshlrev_b32 %s, 4, %s' % (vr(GT[0]), vr(V_LANE)))
    a.i('s_mul_i32 %s, %s, 10240' % (sr(S_T0), sr(S_CG)))
    k = 0
    for i in range(5):
        for ap in range(2):
            R0, R1 = ACC_W(2 * ap, i), ACC_W(2 * ap + 1, i)
            a.i('v_cvt_pk_bf16_f32 %s, %s, %s' % (vr(R0), vr(R0), vr(R0 + 1)))
            a.i('v_cvt_pk_bf16_f32 %s, %s, %s' % (vr(R0 + 1), vr(R0 + 2), vr(R0 + 3)))
            a.i('v_cvt_pk_bf16_f32 %s, %s, %s' % (vr(R0 + 2), vr(R1), vr(R1 + 1)))
            a.i('v_cvt_pk_bf16_f32 %s, %s, %s' % (vr(R0 + 3), vr(R1 + 2), vr(R1 + 3)))
            a.i('buffer_store_dwordx4 %s, %s, %s, %s offen offset:%d' % (vr(R0, 4), vr(GT[0]), sr(SRD_PO, 4), sr(S_T0), (k % 4) * 1024))
            k += 1
            if k % 4 == 0:
                a.i('s_add_u32 %s, %s, 4096' % (sr(S_T0), sr(S_T0)))
    a.label('L_fin')
    stamp_flush(a)
    a.label('L_end')
    a.i('s_endpgm')
    a.reset()
    for tag, par in pv_rare:
        a.label('L_prare_%s' % tag)
        a.i('ds_read_b128 %s, %s offset:%d' % (vr(G_AL, 4), vr(G_ALA), AL - SM + par * 512))
        a.i('ds_read_b32 %s, %s offset:%d' % (vr(G_AL + 4), vr(G_ALA), AL - SM + par * 512 + 16))
        a.i('s_waitcnt lgkmcnt(0)')
        a.fence(9)
        for ai in range(4):
            for i in range(5):
                for r in range(4):
                    R = ACC_O(ai, i) + r
                    a.i('v_mul_f32 %s, %s, %s' % (vr(R), vr(R), vr(G_AL + i)))
        a.fence(4)
        a.i('s_branch L_pjoin_%s' % tag)
        a.reset()


def gen_reduce(a, name):
    a.raw('.globl %s' % name)
    a.raw('.p2align 8')
    a.raw('.type %s,@function' % name)
    a.label(name)
    a.i('s_cmp_ge_u32 s2, 280')
    a.i('s_cbranch_scc1 R_end')
    a.i('s_load_dwordx2 s[4:5], s[0:1], 40')
    a.i('s_load_dwordx2 s[6:7], s[0:1], 56')
    a.i('v_lshrrev_b32 v2, 6, v0')
    a.i('v_and_b32 v1, 63, v0')
    a.i('v_readfirstlane_b32 s8, v2')
    a.i('s_lshl_b32 s9, s2, 2')
    a.i('s_add_u32 s8, s8, s9')
    a.i('s_mov_b32 s9, %d' % ((1 << 32) // 70 + 1))
    a.i('s_mul_hi_u32 s10, s8, s9')
    a.i('s_mul_i32 s11, s10, 70')
    a.i('s_sub_u32 s11, s8, s11')
    a.i('s_mov_b32 s9, %d' % ((1 << 32) // 10 + 1))
    a.i('s_mul_hi_u32 s12, s11, s9')
    a.i('s_mul_i32 s13, s12, 10')
    a.i('s_sub_u32 s13, s11, s13')
    a.i('s_lshr_b32 s14, s13, 1')
    a.i('s_and_b32 s13, s13, 1')
    a.i('s_mul_i32 s15, s10, %d' % (16 * 71680))
    a.i('s_waitcnt lgkmcnt(0)')
    a.i('s_add_u32 s16, s6, s15')
    a.i('s_addc_u32 s17, s7, 0')
    a.i('s_mov_b32 s18, %d' % (16 * 71680))
    a.i('s_mov_b32 s19, 0x20000')
    a.i('s_mov_b32 s20, s4')
    a.i('s_mov_b32 s21, s5')
    a.i('s_mov_b32 s22, %d' % (1280 * 448 * 2))
    a.i('s_mov_b32 s23, 0x20000')
    a.i('s_lshl_b32 s24, s11, 10')
    a.i('v_lshlrev_b32 v2, 4, v1')
    for h in range(16):
        a.i('buffer_load_dwordx4 %s, v2, s[16:19], s24 offen' % vr(16 + 4 * h, 4))
        if h < 15:
            a.i('s_add_u32 s24, s24, 71680')
    a.i('s_mul_i32 s25, s10, 80')
    a.i('s_lshl_b32 s26, s14, 4')
    a.i('s_add_u32 s25, s25, s26')
    a.i('s_mul_i32 s25, s25, 896')
    a.i('s_lshl_b32 s26, s12, 7')
    a.i('s_add_u32 s25, s25, s26')
    a.i('s_lshl_b32 s26, s13, 6')
    a.i('s_add_u32 s25, s25, s26')
    a.i('v_and_b32 v3, 15, v1')
    a.i('v_mul_u32_u24 v3, 896, v3')
    a.i('v_lshrrev_b32 v4, 4, v1')
    a.i('v_lshlrev_b32 v4, 3, v4')
    a.i('v_add_u32 v3, v3, v4')
    a.i('s_mov_b32 s27, 0xffff0000')
    for h in range(16):
        a.i('s_waitcnt vmcnt(%d)' % (15 - h))
        for r in range(4):
            src = 16 + 4 * h + r
            if h == 0:
                a.i('v_lshlrev_b32 %s, 16, %s' % (vr(8 + 2 * r), vr(src)))
                a.i('v_and_b32 %s, s27, %s' % (vr(9 + 2 * r), vr(src)))
            else:
                a.i('v_lshlrev_b32 v5, 16, %s' % vr(src))
                a.i('v_and_b32 v6, s27, %s' % vr(src))
                a.i('v_add_f32 %s, %s, v5' % (vr(8 + 2 * r), vr(8 + 2 * r)))
                a.i('v_add_f32 %s, %s, v6' % (vr(9 + 2 * r), vr(9 + 2 * r)))
    for r in range(4):
        a.i('v_cvt_pk_bf16_f32 %s, %s, %s' % (vr(16 + r), vr(8 + 2 * r), vr(9 + 2 * r)))
    a.i('buffer_store_dwordx2 v[16:17], v3, s[20:23], s25 offen')
    a.i('buffer_store_dwordx2 v[18:19], v3, s[20:23], s25 offen offset:32')
    if '--dbg' in sys.argv:
        wg = 0
        for x in sys.argv:
            if x.startswith('--dbgwg='):
                wg = int(x.split('=')[1])
        a.i('s_cmp_eq_u32 s8, 0')
        a.i('s_cbranch_scc0 R_end')
        a.i('s_load_dwordx2 s[28:29], s[0:1], 48')
        a.i('s_add_u32 s16, s6, %d' % ((128 << 20) + (wg * 8 + 4) * 256))
        a.i('s_addc_u32 s17, s7, 0')
        a.i('s_mov_b32 s18, 256')
        a.i('v_lshlrev_b32 v2, 3, v1')
        a.i('buffer_load_dword v5, v2, s[16:19], 0 offen')
        a.i('s_waitcnt vmcnt(0) lgkmcnt(0)')
        a.i('v_readlane_b32 s30, v5, 0')
        a.i('s_mov_b32 s20, s28')
        a.i('s_mov_b32 s21, s29')
        a.i('s_mov_b32 s22, 64')
        a.i('s_nop 4')
        a.i('v_subrev_u32 v5, s30, v5')
        a.i('v_lshlrev_b32 v2, 2, v1')
        a.i('buffer_store_dword v5, v2, s[20:23], 0 offen')
    a.label('R_end')
    a.i('s_endpgm')
    a.reset()


HEADER = """; Kernarg layout for this problem (64 bytes, ptrs only, base s[0:1]):
;   offset   0: d_in[0] x  shape=(8, 160, 448) dtype=bfloat16
;   offset   8: d_in[1] k_cache  shape=(8, 8, 1024, 256) dtype=bfloat16
;   offset  16: d_in[2] v_cache  shape=(8, 8, 1024, 256) dtype=bfloat16
;   offset  24: d_in[3] wq  shape=(448, 4096) dtype=bfloat16
;   offset  32: d_in[4] wo  shape=(4096, 448) dtype=bfloat16
;   offset  40: d_out     shape=(8, 160, 448) dtype=bfloat16
;   offset  48: d_debug   256 bytes
;   offset  56: d_ws      268435456 bytes workspace
; Generated by gen/gen.py (own generator script).
; @launch kernel=standalone__gqa_block_cached__near_ridge_kernel grid=(256,1,1) block=(512,1,1) lds=%d
; @launch kernel=gqa_reduce_kernel grid=(280,1,1) block=(256,1,1) lds=0
.amdgcn_target "amdgcn-amd-amdhsa--gfx950"
.text
""" % LDS_BYTES


def kd(name, vgpr, sgpr):
    return """.amdhsa_kernel %s
  .amdhsa_next_free_vgpr %d
  .amdhsa_next_free_sgpr %d
  .amdhsa_accum_offset %d
  .amdhsa_group_segment_fixed_size 0
  .amdhsa_kernarg_size 64
  .amdhsa_user_sgpr_count 2
  .amdhsa_user_sgpr_kernarg_segment_ptr 1
  .amdhsa_system_sgpr_workgroup_id_x 1
.end_amdhsa_kernel
""" % (name, vgpr, sgpr, (vgpr + 3) // 4 * 4)


def main():
    out = sys.argv[1] if len(sys.argv) > 1 and not sys.argv[1].startswith('--') else 'standalone__gqa_block_cached__near_ridge.s'
    a = Asm()
    gen_main(a, 'standalone__gqa_block_cached__near_ridge_kernel')
    gen_reduce(a, 'gqa_reduce_kernel')
    txt = HEADER + a.text() + '.section .rodata,"a"\n.p2align 6\n' + \
        kd('standalone__gqa_block_cached__near_ridge_kernel', 256, 96) + '.p2align 6\n' + kd('gqa_reduce_kernel', 80, 32)
    open(out, 'w').write(txt)
    print('wrote', out, a.nins, 'instructions')


if __name__ == '__main__':
    main()
```

```python
import struct, sys, math
from asmlib import Asm, vr, sr

ARGS = sys.argv[1:]
def opt(name, default=None):
    for x in ARGS:
        if x.startswith('--' + name + '='):
            return x.split('=', 1)[1]
    return default
def flag(name):
    return ('--' + name) in ARGS

K1 = 1024
KR0 = 64 * K1
PB = 128 * K1
SM = 152 * K1
FL = SM
AL = SM + 512
RM = SM + 1536
OB = 112 * K1
WSLOT = [128 * K1, 64 * K1, 96 * K1]
XSLOT = [40 * K1, 0, 10 * K1]
QB = 0
LDS_BYTES = 160 * K1


def f32hex(x):
    return '0x%08x' % struct.unpack('<I', struct.pack('<f', x))[0]


CSCALE = math.log2(math.e) / 16.0
THR = 8.0

S_X, S_K, S_V, S_WQ, S_WO, S_OUT, S_DBG, S_WS = 4, 6, 8, 10, 12, 14, 16, 18
S_WAVE, S_W, S_B, S_HKV, S_H, S_GRP = 20, 21, 22, 23, 24, 25
S_T0, S_T1, S_T2, S_T3 = 26, 27, 28, 29
S_C = 30
SRD_ST, SRD_WQ, SRD_X, SRD_WO, SRD_PO = 32, 36, 40, 44, 48
S_SOFF, S_STEPU, S_STEPL, S_RING, S_P, S_LO = 52, 53, 54, 55, 56, 57
S_CG = 58
S_XL = [59, 60, 61]
S_XG = [62, 63, 64]
S_WCUR, S_WN1, S_WN2, S_XCUR, S_XN1, S_XN2 = 65, 66, 67, 68, 69, 70
S_WQOFF = 71
S_PEND = 80
S_PEND2 = 81

V_LANE = 1
G_TA = [2, 3, 4, 5]
G_UB = [6, 7]
V_PAT = [8, 9]
G_FLA = 10
G_ALA = 11
G_AL = 12
G_T = [17, 18, 19, 20, 21, 22, 23]
G_BF = lambda e, i: 72 + e * 20 + i * 4
G_AF = lambda e, a: 112 + e * 16 + a * 4
ACC_O = lambda a, i: 176 + (a * 5 + i) * 4


def ACC_W(a, i):
    k = a * 5 + i
    return 144 + k * 4 if k < 8 else 24 + (k - 8) * 4


Q_UA = [2, 3]
Q_PWA = 4
Q_FLA = 5
Q_T = [6, 7, 18, 16, 17, 18, 19]
Q_PWA2 = 10
Q_L = 11
Q_MQ = lambda i: 20 + 4 * i
Q_KF = lambda k: 40 + k * 4
Q_S = lambda par, i: 56 + par * 20 + i * 4
Q_Q = lambda i, s: 96 + (i * 8 + s) * 4

MFMA = 'v_mfma_f32_16x16x32_bf16'
STAMPS = flag('stamps')
KVPOL = ' nt' if flag('nt') else ''
ROLE = ['q']
QLAG = flag('qlag')
PD = [int(x) for x in opt('pdma', '10,13,16,19,10,13,16,19').split(',')]
INLOOP = [False]


def stamp(a):
    if not STAMPS:
        return
    a.i('s_memrealtime s[72:73]' if flag('rt') else 's_memtime s[72:73]')
    a.i('s_waitcnt lgkmcnt(0)')
    a.i('s_mov_b32 m0, s74')
    a.i('s_nop 0')
    a.i('v_writelane_b32 v0, s72, m0')
    a.i('s_add_u32 s74, s74, 1')


def barrier(a):
    if flag('pre'):
        stamp(a)
    a.i('s_barrier')
    stamp(a)


def stamp_init(a):
    if not STAMPS:
        return
    a.i('s_mov_b32 s74, 0')
    a.i('s_lshl_b32 s75, s2, 3')
    a.i('s_add_u32 s75, s75, %s' % sr(S_WAVE))
    a.i('s_lshl_b32 s75, s75, 8')
    a.i('s_add_u32 s75, s75, %d' % (128 << 20))
    a.i('s_add_u32 s76, %s, s75' % sr(S_WS))
    a.i('s_addc_u32 s77, %s, 0' % sr(S_WS + 1))
    a.i('s_mov_b32 s78, 256')
    a.i('s_mov_b32 s79, 0x20000')
    a.i('v_mov_b32 v0, 0')
    a.i('s_memrealtime s[72:73]')
    a.i('s_waitcnt lgkmcnt(0)')
    a.i('v_writelane_b32 v0, s72, 62')
    stamp(a)


def stamp_flush(a):
    if not STAMPS:
        return
    a.i('s_waitcnt vmcnt(0)')
    stamp(a)
    a.i('s_memrealtime s[72:73]')
    a.i('s_waitcnt lgkmcnt(0)')
    a.i('v_writelane_b32 v0, s72, 63')
    a.i('v_lshlrev_b32 v2, 2, %s' % vr(V_LANE))
    a.i('buffer_store_dword v0, v2, s[76:79], 0 offen')


def mfma(a, d, A, B, c=None):
    a.i('%s %s, %s, %s, %s' % (MFMA, vr(d, 4), vr(A, 4), vr(B, 4), vr(d, 4) if c is None else c))


def build_srd(a, srd, ptr, off_sgpr, nrec):
    a.i('s_add_u32 %s, %s, %s' % (sr(srd), sr(ptr), sr(off_sgpr)))
    a.i('s_addc_u32 %s, %s, 0' % (sr(srd + 1), sr(ptr + 1)))
    a.i('s_mov_b32 %s, %s' % (sr(srd + 2), nrec))
    a.i('s_mov_b32 %s, 0x20000' % sr(srd + 3))


def pat_U(a, dst, tmp, R, sub=True):
    t0, t1 = tmp
    a.i('v_lshrrev_b32 %s, 3, %s' % (vr(t1), vr(V_LANE)))
    a.i('v_and_b32 %s, 7, %s' % (vr(t0), vr(V_LANE)))
    a.i('v_xor_b32 %s, %s, %s' % (vr(t0), vr(t0), vr(t1)))
    a.i('v_lshlrev_b32 %s, 4, %s' % (vr(t0), vr(t0)))
    a.i('v_mul_u32_u24 %s, %d, %s' % (vr(t1), R, vr(t1)))
    a.i('v_add_u32 %s, %s, %s' % (vr(dst[0]), vr(t0), vr(t1)))
    a.i('v_add_u32 %s, %d, %s' % (vr(dst[1]), 8 * R - (1024 if sub else 0), vr(dst[0])))


def pat_T(a, dst, tmp, R):
    t0, t1 = tmp
    a.i('v_lshrrev_b32 %s, 3, %s' % (vr(t0), vr(V_LANE)))
    a.i('v_and_b32 %s, 2, %s' % (vr(t0), vr(t0)))
    a.i('v_and_b32 %s, 7, %s' % (vr(t1), vr(V_LANE)))
    a.i('v_xor_b32 %s, %s, %s' % (vr(t0), vr(t0), vr(t1)))
    a.i('v_lshlrev_b32 %s, 4, %s' % (vr(t0), vr(t0)))
    a.i('v_lshrrev_b32 %s, 3, %s' % (vr(t1), vr(V_LANE)))
    a.i('v_mul_u32_u24 %s, %d, %s' % (vr(t1), R, vr(t1)))
    a.i('v_add_u32 %s, %s, %s' % (vr(dst[0]), vr(t0), vr(t1)))
    a.i('v_xor_b32 %s, 64, %s' % (vr(t0), vr(t0)))
    a.i('v_add_u32 %s, %s, %s' % (vr(dst[1]), vr(t0), vr(t1)))
    a.i('v_add_u32 %s, %d, %s' % (vr(dst[1]), 8 * R - 1024, vr(dst[1])))


def addr_U_read(a, dst, tmp, base_sgpr=None, base_imm=0):
    t0, t1 = tmp
    a.i('v_and_b32 %s, 15, %s' % (vr(t0), vr(V_LANE)))
    a.i('v_and_b32 %s, 7, %s' % (vr(t1), vr(V_LANE)))
    a.i('v_lshlrev_b32 %s, 7, %s' % (vr(t0), vr(t0)))
    a.i('v_lshrrev_b32 %s, 4, %s' % (vr(dst[0]), vr(V_LANE)))
    a.i('v_xor_b32 %s, %s, %s' % (vr(t1), vr(t1), vr(dst[0])))
    a.i('v_lshlrev_b32 %s, 4, %s' % (vr(t1), vr(t1)))
    a.i('v_add_u32 %s, %s, %s' % (vr(dst[0]), vr(t0), vr(t1)))
    if base_imm:
        a.i('v_add_u32 %s, %d, %s' % (vr(dst[0]), base_imm, vr(dst[0])))
    if base_sgpr is not None:
        a.i('v_add_u32 %s, %s, %s' % (vr(dst[0]), sr(base_sgpr), vr(dst[0])))
    a.i('v_xor_b32 %s, 64, %s' % (vr(dst[1]), vr(dst[0])))


def addr_T_read(a, dst, tmp, base_sgpr=None):
    t0, t1 = tmp
    a.i('v_lshrrev_b32 %s, 4, %s' % (vr(t0), vr(V_LANE)))
    a.i('v_lshlrev_b32 %s, 10, %s' % (vr(t0), vr(t0)))
    a.i('v_bfe_u32 %s, %s, 2, 2' % (vr(t1), vr(V_LANE)))
    a.i('v_lshlrev_b32 %s, 7, %s' % (vr(t1), vr(t1)))
    a.i('v_add_u32 %s, %s, %s' % (vr(t0), vr(t0), vr(t1)))
    a.i('v_and_b32 %s, 3, %s' % (vr(t1), vr(V_LANE)))
    a.i('v_lshlrev_b32 %s, 3, %s' % (vr(t1), vr(t1)))
    a.i('v_add_u32 %s, %s, %s' % (vr(t0), vr(t0), vr(t1)))
    a.i('v_bfe_u32 %s, %s, 3, 2' % (vr(t1), vr(V_LANE)))
    a.i('v_lshlrev_b32 %s, 5, %s' % (vr(t1), vr(t1)))
    a.i('v_add_u32 %s, %s, %s' % (vr(dst[0]), vr(t0), vr(t1)))
    if base_sgpr is not None:
        a.i('v_add_u32 %s, %s, %s' % (vr(dst[0]), sr(base_sgpr), vr(dst[0])))
    for k in (1, 2, 3):
        a.i('v_xor_b32 %s, %d, %s' % (vr(dst[k]), 32 * k, vr(dst[0])))


def addr_D_write(a, dst, tmp, chunk2_sgpr=None):
    t0, t1 = tmp
    a.i('v_and_b32 %s, 15, %s' % (vr(t0), vr(V_LANE)))
    a.i('v_and_b32 %s, 7, %s' % (vr(t1), vr(V_LANE)))
    a.i('v_lshlrev_b32 %s, 7, %s' % (vr(t0), vr(t0)))
    a.i('v_lshrrev_b32 %s, 5, %s' % (vr(dst), vr(V_LANE)))
    a.i('v_xor_b32 %s, %s, %s' % (vr(t1), vr(t1), vr(dst)))
    a.i('v_lshlrev_b32 %s, 4, %s' % (vr(t1), vr(t1)))
    a.i('v_add_u32 %s, %s, %s' % (vr(t0), vr(t0), vr(t1)))
    a.i('v_bfe_u32 %s, %s, 4, 1' % (vr(t1), vr(V_LANE)))
    a.i('v_lshlrev_b32 %s, 3, %s' % (vr(t1), vr(t1)))
    a.i('v_add_u32 %s, %s, %s' % (vr(dst), vr(t0), vr(t1)))
    if chunk2_sgpr is not None:
        a.i('v_xor_b32 %s, %s, %s' % (vr(dst), sr(chunk2_sgpr), vr(dst)))


def dma_unit(lds_off, last):
    if flag('nodma') or flag('nodma' + ROLE[0]):
        return ['s_nop 0'] * 4
    KVPOL = ' nt' if (flag('nt') or flag('nt' + ROLE[0])) else ''
    return [
        's_add_u32 m0, %s, %d' % (sr(S_RING), lds_off),
        'buffer_load_dwordx4 %s, %s, %s offen%s lds' % (vr(V_PAT[0]), sr(SRD_ST, 4), sr(S_SOFF), KVPOL),
        'buffer_load_dwordx4 %s, %s, %s offen offset:1024%s lds' % (vr(V_PAT[1]), sr(SRD_ST, 4), sr(S_SOFF), KVPOL),
        's_add_u32 %s, %s, %s' % (sr(S_SOFF), sr(S_SOFF), sr(S_STEPL if last else S_STEPU)),
    ]


def place_dma(fill, lds_off, last, m_a, m_b):
    d = dma_unit(lds_off, last)
    fill.setdefault(m_a - 1, []).append(d[0])
    fill.setdefault(m_a, []).append(d[1])
    fill.setdefault(m_b, []).extend([d[2], d[3]])


def switch_to_wo(a, tmp):
    for k in range(3):
        a.i('s_mov_b32 %s, %s' % (sr(SRD_ST + k), sr(SRD_WO + k)))
    a.i('s_lshl_b32 %s, %s, 7' % (sr(S_SOFF), sr(S_CG)))
    a.i('s_mov_b32 %s, %d' % (sr(S_STEPU), 16 * 896))
    a.i('s_mov_b32 %s, %d' % (sr(S_STEPL), 16 * 896))
    pat_T(a, V_PAT, tmp, 896)


def run_stream(a, mf, fill):
    def emit(lst):
        for x in lst:
            if callable(x):
                x()
            else:
                if INLOOP[0]:
                    if flag('nopw') and x.startswith('ds_write'):
                        continue
                    if flag('notr') and x.startswith('ds_read_b64_tr'):
                        continue
                    if flag('nokr') and x.startswith('ds_read_b128') and ROLE[0] == 'q':
                        continue
                    if flag('nopr') and x.startswith('ds_read_b128') and ROLE[0] == 'p':
                        continue
                    if flag('novalu') and x.startswith('v_') and ROLE[0] == 'q' and not x.startswith('v_cmp'):
                        continue
                a.i(x)
    for m in sorted(k for k in fill if k < 0):
        emit(fill[m])
    for m, f in enumerate(mf):
        f()
        emit(fill.get(m, []))
    for m in sorted(k for k in fill if k >= len(mf)):
        emit(fill[m])


def spread(fill, items, m0, m1):
    n = len(items)
    span = m1 - m0 + 1
    for k, it in enumerate(items):
        m = m0 + (k * span) // n
        fill.setdefault(m, []).append(it)


def a_reads(e_dst, imm):
    out = []
    for ai in range(4):
        for hh in range(2):
            out.append('ds_read_b64_tr_b16 %s, %s offset:%d' % (vr(G_AF(e_dst, ai) + 2 * hh, 2), vr(G_TA[ai]), imm + hh * 512))
    return out


def b_reads(e, imm_of_i):
    return ['ds_read_b128 %s, %s offset:%d' % (vr(G_BF(e, i), 4), vr(G_UB[e]), imm_of_i(i)) for i in range(5)]


def half_mfmas(a, acc, e):
    return [(lambda ai=ai, i=i: mfma(a, acc(ai, i), G_AF(e, ai), G_BF(e, i))) for ai in range(4) for i in range(5)]


def xreduce(a, op, v, t):
    a.i('v_mov_b32 %s, %s' % (vr(t), vr(v)))
    a.i('v_permlane32_swap_b32 %s, %s' % (vr(v), vr(t)))
    a.i('%s %s, %s, %s' % (op, vr(v), vr(v), vr(t)))
    a.i('v_mov_b32 %s, %s' % (vr(t), vr(v)))
    a.i('v_permlane16_swap_b32 %s, %s' % (vr(v), vr(t)))
    a.i('%s %s, %s, %s' % (op, vr(v), vr(v), vr(t)))


def gen_main(a, name):
    a.raw('.globl %s' % name)
    a.raw('.p2align 8')
    a.raw('.type %s,@function' % name)
    a.label(name)
    a.i('s_cmp_ge_u32 s2, 256')
    a.i('s_cbranch_scc1 L_end')
    a.i('s_load_dwordx16 s[4:19], s[0:1], 0')
    a.i('v_and_b32 %s, 63, v0' % vr(V_LANE))
    a.i('v_lshrrev_b32 v2, 6, v0')
    a.i('v_readfirstlane_b32 %s, v2' % sr(S_WAVE))
    if flag('badmap'):
        a.i('s_and_b32 s26, s2, 3')
        a.i('s_lshl_b32 s26, s26, 3')
        a.i('s_bfe_u32 s27, s2, 0x30002')
        a.i('s_and_b32 s2, s2, 0xe0')
        a.i('s_or_b32 s2, s2, s26')
        a.i('s_or_b32 s2, s2, s27')
    a.i('s_and_b32 %s, s2, 7' % sr(S_HKV))
    a.i('s_lshr_b32 %s, s2, 5' % sr(S_B))
    a.i('s_bfe_u32 %s, s2, 0x10004' % sr(S_T0))
    a.i('s_bfe_u32 %s, s2, 0x10003' % sr(S_T1))
    a.i('s_lshl_b32 %s, %s, 1' % (sr(S_H), sr(S_HKV)))
    a.i('s_add_u32 %s, %s, %s' % (sr(S_H), sr(S_H), sr(S_T0)))
    a.i('s_lshl_b32 %s, %s, 1' % (sr(S_GRP), sr(S_B)))
    a.i('s_add_u32 %s, %s, %s' % (sr(S_GRP), sr(S_GRP), sr(S_T1)))
    a.i('s_and_b32 %s, %s, 3' % (sr(S_W), sr(S_WAVE)))
    a.i('s_cmp_ge_u32 %s, 4' % sr(S_WAVE))
    a.i('s_cbranch_scc1 L_pv')

    def common_srds():
        a.i('s_mul_i32 %s, %s, %d' % (sr(S_T0), sr(S_H), 229376))
        build_srd(a, SRD_WO, S_WO, S_T0, 229376)
        a.i('s_lshl_b32 %s, %s, 4' % (sr(S_T0), sr(S_GRP)))
        a.i('s_add_u32 %s, %s, %s' % (sr(S_T0), sr(S_T0), sr(S_H)))
        a.i('s_mul_i32 %s, %s, %d' % (sr(S_T0), sr(S_T0), 71680))
        build_srd(a, SRD_PO, S_WS, S_T0, 71680)
        a.i('s_lshl_b32 %s, %s, 3' % (sr(S_T0), sr(S_B)))
        a.i('s_add_u32 %s, %s, %s' % (sr(S_T0), sr(S_T0), sr(S_HKV)))
        if flag('kvsame'):
            a.i('s_mov_b32 %s, %s' % (sr(S_T0), sr(S_HKV)))
        a.i('s_lshl_b32 %s, %s, 19' % (sr(S_T2), sr(S_T0)))

    LWQ = [100, 101]
    LX = [102, 103]
    LT = (104, 105)
    pat_T(a, LWQ, LT, 8192)
    pat_U(a, LX, LT, 896, sub=False)
    a.i('s_and_b32 %s, %s, 1' % (sr(S_T0), sr(S_W)))
    a.i('s_cmp_eq_u32 %s, 1' % sr(S_T0))
    a.i('s_cselect_b64 vcc, -1, 0')
    a.i('v_cndmask_b32 %s, %s, %s, vcc' % (vr(LX[0]), vr(LX[0]), vr(LX[1])))
    for k in range(3):
        a.i('s_add_u32 %s, %s, %d' % (sr(S_T0), sr(S_W), 4 * k))
        if k == 2:
            a.i('s_add_u32 %s, %s, 4' % (sr(S_T1), sr(S_W)))
            a.i('s_cmp_ge_u32 %s, 10' % sr(S_T0))
            a.i('s_cselect_b32 %s, %s, %s' % (sr(S_T0), sr(S_T1), sr(S_T0)))
        a.i('s_lshl_b32 %s, %s, 10' % (sr(S_XL[k]), sr(S_T0)))
        a.i('s_lshr_b32 %s, %s, 1' % (sr(S_T0), sr(S_T0)))
        a.i('s_mul_i32 %s, %s, %d' % (sr(S_XG[k]), sr(S_T0), 16 * 896))
    a.i('s_lshl_b32 %s, %s, 7' % (sr(S_WQOFF), sr(S_W)))
    a.i('s_lshl_b32 %s, %s, 13' % (sr(S_T3), sr(S_W)))
    a.i('s_lshl_b32 %s, %s, 9' % (sr(S_T0), sr(S_H)))
    a.i('s_sub_u32 %s, %d, %s' % (sr(S_T1), 448 * 8192, sr(S_T0)))
    a.i('s_mul_i32 %s, %s, %d' % (sr(S_T2), sr(S_GRP), 71680))
    a.i('s_waitcnt lgkmcnt(0)')
    build_srd(a, SRD_WQ, S_WQ, S_T0, sr(S_T1))
    build_srd(a, SRD_X, S_X, S_T2, 71680)

    def issue_tile(c):
        sl = c % 3
        for k in range(3):
            a.i('s_add_u32 m0, %s, %d' % (sr(S_XL[k]), XSLOT[sl]))
            a.i('buffer_load_dwordx4 %s, %s, %s offen lds' % (vr(LX[0]), sr(SRD_X, 4), sr(S_XG[k])))
            a.i('s_add_u32 %s, %s, 128' % (sr(S_XG[k]), sr(S_XG[k])))
        for u in range(4):
            a.i('s_add_u32 m0, %s, %d' % (sr(S_T3), WSLOT[sl] + u * 2048))
            a.i('buffer_load_dwordx4 %s, %s, %s offen lds' % (vr(LWQ[0]), sr(SRD_WQ, 4), sr(S_WQOFF)))
            a.i('buffer_load_dwordx4 %s, %s, %s offen offset:1024 lds' % (vr(LWQ[1]), sr(SRD_WQ, 4), sr(S_WQOFF)))
            a.i('s_add_u32 %s, %s, %d' % (sr(S_WQOFF), sr(S_WQOFF), 16 * 8192))

    for c in range(2):
        issue_tile(c)
    stamp_init(a)
    common_srds()
    build_srd(a, SRD_ST, S_K, S_T2, 524288)
    a.i('s_mov_b32 %s, %s' % (sr(S_CG), sr(S_W)))
    a.i('s_cmp_eq_u32 %s, 3' % sr(S_W))
    a.i('s_cselect_b32 %s, 0, %s' % (sr(SRD_WO + 2), sr(SRD_WO + 2)))
    T2 = (Q_T[0], Q_T[1])
    pat_U(a, V_PAT, T2, 512)
    a.i('s_lshl_b32 %s, %s, 13' % (sr(S_SOFF), sr(S_W)))
    a.i('s_mov_b32 %s, 128' % sr(S_STEPU))
    a.i('s_mov_b32 %s, %d' % (sr(S_STEPL), 32768 - 384))
    a.i('s_lshl_b32 %s, %s, 14' % (sr(S_RING), sr(S_W)))
    a.i('s_add_u32 %s, %s, %d' % (sr(S_RING), sr(S_RING), KR0))
    a.i('s_lshl_b32 %s, %s, 5' % (sr(S_T0), sr(S_W)))
    addr_D_write(a, Q_PWA, T2, S_T0)
    a.i('v_add_u32 %s, %d, %s' % (vr(Q_PWA), PB, vr(Q_PWA)))
    a.i('v_bfe_u32 %s, %s, 4, 1' % (vr(T2[0]), vr(V_LANE)))
    a.i('v_mul_u32_u24 %s, %d, %s' % (vr(T2[0]), 2040, vr(T2[0])))
    a.i('v_add_u32 %s, %s, %s' % (vr(Q_PWA2), vr(T2[0]), vr(Q_PWA)))
    a.i('v_mov_b32 %s, %d' % (vr(Q_FLA), FL))
    for i in range(5):
        a.i('v_mov_b32 %s, 0' % vr(Q_L + i))
        for r in range(4):
            a.i('v_mov_b32 %s, 0' % vr(Q_MQ(i) + r))
    addr_U_read(a, Q_UA, T2)
    for c in range(7):
        n = 11 if c < 6 else 0
        a.i('s_waitcnt vmcnt(%d)' % n)
        barrier(a)
        if c <= 4:
            issue_tile(c + 2)
    for t in range(2):
        for u in range(4):
            if QLAG and t == 1 and u == 3:
                continue
            for x in dma_unit(t * 8192 + u * 2048, u == 3):
                a.i(x)
    barrier(a)
    QA = [Q_T[0], Q_T[1]]
    for e in range(2):
        a.i('v_mov_b32 %s, %s' % (vr(QA[e]), vr(Q_UA[e])))
        a.i('v_add_u32 %s, %s, %s' % (vr(Q_UA[e]), sr(S_RING), vr(Q_UA[e])))

    def qread(i, s):
        return 'ds_read_b128 %s, %s offset:%d' % (vr(Q_Q(i, s), 4), vr(QA[s & 1]), QB + (i * 4 + (s >> 1)) * 2048)

    def kread(par, s, buf):
        return 'ds_read_b128 %s, %s offset:%d' % (vr(Q_KF(buf), 4), vr(Q_UA[s & 1]), par * 8192 + (s >> 1) * 2048)

    a.i('s_waitcnt vmcnt(12)')
    a.i(kread(0, 0, 0))
    a.i(kread(0, 1, 1))
    a.i('s_waitcnt lgkmcnt(0)')
    a.i('s_mov_b32 %s, 0' % sr(S_P))
    barrier(a)

    q_rare = []
    q_setf = []

    def qk_phase(par, do_mfma, do_soft, tag):
        pp = 1 - par
        fill = {}
        mf = []
        if do_mfma:
            order = [(s, i) for s in range(6) for i in range(5)] + [(s, i) for i in range(5) for s in (6, 7)]
            for (s, i) in order:
                mf.append(lambda s=s, i=i: mfma(a, Q_S(par, i), Q_KF(s % 4), Q_Q(i, s), vr(Q_MQ(i), 4) if s == 0 else None))
            reads = [(0, 2, 0, 2), (1, 3, 0, 3), (5, 4, 0, 0), (10, 5, 0, 1), (15, 6, 0, 2), (20, 7, 0, 3),
                     (25, 0, 1, 0), (30, 1, 1, 1)]
            refills = [(3, 8, 0, 0), (16, 21, 1, 0), (26, 29, 2, 0), (33, 37, 3, 0)]
            if opt('qdma'):
                q = [int(x) for x in opt('qdma').split(',')]
                refills = [(q[2 * u], q[2 * u + 1], u, 0) for u in range(4)]
            if QLAG:
                q = [int(x) for x in opt('qdma', '2,7,12,17,22,27,32,37').split(',')]
                refills = [(q[0], q[1], 3, -1), (q[2], q[3], 0, 0), (q[4], q[5], 1, 0), (q[6], q[7], 2, 0)]
            ev = []
            for (m, s, dt, buf) in reads:
                ev.append((m, 0, 'need', dt, s >> 1, s, buf))
            for (ma, mb, u, dt) in refills:
                ev.append((ma, 1, 'dma', u, dt))
                ev.append((mb, 1, 'dma', u, dt))
            ev.sort(key=lambda e: (e[0], e[1]))
            issued = []
            need_n = {}
            for ph in range(4):
                for e in ev:
                    if e[2] == 'dma':
                        issued.append((ph + 2 + e[4], e[3]))
                    elif ph == 3:
                        key = (ph + e[3], e[4])
                        last = max(k for k, x in enumerate(issued) if x == key)
                        need_n[e[5]] = len(issued) - 1 - last
            for (m, s, dt, buf) in reads:
                if s % 2 == 0:
                    fill.setdefault(m, []).append('s_waitcnt vmcnt(%d)' % need_n[s])
                fill.setdefault(m, []).append(kread(pp if dt else par, s, buf))
            for (ma, mb, u, dt) in refills:
                place_dma(fill, (pp if dt else par) * 8192 + u * 2048, u == 3, ma, mb)
                if QLAG and dt and tag == 'even':
                    def sw():
                        a.i('s_cmp_eq_u32 %s, 14' % sr(S_P))
                        a.i('s_cbranch_scc0 L_qnosw2')
                        switch_to_wo(a, (Q_T[5], Q_T[6]))
                        a.label('L_qnosw2')
                    fill.setdefault(mb, []).append(sw)
        if tag == 'p0':
            qr = [qread(i, s) for s in range(8) for i in range(5)]
            fill.setdefault(-1, []).extend(qr[:10])
            for k, x in enumerate(qr[10:]):
                fill.setdefault(k * 2 // 3, []).append(x)
        if do_soft:
            fill.setdefault(-1, []).append('ds_read_b32 %s, %s offset:%d' % (vr(Q_T[2]), vr(Q_FLA), pp * 4))
            chk = ['v_cmp_eq_u32 vcc, %s, %s' % (sr(S_P), vr(Q_T[2]))]

            def br():
                a.i('s_cbranch_vccnz L_q%s_%s' % ('join' if flag('norare') else 'rare', tag))
                a.label('L_qjoin_%s' % tag)
            chk.append(br)
            q_rare.append((tag, par, do_mfma))
            soft = []
            for i in range(5):
                S = Q_S(pp, i)
                t0, t1 = (Q_T[0], Q_T[1]) if i % 2 == 0 else (Q_T[3], Q_T[4])
                for r in range(4):
                    soft.append('v_exp_f32 %s, %s' % (vr(S + r), vr(S + r)))
                soft.append('v_add_f32 %s, %s, %s' % (vr(t0), vr(S), vr(S + 1)))
                soft.append('v_add_f32 %s, %s, %s' % (vr(t1), vr(S + 2), vr(S + 3)))
                D = S if i % 2 == 0 else Q_S(pp, i - 1) + 2
                if flag('pw64'):
                    D = S
                soft.append('v_cvt_pk_bf16_f32 %s, %s, %s' % (vr(D), vr(S), vr(S + 1)))
                soft.append('v_cvt_pk_bf16_f32 %s, %s, %s' % (vr(D + 1), vr(S + 2), vr(S + 3)))
                soft.append('v_add_f32 %s, %s, %s' % (vr(t0), vr(t0), vr(t1)))
                if i == 4 or flag('pw64'):
                    soft.append('ds_write_b64 %s, %s offset:%d' % (vr(Q_PWA), vr(S, 2), pp * 10240 + i * 2048))
                elif i % 2 == 1:
                    A = Q_S(pp, i - 1)
                    soft.append('v_permlane16_swap_b32 %s, %s' % (vr(A), vr(A + 2)))
                    soft.append('v_permlane16_swap_b32 %s, %s' % (vr(A + 1), vr(A + 3)))
                    soft.append('ds_write_b128 %s, %s offset:%d' % (vr(Q_PWA2), vr(A, 4), pp * 10240 + (i - 1) * 2048))
                soft.append('v_add_f32 %s, %s, %s' % (vr(Q_L + i), vr(Q_L + i), vr(t0)))
            if do_mfma:
                fill.setdefault(5, []).extend(chk)
                if opt('wpos'):
                    wr = [x for x in soft if x.startswith('ds_write')]
                    soft = [x for x in soft if not x.startswith('ds_write')]
                    wp = [int(x) for x in opt('wpos').split(',')]
                    spread(fill, soft, 6, int(opt('softend', 31)))
                    for k, x in enumerate(wr):
                        fill.setdefault(wp[k] if len(wp) > 1 else wp[0], []).append(x)
                else:
                    spread(fill, soft, 6, int(opt('softend', 31)))
            else:
                fill.setdefault(-1, []).extend(chk + soft)
        if tag == 'p0':
            M = [Q_S(1, 0) + k for k in range(5)]
            t5, adw, ad4 = Q_S(1, 0) + 5, Q_S(1, 0) + 6, Q_S(1, 0) + 7
            pre = ['v_and_b32 %s, 15, %s' % (vr(ad4), vr(V_LANE)),
                   'v_lshlrev_b32 %s, 7, %s' % (vr(ad4), vr(ad4)),
                   's_lshl_b32 %s, %s, 2' % (sr(S_T0), sr(S_W)),
                   's_add_u32 %s, %s, %d' % (sr(S_T0), sr(S_T0), RM),
                   'v_add_u32 %s, %s, %s' % (vr(ad4), sr(S_T0), vr(ad4)),
                   'v_bfe_u32 %s, %s, 4, 1' % (vr(adw), vr(V_LANE)),
                   'v_lshlrev_b32 %s, 5, %s' % (vr(adw), vr(adw)),
                   'v_lshrrev_b32 %s, 5, %s' % (vr(t5), vr(V_LANE)),
                   'v_lshlrev_b32 %s, 4, %s' % (vr(t5), vr(t5)),
                   'v_add3_u32 %s, %s, %s, %s' % (vr(adw), vr(adw), vr(t5), vr(ad4))]
            spread(fill, pre, 22, 31)
            for i in range(5):
                S = Q_S(par, i)
                fill.setdefault(min(34 + 2 * i, 40), []).extend([
                    'v_max3_f32 %s, %s, %s, %s' % (vr(M[i]), vr(S), vr(S + 1), vr(S + 2)),
                    'v_max_f32 %s, %s, %s' % (vr(M[i]), vr(M[i]), vr(S + 3))])

            def red0():
                a.i('v_permlane32_swap_b32 %s, %s' % (vr(M[0]), vr(M[1])))
                a.i('v_permlane32_swap_b32 %s, %s' % (vr(M[2]), vr(M[3])))
                a.i('v_max_f32 %s, %s, %s' % (vr(M[0]), vr(M[0]), vr(M[1])))
                a.i('v_max_f32 %s, %s, %s' % (vr(M[2]), vr(M[2]), vr(M[3])))
                xreduce(a, 'v_max_f32', M[4], t5)
                a.i('v_permlane16_swap_b32 %s, %s' % (vr(M[0]), vr(M[2])))
                a.i('v_max_f32 %s, %s, %s' % (vr(M[0]), vr(M[0]), vr(M[2])))
                a.i('ds_write_b32 %s, %s offset:64' % (vr(ad4), vr(M[4])))
                a.i('ds_write_b32 %s, %s' % (vr(adw), vr(M[0])))
            fill.setdefault(41, []).append(red0)
        elif do_mfma:
            M0_, M1_ = Q_T[5], Q_T[6]
            for i in range(5):
                S = Q_S(par, i)
                m = min(34 + 2 * i, 40)
                if i == 0:
                    ops = ['v_max3_f32 %s, %s, %s, %s' % (vr(M0_), vr(S), vr(S + 1), vr(S + 2)),
                           'v_mov_b32 %s, %s' % (vr(M1_), vr(S + 3))]
                else:
                    ops = ['v_max3_f32 %s, %s, %s, %s' % (vr(M0_), vr(M0_), vr(S), vr(S + 1)),
                           'v_max3_f32 %s, %s, %s, %s' % (vr(M1_), vr(M1_), vr(S + 2), vr(S + 3))]
                fill.setdefault(m, []).extend(ops)

            def endchk():
                a.i('v_max_f32 %s, %s, %s' % (vr(M0_), vr(M0_), vr(M1_)))
                a.i('v_cmp_lt_f32 vcc, %s, %s' % (f32hex(THR), vr(M0_)))
                a.i('s_cbranch_vccnz L_q%s_%s' % ('setj' if flag('norare') else 'setf', tag))
                a.label('L_qsetj_%s' % tag)
            fill.setdefault(41, []).append(endchk)
            q_setf.append((tag, par))
        run_stream(a, mf, fill)
        a.i('s_add_u32 %s, %s, 1' % (sr(S_P), sr(S_P)))
        a.i('s_waitcnt lgkmcnt(0)')
        barrier(a)

    qk_phase(0, True, False, 'p0')
    ad = Q_T[0]
    a.i('v_and_b32 %s, 15, %s' % (vr(ad), vr(V_LANE)))
    a.i('v_lshlrev_b32 %s, 7, %s' % (vr(ad), vr(ad)))
    a.i('v_add_u32 %s, %d, %s' % (vr(ad), RM, vr(ad)))
    for i in range(5):
        a.i('ds_read_b128 %s, %s offset:%d' % (vr(Q_S(1, i), 4), vr(ad), 16 * i))
    for i in range(5):
        R = Q_S(1, i)
        a.i('v_max3_f32 %s, %s, %s, %s' % (vr(R), vr(R), vr(R + 1), vr(R + 2)))
        a.i('v_max_f32 %s, %s, %s' % (vr(R), vr(R), vr(R + 3)))
        for r in range(4):
            a.i('v_sub_f32 %s, 0, %s' % (vr(Q_MQ(i) + r), vr(R)))
    for i in range(5):
        for r in range(4):
            a.i('v_add_f32 %s, %s, %s' % (vr(Q_S(0, i) + r), vr(Q_S(0, i) + r), vr(Q_MQ(i))))
    a.label('L_qloop')
    INLOOP[0] = True
    qk_phase(1, True, True, 'odd')
    a.i('s_cmp_eq_u32 %s, 16' % sr(S_P))
    a.i('s_cbranch_scc1 L_qdone')
    if not QLAG:
        a.i('s_cmp_eq_u32 %s, 14' % sr(S_P))
        a.i('s_cbranch_scc0 L_qnosw')
        switch_to_wo(a, (Q_T[0], Q_T[1]))
        a.label('L_qnosw')
    qk_phase(0, True, True, 'even')
    a.i('s_branch L_qloop')
    a.reset()
    a.label('L_qdone')
    INLOOP[0] = False
    if QLAG:
        for x in dma_unit(8192 + 3 * 2048, True):
            a.i(x)
    qk_phase(0, False, True, 'p16')
    ad4, adw, t5 = Q_T[0], Q_T[1], Q_T[3]
    a.i('v_and_b32 %s, 15, %s' % (vr(ad4), vr(V_LANE)))
    a.i('v_lshlrev_b32 %s, 7, %s' % (vr(ad4), vr(ad4)))
    a.i('s_lshl_b32 %s, %s, 2' % (sr(S_T0), sr(S_W)))
    a.i('s_add_u32 %s, %s, %d' % (sr(S_T0), sr(S_T0), RM))
    a.i('v_add_u32 %s, %s, %s' % (vr(ad4), sr(S_T0), vr(ad4)))
    a.i('v_bfe_u32 %s, %s, 4, 1' % (vr(adw), vr(V_LANE)))
    a.i('v_lshlrev_b32 %s, 5, %s' % (vr(adw), vr(adw)))
    a.i('v_lshrrev_b32 %s, 5, %s' % (vr(t5), vr(V_LANE)))
    a.i('v_lshlrev_b32 %s, 4, %s' % (vr(t5), vr(t5)))
    a.i('v_add3_u32 %s, %s, %s, %s' % (vr(adw), vr(adw), vr(t5), vr(ad4)))
    L = [Q_L + i for i in range(5)]
    a.i('v_permlane32_swap_b32 %s, %s' % (vr(L[0]), vr(L[1])))
    a.i('v_permlane32_swap_b32 %s, %s' % (vr(L[2]), vr(L[3])))
    a.i('v_add_f32 %s, %s, %s' % (vr(L[0]), vr(L[0]), vr(L[1])))
    a.i('v_add_f32 %s, %s, %s' % (vr(L[2]), vr(L[2]), vr(L[3])))
    xreduce(a, 'v_add_f32', L[4], t5)
    a.i('v_permlane16_swap_b32 %s, %s' % (vr(L[0]), vr(L[2])))
    a.i('v_add_f32 %s, %s, %s' % (vr(L[0]), vr(L[0]), vr(L[2])))
    a.i('ds_write_b32 %s, %s offset:64' % (vr(ad4), vr(L[4])))
    a.i('ds_write_b32 %s, %s' % (vr(adw), vr(L[0])))
    a.i('s_waitcnt lgkmcnt(0)')
    addr_T_read(a, G_TA, (G_T[0], G_T[1]), S_RING)
    addr_U_read(a, G_UB, (G_T[0], G_T[1]), base_imm=OB)
    for k in range(20):
        for r in range(4):
            a.i('v_mov_b32 %s, 0' % vr(ACC_W(k // 5, k % 5) + r))
    a.i('s_waitcnt vmcnt(0)')
    barrier(a)
    barrier(a)
    a.i('s_cmp_eq_u32 %s, 3' % sr(S_W))
    a.i('s_cbranch_scc1 L_fin')
    a.i('s_branch L_oproj')
    a.reset()
    for tag, par in q_setf:
        a.label('L_qsetf_%s' % tag)
        a.i('s_add_u32 %s, %s, 1' % (sr(S_T0), sr(S_P)))
        a.i('v_mov_b32 %s, %s' % (vr(Q_T[5]), sr(S_T0)))
        a.i('ds_write_b32 %s, %s offset:%d' % (vr(Q_FLA), vr(Q_T[5]), par * 4))
        a.i('s_branch L_qsetj_%s' % tag)
        a.reset()
    for tag, par, has_cur in q_rare:
        pp = 1 - par
        a.label('L_qrare_%s' % tag)
        a.fence(10)
        ad, t0, mx = Q_T[1], Q_T[0], Q_T[6]
        a.i('v_and_b32 %s, 15, %s' % (vr(ad), vr(V_LANE)))
        a.i('v_lshlrev_b32 %s, 5, %s' % (vr(ad), vr(ad)))
        a.i('v_add_u32 %s, %d, %s' % (vr(ad), SM, vr(ad)))
        a.i('s_lshl_b32 %s, %s, 9' % (sr(S_T0), sr(S_W)))
        a.i('v_add_u32 %s, %s, %s' % (vr(Q_T[3]), sr(S_T0), vr(ad)))
        for i in range(5):
            S = Q_S(pp, i)
            a.i('v_max3_f32 %s, %s, %s, %s' % (vr(mx), vr(S), vr(S + 1), vr(S + 2)))
            a.i('v_max_f32 %s, %s, %s' % (vr(mx), vr(mx), vr(S + 3)))
            xreduce(a, 'v_max_f32', mx, t0)
            a.i('ds_write_b32 %s, %s offset:%d' % (vr(Q_T[3]), vr(mx), RM - SM + 4 * i))
        a.i('s_waitcnt lgkmcnt(0)')
        a.i('s_barrier')
        for i in range(5):
            r4 = [Q_T[3], Q_T[4], Q_T[5], Q_T[0]]
            for w in range(4):
                a.i('ds_read_b32 %s, %s offset:%d' % (vr(r4[w]), vr(ad), RM - SM + w * 512 + 4 * i))
            a.i('v_max3_f32 %s, %s, %s, %s' % (vr(mx), vr(r4[0]), vr(r4[1]), vr(r4[2])))
            a.i('v_max3_f32 %s, %s, %s, %s' % (vr(mx), vr(mx), vr(r4[3]), 0))
            for r in range(4):
                a.i('v_sub_f32 %s, %s, %s' % (vr(Q_S(pp, i) + r), vr(Q_S(pp, i) + r), vr(mx)))
                if has_cur:
                    a.i('v_sub_f32 %s, %s, %s' % (vr(Q_S(par, i) + r), vr(Q_S(par, i) + r), vr(mx)))
                a.i('v_sub_f32 %s, %s, %s' % (vr(Q_MQ(i) + r), vr(Q_MQ(i) + r), vr(mx)))
            a.i('v_exp_f32 %s, -%s' % (vr(t0), vr(mx)))
            a.i('v_mul_f32 %s, %s, %s' % (vr(Q_L + i), vr(Q_L + i), vr(t0)))
            a.i('ds_write_b32 %s, %s offset:%d' % (vr(ad), vr(t0), AL - SM + pp * 512 + 4 * i))
        a.i('s_waitcnt lgkmcnt(0)')
        a.fence(4)
        a.i('s_branch L_qjoin_%s' % tag)
        a.reset()

    a.label('L_pv')
    ROLE[0] = 'p'
    GT = (G_T[0], G_T[1])
    addr_T_read(a, G_TA, GT)
    a.i('v_mov_b32 %s, %s' % (vr(G_T[2]), vr(G_TA[0])))
    addr_U_read(a, G_UB, GT)
    a.i('v_mov_b32 %s, %s' % (vr(G_T[3]), vr(G_UB[0])))
    for k in range(80):
        a.i('v_mov_b32 %s, 0' % vr(176 + k))
    a.i('s_waitcnt lgkmcnt(0)')
    stamp_init(a)
    common_srds()
    build_srd(a, SRD_ST, S_V, S_T2, 524288)
    a.i('s_add_u32 %s, %s, 3' % (sr(S_CG), sr(S_W)))
    a.i('s_mov_b32 %s, %s' % (sr(S_C), f32hex(CSCALE)))
    a.i('s_mov_b32 %s, %s' % (sr(S_C + 1), f32hex(CSCALE)))
    a.i('s_lshl_b32 %s, %s, 13' % (sr(S_T0), sr(S_W)))
    a.i('s_add_u32 %s, %s, %d' % (sr(S_WCUR), sr(S_T0), WSLOT[0]))
    a.i('s_add_u32 %s, %s, %d' % (sr(S_WN1), sr(S_T0), WSLOT[1]))
    a.i('s_add_u32 %s, %s, %d' % (sr(S_WN2), sr(S_T0), WSLOT[2]))
    a.i('s_mov_b32 %s, %d' % (sr(S_XCUR), XSLOT[0]))
    a.i('s_mov_b32 %s, %d' % (sr(S_XN1), XSLOT[1]))
    a.i('s_mov_b32 %s, %d' % (sr(S_XN2), XSLOT[2]))
    a.i('s_mov_b32 %s, 0' % sr(S_P))

    def q_addr_update():
        out = ['v_add_u32 %s, %s, %s' % (vr(G_TA[0]), sr(S_WCUR), vr(G_T[2])),
               'v_add_u32 %s, %s, %s' % (vr(G_UB[0]), sr(S_XCUR), vr(G_T[3]))]
        for k in (1, 2, 3):
            out.append('v_xor_b32 %s, %d, %s' % (vr(G_TA[k]), 32 * k, vr(G_TA[0])))
        out.append('v_xor_b32 %s, 64, %s' % (vr(G_UB[1]), vr(G_UB[0])))
        out += ['s_mov_b32 %s, %s' % (sr(S_T0), sr(S_WCUR)), 's_mov_b32 %s, %s' % (sr(S_WCUR), sr(S_WN1)),
                's_mov_b32 %s, %s' % (sr(S_WN1), sr(S_WN2)), 's_mov_b32 %s, %s' % (sr(S_WN2), sr(S_T0)),
                's_mov_b32 %s, %s' % (sr(S_T0), sr(S_XCUR)), 's_mov_b32 %s, %s' % (sr(S_XCUR), sr(S_XN1)),
                's_mov_b32 %s, %s' % (sr(S_XN1), sr(S_XN2)), 's_mov_b32 %s, %s' % (sr(S_XN2), sr(S_T0))]
        return out

    XI = lambda i: i * 2048
    for x in q_addr_update():
        a.i(x)
    barrier(a)
    A0 = a_reads(0, 0)
    for x in A0[0:2] + b_reads(0, XI) + A0[2:]:
        a.i(x)
    a.label('L_qproj')
    fill = {}
    spread(fill, b_reads(1, XI) + a_reads(1, 4096), 1, 8)
    spread(fill, q_addr_update(), 12, 19)
    run_stream(a, half_mfmas(a, ACC_O, 0), fill)
    a.i('s_waitcnt lgkmcnt(0)')
    barrier(a)
    fill = {}
    A0 = a_reads(0, 0)
    spread(fill, A0[0:2] + b_reads(0, XI) + A0[2:], 0, 9)
    fill.setdefault(17, []).extend(['s_add_u32 %s, %s, 1' % (sr(S_P), sr(S_P)), 's_cmp_lt_u32 %s, 7' % sr(S_P)])
    run_stream(a, half_mfmas(a, ACC_O, 1), fill)
    a.i('s_cbranch_scc1 L_qproj')
    a.i('s_waitcnt lgkmcnt(0)')

    WA = [G_T[4], G_T[5], G_T[6], G_T[0]]

    def write_D_addr():
        return ['v_xor_b32 %s, %d, %s' % (vr(WA[ai]), 32 * ai, vr(G_T[4])) for ai in range(1, 4)]

    def write_D_ops(acc, ai, i, imm, scale):
        R = acc(ai, i)
        return ['v_pk_mul_f32 %s, %s, %s' % (vr(R, 2), vr(R, 2), scale),
                'v_pk_mul_f32 %s, %s, %s' % (vr(R + 2, 2), vr(R + 2, 2), scale),
                'v_cvt_pk_bf16_f32 %s, %s, %s' % (vr(R), vr(R), vr(R + 1)),
                'v_cvt_pk_bf16_f32 %s, %s, %s' % (vr(R + 1), vr(R + 2), vr(R + 3)),
                'ds_write_b64 %s, %s offset:%d' % (vr(WA[ai]), vr(R, 2), imm)]

    def write_D(acc, base_imm_of_i, scale):
        for x in write_D_addr():
            a.i(x)
        for ai in range(4):
            for i in range(5):
                for x in write_D_ops(acc, ai, i, base_imm_of_i(i), scale(i)):
                    a.i(x)
        a.i('s_waitcnt lgkmcnt(0)')

    addr_D_write(a, G_T[4], GT)
    a.i('s_lshl_b32 %s, %s, 11' % (sr(S_T0), sr(S_W)))
    a.i('v_add_u32 %s, %s, %s' % (vr(G_T[4]), sr(S_T0), vr(G_T[4])))
    a.i('v_mov_b32 %s, %d' % (vr(G_FLA), FL))
    a.i('v_mov_b32 %s, 0' % vr(G_AL))
    a.i('v_mov_b32 %s, 0' % vr(G_AL + 1))
    a.i('ds_write_b64 %s, %s' % (vr(G_FLA), vr(G_AL, 2)))
    write_D(ACC_O, lambda i: QB + i * 8192, lambda i: sr(S_C, 2))
    barrier(a)
    pat_T(a, V_PAT, GT, 512)
    a.i('s_lshl_b32 %s, %s, 7' % (sr(S_SOFF), sr(S_W)))
    a.i('s_mov_b32 %s, 8192' % sr(S_STEPU))
    a.i('s_mov_b32 %s, 8192' % sr(S_STEPL))
    a.i('s_lshl_b32 %s, %s, 14' % (sr(S_RING), sr(S_W)))
    a.i('v_add_u32 %s, %s, %s' % (vr(G_TA[0]), sr(S_RING), vr(G_T[2])))
    for k in (1, 2, 3):
        a.i('v_xor_b32 %s, %d, %s' % (vr(G_TA[k]), 32 * k, vr(G_TA[0])))
    a.i('v_add_u32 %s, %d, %s' % (vr(G_UB[0]), PB, vr(G_T[3])))
    a.i('v_xor_b32 %s, 64, %s' % (vr(G_UB[1]), vr(G_UB[0])))
    a.i('v_and_b32 %s, 15, %s' % (vr(G_ALA), vr(V_LANE)))
    a.i('v_lshlrev_b32 %s, 5, %s' % (vr(G_ALA), vr(G_ALA)))
    a.i('v_add_u32 %s, %d, %s' % (vr(G_ALA), SM, vr(G_ALA)))
    for k in range(80):
        a.i('v_mov_b32 %s, 0' % vr(176 + k))
    for k in range(20):
        for r in range(4):
            a.i('v_mov_b32 %s, 0' % vr(ACC_W(k // 5, k % 5) + r))
    for r in range(20):
        a.i('v_mov_b32 %s, 0' % vr(G_BF(1, 0) + r))
    for r in range(16):
        a.i('v_mov_b32 %s, 0' % vr(G_AF(1, 0) + r))
    a.i('s_mov_b32 %s, 0' % sr(S_PEND))
    barrier(a)
    for k in range(6):
        for x in dma_unit(k * 2048, False):
            a.i(x)
    barrier(a)
    a.i('s_mov_b32 %s, 2' % sr(S_P))

    pv_rare = []
    pv_sync = []

    def gemm_phase(par, acc, bimm, vm, refill, tag=None, bar=True, part1_mfma=True, reads=True):
        fill = {}
        if reads:
            pre = []
            if tag is not None:
                pre.append('ds_read_b32 %s, %s offset:%d' % (vr(G_T[6]), vr(G_FLA), (1 - par) * 4))
            pre += b_reads(0, bimm)
            pre.append('s_waitcnt vmcnt(%d)' % vm[0])
            pre += a_reads(0, par * 8192)
            if part1_mfma:
                spread(fill, pre, 0, 9)
            else:
                fill[-1] = pre
        if tag is not None:
            def br():
                a.i('v_cmp_eq_u32 vcc, %s, %s' % (sr(S_P), vr(G_T[6])))
                a.i('s_cbranch_vccnz L_p%s_%s' % ('syncj' if flag('norare') else 'sync', tag))
                a.label('L_psyncj_%s' % tag)
            fill.setdefault(6, []).append(br)
            pv_sync.append(tag)
        if refill[0]:
            place_dma(fill, (1 - par) * 8192 + 4096, False, PD[0], PD[1])
            place_dma(fill, (1 - par) * 8192 + 6144, True, PD[2], PD[3])
        run_stream(a, half_mfmas(a, acc, 1) if part1_mfma else [], fill)
        if not reads:
            return
        if tag is not None:
            a.i('s_cmp_lg_u32 %s, 0' % sr(S_PEND))
            a.i('s_cbranch_scc1 L_prare_%s' % tag)
            a.label('L_pjoin_%s' % tag)
            a.i('s_mov_b32 %s, %s' % (sr(S_PEND), sr(S_PEND2)))
            pv_rare.append((tag, par))
            if tag == 'even':
                a.i('s_cmp_eq_u32 %s, 16' % sr(S_P))
                a.i('s_cbranch_scc0 L_pnosw')
                switch_to_wo(a, GT)
                a.label('L_pnosw')
        a.i('s_waitcnt lgkmcnt(0)')
        fill = {}
        spread(fill, b_reads(1, bimm) + ['s_waitcnt vmcnt(%d)' % vm[1]] + a_reads(1, par * 8192 + 4096), 0, 9)
        if refill[1]:
            place_dma(fill, par * 8192, False, PD[4], PD[5])
            place_dma(fill, par * 8192 + 2048, False, PD[6], PD[7])
        if tag is not None:
            fill.setdefault(14, []).extend(['s_add_u32 %s, %s, 1' % (sr(S_P), sr(S_P)), 's_mov_b32 %s, 0' % sr(S_PEND2)])
        run_stream(a, half_mfmas(a, acc, 0), fill)
        a.i('s_waitcnt lgkmcnt(0)')
        if bar:
            barrier(a)

    a.i('s_mov_b32 %s, 0' % sr(S_PEND2))
    a.label('L_ploop')
    INLOOP[0] = True
    gemm_phase(0, ACC_O, lambda i: i * 2048, (8, 8), (True, True), 'even')
    gemm_phase(1, ACC_O, lambda i: 10240 + i * 2048, (8, 8), (True, True), 'odd')
    a.i('s_cmp_lt_u32 %s, 18' % sr(S_P))
    a.i('s_cbranch_scc1 L_ploop')
    INLOOP[0] = False
    LT = G_BF(0, 0)
    RI = G_AF(0, 0)
    fill = {}
    pre = ['v_and_b32 %s, 15, %s' % (vr(G_T[1]), vr(V_LANE)),
           'v_lshlrev_b32 %s, 7, %s' % (vr(G_T[1]), vr(G_T[1])),
           'v_add_u32 %s, %d, %s' % (vr(G_T[1]), RM, vr(G_T[1]))]
    pre += ['ds_read_b128 %s, %s offset:%d' % (vr(LT + 4 * i, 4), vr(G_T[1]), 16 * i) for i in range(5)]
    fill[-1] = pre
    place_dma(fill, 8192 + 4096, False, 1, 2)
    place_dma(fill, 8192 + 6144, True, 4, 5)
    fill.setdefault(0, []).append('v_add_u32 %s, %d, %s' % (vr(G_T[4]), OB, vr(G_T[4])))
    fill.setdefault(3, []).extend(write_D_addr())
    rc = []
    for i in range(5):
        R = LT + 4 * i
        rc += ['v_add_f32 %s, %s, %s' % (vr(R), vr(R), vr(R + 1)),
               'v_add_f32 %s, %s, %s' % (vr(R + 2), vr(R + 2), vr(R + 3)),
               'v_add_f32 %s, %s, %s' % (vr(R), vr(R), vr(R + 2)),
               'v_rcp_f32 %s, %s' % (vr(RI + 2 * i), vr(R)),
               'v_rcp_f32 %s, %s' % (vr(RI + 2 * i + 1), vr(R))]
    spread(fill, rc, 5, 10)
    for ai in range(4):
        for i in range(5):
            m = 11 + (ai * 5 + i) * 3 // 5
            fill.setdefault(max(m, ai * 5 + i + 3), []).extend(write_D_ops(ACC_O, ai, i, i * 8192, vr(RI + 2 * i, 2)))
    run_stream(a, half_mfmas(a, ACC_O, 1), fill)
    a.i('s_waitcnt lgkmcnt(0)')
    a.i('v_add_u32 %s, %d, %s' % (vr(G_UB[0]), OB, vr(G_T[3])))
    a.i('v_xor_b32 %s, 64, %s' % (vr(G_UB[1]), vr(G_UB[0])))
    barrier(a)
    a.label('L_oproj')
    a.fence(4)
    OI = lambda tau: (lambda i: (i * 4 + tau) * 2048)
    gemm_phase(0, ACC_W, OI(0), (12, 8), (False, True), None, bar=False, part1_mfma=False)
    gemm_phase(1, ACC_W, OI(1), (8, 8), (True, True), None, bar=False)
    gemm_phase(0, ACC_W, OI(2), (8, 8), (True, False), None, bar=False)
    gemm_phase(1, ACC_W, OI(3), (4, 0), (False, False), None, bar=False)
    gemm_phase(0, ACC_W, None, None, (False, False), None, reads=False)
    stamp(a)
    a.i('v_lshlrev_b32 %s, 4, %s' % (vr(GT[0]), vr(V_LANE)))
    a.i('s_mul_i32 %s, %s, 10240' % (sr(S_T0), sr(S_CG)))
    k = 0
    for i in range(5):
        for ap in range(2):
            R0, R1 = ACC_W(2 * ap, i), ACC_W(2 * ap + 1, i)
            a.i('v_cvt_pk_bf16_f32 %s, %s, %s' % (vr(R0), vr(R0), vr(R0 + 1)))
            a.i('v_cvt_pk_bf16_f32 %s, %s, %s' % (vr(R0 + 1), vr(R0 + 2), vr(R0 + 3)))
            a.i('v_cvt_pk_bf16_f32 %s, %s, %s' % (vr(R0 + 2), vr(R1), vr(R1 + 1)))
            a.i('v_cvt_pk_bf16_f32 %s, %s, %s' % (vr(R0 + 3), vr(R1 + 2), vr(R1 + 3)))
            a.i('buffer_store_dwordx4 %s, %s, %s, %s offen offset:%d' % (vr(R0, 4), vr(GT[0]), sr(SRD_PO, 4), sr(S_T0), (k % 4) * 1024))
            k += 1
            if k % 4 == 0:
                a.i('s_add_u32 %s, %s, 4096' % (sr(S_T0), sr(S_T0)))
    a.label('L_fin')
    stamp_flush(a)
    a.label('L_end')
    a.i('s_endpgm')
    a.reset()
    for tag in pv_sync:
        a.label('L_psync_%s' % tag)
        a.i('s_barrier')
        a.i('s_mov_b32 %s, 1' % sr(S_PEND2))
        a.i('s_branch L_psyncj_%s' % tag)
        a.reset()
    for tag, par in pv_rare:
        a.label('L_prare_%s' % tag)
        a.i('ds_read_b128 %s, %s offset:%d' % (vr(G_AL, 4), vr(G_ALA), AL - SM + par * 512))
        a.i('ds_read_b32 %s, %s offset:%d' % (vr(G_AL + 4), vr(G_ALA), AL - SM + par * 512 + 16))
        a.i('s_waitcnt lgkmcnt(0)')
        a.fence(10)
        for ai in range(4):
            for i in range(5):
                for r in range(4):
                    R = ACC_O(ai, i) + r
                    a.i('v_mul_f32 %s, %s, %s' % (vr(R), vr(R), vr(G_AL + i)))
        a.fence(4)
        a.i('s_branch L_pjoin_%s' % tag)
        a.reset()


from gen import gen_reduce, HEADER, kd


def main():
    out = ARGS[0] if ARGS and not ARGS[0].startswith('--') else 'standalone__gqa_block_cached__near_ridge.s'
    a = Asm()
    gen_main(a, 'standalone__gqa_block_cached__near_ridge_kernel')
    gen_reduce(a, 'gqa_reduce_kernel')
    txt = HEADER + a.text() + '.section .rodata,"a"\n.p2align 6\n' + \
        kd('standalone__gqa_block_cached__near_ridge_kernel', 256, 96) + '.p2align 6\n' + kd('gqa_reduce_kernel', 80, 32)
    open(out, 'w').write(txt)
    print('wrote', out, a.nins, 'instructions')


if __name__ == '__main__':
    main()
```

```python
import struct, sys, math
from asmlib import Asm, vr, sr

ARGS = sys.argv[1:]
def opt(name, default=None):
    for x in ARGS:
        if x.startswith('--' + name + '='):
            return x.split('=', 1)[1]
    return default
def flag(name):
    return ('--' + name) in ARGS

K1 = 1024
KR0 = 64 * K1
PB = 128 * K1
SM = 152 * K1
FL = SM
AL = SM + 512
RM = SM + 1536
OB = 112 * K1
WSLOT = [128 * K1, 64 * K1, 96 * K1]
XSLOT = [40 * K1, 0, 10 * K1]
QB = 0
LDS_BYTES = 160 * K1


def f32hex(x):
    return '0x%08x' % struct.unpack('<I', struct.pack('<f', x))[0]


CSCALE = math.log2(math.e) / 16.0
THR = 8.0

S_X, S_K, S_V, S_WQ, S_WO, S_OUT, S_DBG, S_WS = 4, 6, 8, 10, 12, 14, 16, 18
S_WAVE, S_W, S_B, S_HKV, S_H, S_GRP = 20, 21, 22, 23, 24, 25
S_T0, S_T1, S_T2, S_T3 = 26, 27, 28, 29
S_C = 30
SRD_ST, SRD_WQ, SRD_X, SRD_WO, SRD_PO = 32, 36, 40, 44, 48
S_SOFF, S_STEPU, S_STEPL, S_RING, S_P, S_LO = 52, 53, 54, 55, 56, 57
S_CG = 58
S_XL = [59, 60, 61]
S_XG = [62, 63, 64]
S_WCUR, S_WN1, S_WN2, S_XCUR, S_XN1, S_XN2 = 65, 66, 67, 68, 69, 70
S_WQOFF = 71
S_PEND = 80
SRD_FG = 92
S_CLR = 83
FLAG_BASE = 64 << 20
S_SEQ = 90
S_TSTR = 54
S_WBASE = 57
SRD_PF = 84
S_PFO = 82
V_PF = 0 if not flag('stamps') else 71
V_PFD = 70
S_PEND2 = 81

V_LANE = 1
G_TA = [2, 3, 4, 5]
G_UB = [6, 7]
V_PAT = [8, 9]
G_FLA = 10
G_ALA = 11
G_AL = 12
G_T = [17, 18, 19, 20, 21, 22, 23]
G_BF = lambda e, i: 72 + e * 20 + i * 4
G_AF = lambda e, a: 112 + e * 16 + a * 4
ACC_O = lambda a, i: 176 + (a * 5 + i) * 4


def ACC_W(a, i):
    k = a * 5 + i
    return 144 + k * 4 if k < 8 else 24 + (k - 8) * 4


Q_UA = [2, 3]
Q_PWA = 4
Q_FLA = 5
Q_T = [6, 7, 18, 16, 17, 18, 19]
Q_PWA2 = 10
Q_L = 11
Q_MQ = lambda i: 20 + 4 * i
Q_KF = lambda k: 40 + k * 4
Q_S = lambda par, i: 56 + par * 20 + i * 4
Q_Q = lambda i, s: 96 + (i * 8 + s) * 4

MFMA = 'v_mfma_f32_16x16x32_bf16'
STAMPS = flag('stamps')
KVPOL = ' nt' if flag('nt') else ''
ROLE = ['q']
ROT = int(opt('rot', 0))
QLAG = flag('qlag')
PD = [int(x) for x in opt('pdma', '10,13,16,19,10,13,16,19').split(',')]
INLOOP = [False]


def stamp(a):
    if not STAMPS:
        return
    a.i('s_memrealtime s[72:73]' if flag('rt') else 's_memtime s[72:73]')
    a.i('s_waitcnt lgkmcnt(0)')
    a.i('s_mov_b32 m0, s74')
    a.i('s_nop 0')
    a.i('v_writelane_b32 v0, s72, m0')
    a.i('s_add_u32 s74, s74, 1')


def barrier(a):
    if flag('pre'):
        stamp(a)
    a.i('s_barrier')
    stamp(a)


def stamp_init(a):
    if not STAMPS:
        return
    a.i('s_mov_b32 s74, 0')
    a.i('s_lshl_b32 s75, s2, 3')
    a.i('s_add_u32 s75, s75, %s' % sr(S_WAVE))
    a.i('s_lshl_b32 s75, s75, 8')
    a.i('s_add_u32 s75, s75, %d' % (128 << 20))
    a.i('s_add_u32 s76, %s, s75' % sr(S_WS))
    a.i('s_addc_u32 s77, %s, 0' % sr(S_WS + 1))
    a.i('s_mov_b32 s78, 256')
    a.i('s_mov_b32 s79, 0x20000')
    a.i('v_mov_b32 v0, 0')
    a.i('s_memrealtime s[72:73]')
    a.i('s_waitcnt lgkmcnt(0)')
    a.i('v_writelane_b32 v0, s72, 62')
    stamp(a)


def stamp_flush(a):
    if not STAMPS:
        return
    a.i('s_waitcnt vmcnt(0)')
    stamp(a)
    a.i('s_memrealtime s[72:73]')
    a.i('s_waitcnt lgkmcnt(0)')
    a.i('v_writelane_b32 v0, s72, 63')
    a.i('v_lshlrev_b32 v2, 2, %s' % vr(V_LANE))
    a.i('buffer_store_dword v0, v2, s[76:79], 0 offen')


def mfma(a, d, A, B, c=None):
    a.i('%s %s, %s, %s, %s' % (MFMA, vr(d, 4), vr(A, 4), vr(B, 4), vr(d, 4) if c is None else c))


def build_srd(a, srd, ptr, off_sgpr, nrec):
    a.i('s_add_u32 %s, %s, %s' % (sr(srd), sr(ptr), sr(off_sgpr)))
    a.i('s_addc_u32 %s, %s, 0' % (sr(srd + 1), sr(ptr + 1)))
    a.i('s_mov_b32 %s, %s' % (sr(srd + 2), nrec))
    a.i('s_mov_b32 %s, 0x20000' % sr(srd + 3))


def pat_U(a, dst, tmp, R, sub=True):
    t0, t1 = tmp
    a.i('v_lshrrev_b32 %s, 3, %s' % (vr(t1), vr(V_LANE)))
    a.i('v_and_b32 %s, 7, %s' % (vr(t0), vr(V_LANE)))
    a.i('v_xor_b32 %s, %s, %s' % (vr(t0), vr(t0), vr(t1)))
    a.i('v_lshlrev_b32 %s, 4, %s' % (vr(t0), vr(t0)))
    a.i('v_mul_u32_u24 %s, %d, %s' % (vr(t1), R, vr(t1)))
    a.i('v_add_u32 %s, %s, %s' % (vr(dst[0]), vr(t0), vr(t1)))
    a.i('v_add_u32 %s, %d, %s' % (vr(dst[1]), 8 * R - (1024 if sub else 0), vr(dst[0])))


def pat_T(a, dst, tmp, R):
    t0, t1 = tmp
    a.i('v_lshrrev_b32 %s, 3, %s' % (vr(t0), vr(V_LANE)))
    a.i('v_and_b32 %s, 2, %s' % (vr(t0), vr(t0)))
    a.i('v_and_b32 %s, 7, %s' % (vr(t1), vr(V_LANE)))
    a.i('v_xor_b32 %s, %s, %s' % (vr(t0), vr(t0), vr(t1)))
    a.i('v_lshlrev_b32 %s, 4, %s' % (vr(t0), vr(t0)))
    a.i('v_lshrrev_b32 %s, 3, %s' % (vr(t1), vr(V_LANE)))
    a.i('v_mul_u32_u24 %s, %d, %s' % (vr(t1), R, vr(t1)))
    a.i('v_add_u32 %s, %s, %s' % (vr(dst[0]), vr(t0), vr(t1)))
    a.i('v_xor_b32 %s, 64, %s' % (vr(t0), vr(t0)))
    a.i('v_add_u32 %s, %s, %s' % (vr(dst[1]), vr(t0), vr(t1)))
    a.i('v_add_u32 %s, %d, %s' % (vr(dst[1]), 8 * R - 1024, vr(dst[1])))


def addr_U_read(a, dst, tmp, base_sgpr=None, base_imm=0):
    t0, t1 = tmp
    a.i('v_and_b32 %s, 15, %s' % (vr(t0), vr(V_LANE)))
    a.i('v_and_b32 %s, 7, %s' % (vr(t1), vr(V_LANE)))
    a.i('v_lshlrev_b32 %s, 7, %s' % (vr(t0), vr(t0)))
    a.i('v_lshrrev_b32 %s, 4, %s' % (vr(dst[0]), vr(V_LANE)))
    a.i('v_xor_b32 %s, %s, %s' % (vr(t1), vr(t1), vr(dst[0])))
    a.i('v_lshlrev_b32 %s, 4, %s' % (vr(t1), vr(t1)))
    a.i('v_add_u32 %s, %s, %s' % (vr(dst[0]), vr(t0), vr(t1)))
    if base_imm:
        a.i('v_add_u32 %s, %d, %s' % (vr(dst[0]), base_imm, vr(dst[0])))
    if base_sgpr is not None:
        a.i('v_add_u32 %s, %s, %s' % (vr(dst[0]), sr(base_sgpr), vr(dst[0])))
    a.i('v_xor_b32 %s, 64, %s' % (vr(dst[1]), vr(dst[0])))


def addr_T_read(a, dst, tmp, base_sgpr=None):
    t0, t1 = tmp
    a.i('v_lshrrev_b32 %s, 4, %s' % (vr(t0), vr(V_LANE)))
    a.i('v_lshlrev_b32 %s, 10, %s' % (vr(t0), vr(t0)))
    a.i('v_bfe_u32 %s, %s, 2, 2' % (vr(t1), vr(V_LANE)))
    a.i('v_lshlrev_b32 %s, 7, %s' % (vr(t1), vr(t1)))
    a.i('v_add_u32 %s, %s, %s' % (vr(t0), vr(t0), vr(t1)))
    a.i('v_and_b32 %s, 3, %s' % (vr(t1), vr(V_LANE)))
    a.i('v_lshlrev_b32 %s, 3, %s' % (vr(t1), vr(t1)))
    a.i('v_add_u32 %s, %s, %s' % (vr(t0), vr(t0), vr(t1)))
    a.i('v_bfe_u32 %s, %s, 3, 2' % (vr(t1), vr(V_LANE)))
    a.i('v_lshlrev_b32 %s, 5, %s' % (vr(t1), vr(t1)))
    a.i('v_add_u32 %s, %s, %s' % (vr(dst[0]), vr(t0), vr(t1)))
    if base_sgpr is not None:
        a.i('v_add_u32 %s, %s, %s' % (vr(dst[0]), sr(base_sgpr), vr(dst[0])))
    for k in (1, 2, 3):
        a.i('v_xor_b32 %s, %d, %s' % (vr(dst[k]), 32 * k, vr(dst[0])))


def addr_D_write(a, dst, tmp, chunk2_sgpr=None):
    t0, t1 = tmp
    a.i('v_and_b32 %s, 15, %s' % (vr(t0), vr(V_LANE)))
    a.i('v_and_b32 %s, 7, %s' % (vr(t1), vr(V_LANE)))
    a.i('v_lshlrev_b32 %s, 7, %s' % (vr(t0), vr(t0)))
    a.i('v_lshrrev_b32 %s, 5, %s' % (vr(dst), vr(V_LANE)))
    a.i('v_xor_b32 %s, %s, %s' % (vr(t1), vr(t1), vr(dst)))
    a.i('v_lshlrev_b32 %s, 4, %s' % (vr(t1), vr(t1)))
    a.i('v_add_u32 %s, %s, %s' % (vr(t0), vr(t0), vr(t1)))
    a.i('v_bfe_u32 %s, %s, 4, 1' % (vr(t1), vr(V_LANE)))
    a.i('v_lshlrev_b32 %s, 3, %s' % (vr(t1), vr(t1)))
    a.i('v_add_u32 %s, %s, %s' % (vr(dst), vr(t0), vr(t1)))
    if chunk2_sgpr is not None:
        a.i('v_xor_b32 %s, %s, %s' % (vr(dst), sr(chunk2_sgpr), vr(dst)))


def dma_unit(lds_off, last):
    if flag('nodma') or flag('nodma' + ROLE[0]):
        return ['s_nop 0'] * 4
    KVPOL = ' nt' if (flag('nt') or flag('nt' + ROLE[0])) else ''
    return [
        's_add_u32 m0, %s, %d' % (sr(S_RING), lds_off),
        'buffer_load_dwordx4 %s, %s, %s offen%s lds' % (vr(V_PAT[0]), sr(SRD_ST, 4), sr(S_SOFF), KVPOL),
        'buffer_load_dwordx4 %s, %s, %s offen offset:1024%s lds' % (vr(V_PAT[1]), sr(SRD_ST, 4), sr(S_SOFF), KVPOL),
    ] + (next_tile() if (lds_off & 6144) == 6144 else ['s_add_u32 %s, %s, %s' % (sr(S_SOFF), sr(S_SOFF), sr(S_STEPU))])


def next_tile():
    return ['s_and_b32 %s, %s, 15' % (sr(S_SOFF), sr(S_SEQ)),
            's_lshr_b64 %s, %s, 4' % (sr(S_SEQ, 2), sr(S_SEQ, 2)),
            's_mul_i32 %s, %s, %s' % (sr(S_SOFF), sr(S_SOFF), sr(S_TSTR)),
            's_add_u32 %s, %s, %s' % (sr(S_SOFF), sr(S_SOFF), sr(S_WBASE))]


def place_dma(fill, lds_off, last, m_a, m_b):
    d = dma_unit(lds_off, last)
    fill.setdefault(m_a - 1, []).append(d[0])
    fill.setdefault(m_a, []).append(d[1])
    fill.setdefault(m_b, []).extend(d[2:])


def seq_init(a):
    if ROT:
        a.i('s_bfe_u32 %s, s2, 0x20003' % sr(S_T0))
        a.i('s_lshl_b32 %s, %s, 2' % (sr(S_T0), sr(S_T0)))
        a.i('s_lshr_b32 %s, 0x32103210, %s' % (sr(S_T0), sr(S_T0)))
        a.i('s_and_b32 %s, %s, 0xffff' % (sr(S_T0), sr(S_T0)))
        a.i('s_mul_i32 %s, %s, 0x10001' % (sr(S_T0), sr(S_T0)))
        a.i('s_add_u32 %s, %s, 0x44440000' % (sr(S_SEQ), sr(S_T0)))
        a.i('s_add_u32 %s, %s, 0xcccc8888' % (sr(S_SEQ + 1), sr(S_T0)))
        if ROT == 2:
            a.i('s_and_b32 %s, %s, 3' % (sr(S_T0), sr(S_B)))
            a.i('s_lshl_b32 %s, %s, 2' % (sr(S_T0), sr(S_T0)))
            a.i('s_sub_u32 %s, 32, %s' % (sr(S_T1), sr(S_T0)))
            a.i('s_mov_b32 s88, 0')
            a.i('s_mov_b32 s89, %s' % sr(S_SEQ))
            a.i('s_lshl_b64 s[88:89], s[88:89], %s' % sr(S_T1))
            a.i('s_lshr_b64 %s, %s, %s' % (sr(S_SEQ, 2), sr(S_SEQ, 2), sr(S_T0)))
            a.i('s_or_b32 %s, %s, s89' % (sr(S_SEQ + 1), sr(S_SEQ + 1)))
    else:
        a.i('s_mov_b32 %s, 0x76543210' % sr(S_SEQ))
        a.i('s_mov_b32 %s, 0xfedcba98' % sr(S_SEQ + 1))
    a.i('s_mov_b32 %s, 32768' % sr(S_TSTR))
    for x in next_tile():
        a.i(x)


def switch_to_wo(a, tmp):
    for k in range(3):
        a.i('s_mov_b32 %s, %s' % (sr(SRD_ST + k), sr(SRD_WO + k)))
    a.i('s_lshl_b32 %s, %s, 7' % (sr(S_SOFF), sr(S_CG)))
    a.i('s_mov_b32 %s, %s' % (sr(S_WBASE), sr(S_SOFF)))
    a.i('s_mov_b32 %s, %d' % (sr(S_STEPU), 16 * 896))
    a.i('s_mov_b32 %s, %d' % (sr(S_TSTR), 64 * 896))
    a.i('s_mov_b32 %s, 0x4321' % sr(S_SEQ))
    pat_T(a, V_PAT, tmp, 896)


def run_stream(a, mf, fill):
    def emit(lst):
        for x in lst:
            if callable(x):
                x()
            else:
                if INLOOP[0]:
                    if flag('nopw') and x.startswith('ds_write'):
                        continue
                    if flag('notr') and x.startswith('ds_read_b64_tr'):
                        continue
                    if flag('nokr') and x.startswith('ds_read_b128') and ROLE[0] == 'q':
                        continue
                    if flag('nopr') and x.startswith('ds_read_b128') and ROLE[0] == 'p':
                        continue
                    if flag('novalu') and x.startswith('v_') and ROLE[0] == 'q' and not x.startswith('v_cmp'):
                        continue
                a.i(x)
    for m in sorted(k for k in fill if k < 0):
        emit(fill[m])
    for m, f in enumerate(mf):
        f()
        emit(fill.get(m, []))
    for m in sorted(k for k in fill if k >= len(mf)):
        emit(fill[m])


def spread(fill, items, m0, m1):
    n = len(items)
    span = m1 - m0 + 1
    for k, it in enumerate(items):
        m = m0 + (k * span) // n
        fill.setdefault(m, []).append(it)


def a_reads(e_dst, imm):
    out = []
    for ai in range(4):
        for hh in range(2):
            out.append('ds_read_b64_tr_b16 %s, %s offset:%d' % (vr(G_AF(e_dst, ai) + 2 * hh, 2), vr(G_TA[ai]), imm + hh * 512))
    return out


def b_reads(e, imm_of_i):
    return ['ds_read_b128 %s, %s offset:%d' % (vr(G_BF(e, i), 4), vr(G_UB[e]), imm_of_i(i)) for i in range(5)]


def half_mfmas(a, acc, e):
    return [(lambda ai=ai, i=i: mfma(a, acc(ai, i), G_AF(e, ai), G_BF(e, i))) for ai in range(4) for i in range(5)]


def xreduce(a, op, v, t):
    a.i('v_mov_b32 %s, %s' % (vr(t), vr(v)))
    a.i('v_permlane32_swap_b32 %s, %s' % (vr(v), vr(t)))
    a.i('%s %s, %s, %s' % (op, vr(v), vr(v), vr(t)))
    a.i('v_mov_b32 %s, %s' % (vr(t), vr(v)))
    a.i('v_permlane16_swap_b32 %s, %s' % (vr(v), vr(t)))
    a.i('%s %s, %s, %s' % (op, vr(v), vr(v), vr(t)))


def fused_reduce(a):
    SRD_C, SRD_R, SRD_OUT = 36, 40, 44
    a.label('L_pub')
    a.i('v_mov_b32 v7, %d' % (SM + 4096))
    a.i('v_mov_b32 v4, 0')
    a.i('ds_write_b32 v7, v4')
    a.i('s_waitcnt vmcnt(0) lgkmcnt(0)')
    stamp(a)
    a.i('s_barrier')
    stamp(a)
    a.i('s_mov_b32 %s, %s' % (sr(SRD_C), sr(S_DBG)))
    a.i('s_mov_b32 %s, %s' % (sr(SRD_C + 1), sr(S_DBG + 1)))
    a.i('s_mov_b32 %s, 256' % sr(SRD_C + 2))
    a.i('s_mov_b32 %s, 0x20000' % sr(SRD_C + 3))
    a.i('s_mul_i32 %s, %s, %d' % (sr(S_T0), sr(S_GRP), 16 * 71680))
    build_srd(a, SRD_R, S_WS, S_T0, 16 * 71680)
    a.i('s_mov_b32 %s, %s' % (sr(SRD_OUT), sr(S_OUT)))
    a.i('s_mov_b32 %s, %s' % (sr(SRD_OUT + 1), sr(S_OUT + 1)))
    a.i('s_mov_b32 %s, %d' % (sr(SRD_OUT + 2), 1280 * 448 * 2))
    a.i('s_mov_b32 %s, 0x20000' % sr(SRD_OUT + 3))
    F, CG, I_, AP = 59, 60, 61, 62
    SEEN, NEW = 63, 64
    MW = SM + 4096
    a.i('v_mov_b32 v7, %d' % MW)
    a.i('s_mov_b32 %s, 0x40000' % sr(S_T1))
    a.i('s_cmp_lg_u32 %s, 7' % sr(S_WAVE))
    a.i('s_cbranch_scc1 L_red')
    a.i('v_lshlrev_b32 v2, 8, %s' % vr(V_LANE))
    a.i('s_lshl_b32 %s, %s, 2' % (sr(S_T2), sr(S_H)))
    a.i('v_mov_b32 v3, 1')
    a.i('buffer_store_dword v3, v2, %s, %s offen sc1' % (sr(SRD_FG, 4), sr(S_T2)))
    a.i('s_lshl_b32 %s, %s, 4' % (sr(S_T0), sr(S_GRP)))
    a.label('L_cpoll')
    a.i('s_cmp_eq_u32 %s, 0xffff' % sr(S_CLR))
    a.i('s_cbranch_scc1 L_cdone')
    a.i('buffer_load_dword v4, v2, %s, %s offen sc1' % (sr(SRD_C, 4), sr(S_T0)))
    a.i('s_waitcnt vmcnt(0)')
    a.i('v_readfirstlane_b32 %s, v4' % sr(S_CLR))
    a.i('s_sub_u32 %s, %s, 1' % (sr(S_T1), sr(S_T1)))
    a.i('s_cmp_lg_u32 %s, 0' % sr(S_T1))
    a.i('s_cbranch_scc1 L_cpoll')
    a.i('s_branch L_fin')
    a.label('L_cdone')
    a.i('v_lshlrev_b32 v2, 2, %s' % vr(V_LANE))
    a.label('L_poll')
    a.i('buffer_load_dword v4, v2, %s, 0 offen sc1' % sr(SRD_FG, 4))
    a.i('s_waitcnt vmcnt(0)')
    a.i('v_cmp_eq_u32 vcc, 1, v4')
    a.i('s_and_b32 %s, vcc_lo, 0xffff' % sr(S_T2))
    a.i('v_mov_b32 v4, %s' % sr(S_T2))
    a.i('ds_write_b32 v7, v4')
    a.i('s_waitcnt lgkmcnt(0)')
    a.i('s_cmp_eq_u32 %s, 0xffff' % sr(S_T2))
    a.i('s_cbranch_scc1 L_fin')
    a.i('s_sleep %s' % opt('psleep', '2'))
    a.i('s_sub_u32 %s, %s, 1' % (sr(S_T1), sr(S_T1)))
    a.i('s_cmp_lg_u32 %s, 0' % sr(S_T1))
    a.i('s_cbranch_scc1 L_poll')
    a.i('s_branch L_fin')
    a.reset()
    a.label('L_red')
    a.i('s_lshl_b32 %s, %s, 4' % (sr(F), sr(S_WAVE)))
    a.i('s_add_u32 %s, %s, %s' % (sr(F), sr(F), sr(S_H)))
    a.i('s_cmp_ge_u32 %s, 70' % sr(F))
    a.i('s_cbranch_scc1 L_fin')
    a.i('s_lshl_b32 %s, %s, 10' % (sr(S_T0), sr(F)))
    a.i('v_lshlrev_b32 v2, 4, %s' % vr(V_LANE))
    a.i('v_add_u32 v2, %s, v2' % sr(S_T0))
    a.i('s_mov_b32 %s, 0' % sr(SEEN))
    a.i('s_lshl_b32 %s, %s, 4' % (sr(S_T1), sr(S_T1)))
    a.label('L_rpoll')
    a.i('ds_read_b32 v4, v7')
    a.i('s_waitcnt lgkmcnt(0)')
    a.i('v_readfirstlane_b32 %s, v4' % sr(NEW))
    a.i('s_andn2_b32 %s, %s, %s' % (sr(NEW), sr(NEW), sr(SEEN)))
    a.i('s_cbranch_scc0 L_rnone')
    for h in range(16):
        a.i('s_bitcmp1_b32 %s, %d' % (sr(NEW), h))
        a.i('s_cbranch_scc0 L_rskip%d' % h)
        a.i('s_mov_b32 %s, %d' % (sr(S_T0), h * 71680))
        a.i('buffer_load_dwordx4 %s, v2, %s, %s offen sc1' % (vr(16 + 4 * h, 4), sr(SRD_R, 4), sr(S_T0)))
        a.label('L_rskip%d' % h)
    a.i('s_or_b32 %s, %s, %s' % (sr(SEEN), sr(SEEN), sr(NEW)))
    a.i('s_cmp_eq_u32 %s, 0xffff' % sr(SEEN))
    a.i('s_cbranch_scc1 L_rall')
    a.label('L_rnone')
    a.i('s_sleep 1')
    a.i('s_sub_u32 %s, %s, 1' % (sr(S_T1), sr(S_T1)))
    a.i('s_cmp_lg_u32 %s, 0' % sr(S_T1))
    a.i('s_cbranch_scc1 L_rpoll')
    a.label('L_rall')
    stamp(a)
    a.i('s_mul_i32 %s, %s, 205' % (sr(CG), sr(F)))
    a.i('s_lshr_b32 %s, %s, 11' % (sr(CG), sr(CG)))
    a.i('s_mul_i32 %s, %s, 10' % (sr(AP), sr(CG)))
    a.i('s_sub_u32 %s, %s, %s' % (sr(AP), sr(F), sr(AP)))
    a.i('s_lshr_b32 %s, %s, 1' % (sr(I_), sr(AP)))
    a.i('s_and_b32 %s, %s, 1' % (sr(AP), sr(AP)))
    a.i('s_mul_i32 %s, %s, 80' % (sr(S_T1), sr(S_GRP)))
    a.i('s_lshl_b32 %s, %s, 4' % (sr(I_), sr(I_)))
    a.i('s_add_u32 %s, %s, %s' % (sr(S_T1), sr(S_T1), sr(I_)))
    a.i('s_mul_i32 %s, %s, 896' % (sr(S_T1), sr(S_T1)))
    a.i('s_lshl_b32 %s, %s, 7' % (sr(CG), sr(CG)))
    a.i('s_add_u32 %s, %s, %s' % (sr(S_T1), sr(S_T1), sr(CG)))
    a.i('s_lshl_b32 %s, %s, 6' % (sr(AP), sr(AP)))
    a.i('s_add_u32 %s, %s, %s' % (sr(S_T1), sr(S_T1), sr(AP)))
    a.i('v_and_b32 v3, 15, %s' % vr(V_LANE))
    a.i('v_mul_u32_u24 v3, 896, v3')
    a.i('v_lshrrev_b32 v4, 4, %s' % vr(V_LANE))
    a.i('v_lshlrev_b32 v4, 3, v4')
    a.i('v_add_u32 v3, v3, v4')
    a.i('s_mov_b32 %s, 0xffff0000' % sr(S_T2))
    a.i('s_waitcnt vmcnt(0)')
    for h in range(16):
        for r in range(4):
            src = 16 + 4 * h + r
            if h == 0:
                a.i('v_lshlrev_b32 %s, 16, %s' % (vr(8 + 2 * r), vr(src)))
                a.i('v_and_b32 %s, %s, %s' % (vr(9 + 2 * r), sr(S_T2), vr(src)))
            else:
                a.i('v_lshlrev_b32 v5, 16, %s' % vr(src))
                a.i('v_and_b32 v6, %s, %s' % (sr(S_T2), vr(src)))
                a.i('v_add_f32 %s, %s, v5' % (vr(8 + 2 * r), vr(8 + 2 * r)))
                a.i('v_add_f32 %s, %s, v6' % (vr(9 + 2 * r), vr(9 + 2 * r)))
    for r in range(4):
        a.i('v_cvt_pk_bf16_f32 %s, %s, %s' % (vr(16 + r), vr(8 + 2 * r), vr(9 + 2 * r)))
    a.i('buffer_store_dwordx2 v[16:17], v3, %s, %s offen' % (sr(SRD_OUT, 4), sr(S_T1)))
    a.i('buffer_store_dwordx2 v[18:19], v3, %s, %s offen offset:32' % (sr(SRD_OUT, 4), sr(S_T1)))


def gen_main(a, name):
    a.raw('.globl %s' % name)
    a.raw('.p2align 8')
    a.raw('.type %s,@function' % name)
    a.label(name)
    a.i('s_cmp_ge_u32 s2, 256')
    a.i('s_cbranch_scc1 L_end')
    a.i('s_load_dwordx16 s[4:19], s[0:1], 0')
    a.i('v_and_b32 %s, 63, v0' % vr(V_LANE))
    a.i('v_lshrrev_b32 v2, 6, v0')
    a.i('v_readfirstlane_b32 %s, v2' % sr(S_WAVE))
    if flag('badmap'):
        a.i('s_and_b32 s26, s2, 3')
        a.i('s_lshl_b32 s26, s26, 3')
        a.i('s_bfe_u32 s27, s2, 0x30002')
        a.i('s_and_b32 s2, s2, 0xe0')
        a.i('s_or_b32 s2, s2, s26')
        a.i('s_or_b32 s2, s2, s27')
    a.i('s_and_b32 %s, s2, 7' % sr(S_HKV))
    a.i('s_lshr_b32 %s, s2, 5' % sr(S_B))
    a.i('s_bfe_u32 %s, s2, 0x10004' % sr(S_T0))
    a.i('s_bfe_u32 %s, s2, 0x10003' % sr(S_T1))
    a.i('s_lshl_b32 %s, %s, 1' % (sr(S_H), sr(S_HKV)))
    a.i('s_add_u32 %s, %s, %s' % (sr(S_H), sr(S_H), sr(S_T0)))
    a.i('s_lshl_b32 %s, %s, 1' % (sr(S_GRP), sr(S_B)))
    a.i('s_add_u32 %s, %s, %s' % (sr(S_GRP), sr(S_GRP), sr(S_T1)))
    a.i('s_and_b32 %s, %s, 3' % (sr(S_W), sr(S_WAVE)))
    a.i('s_cmp_ge_u32 %s, 4' % sr(S_WAVE))
    a.i('s_cbranch_scc1 L_pv')

    def common_srds():
        a.i('s_mul_i32 %s, %s, %d' % (sr(S_T0), sr(S_H), 229376))
        build_srd(a, SRD_WO, S_WO, S_T0, 229376)
        a.i('s_lshl_b32 %s, %s, 4' % (sr(S_T0), sr(S_GRP)))
        a.i('s_add_u32 %s, %s, %s' % (sr(S_T0), sr(S_T0), sr(S_H)))
        a.i('s_mul_i32 %s, %s, %d' % (sr(S_T0), sr(S_T0), 71680))
        build_srd(a, SRD_PO, S_WS, S_T0, 71680)
        a.i('s_lshl_b32 %s, %s, 3' % (sr(S_T0), sr(S_B)))
        a.i('s_add_u32 %s, %s, %s' % (sr(S_T0), sr(S_T0), sr(S_HKV)))
        if flag('kvsame'):
            a.i('s_mov_b32 %s, %s' % (sr(S_T0), sr(S_HKV)))
        a.i('s_lshl_b32 %s, %s, 19' % (sr(S_T2), sr(S_T0)))

    LWQ = [100, 101]
    LX = [102, 103]
    LT = (104, 105)
    pat_T(a, LWQ, LT, 8192)
    pat_U(a, LX, LT, 896, sub=False)
    a.i('s_and_b32 %s, %s, 1' % (sr(S_T0), sr(S_W)))
    a.i('s_cmp_eq_u32 %s, 1' % sr(S_T0))
    a.i('s_cselect_b64 vcc, -1, 0')
    a.i('v_cndmask_b32 %s, %s, %s, vcc' % (vr(LX[0]), vr(LX[0]), vr(LX[1])))
    for k in range(3):
        a.i('s_add_u32 %s, %s, %d' % (sr(S_T0), sr(S_W), 4 * k))
        if k == 2:
            a.i('s_add_u32 %s, %s, 4' % (sr(S_T1), sr(S_W)))
            a.i('s_cmp_ge_u32 %s, 10' % sr(S_T0))
            a.i('s_cselect_b32 %s, %s, %s' % (sr(S_T0), sr(S_T1), sr(S_T0)))
        a.i('s_lshl_b32 %s, %s, 10' % (sr(S_XL[k]), sr(S_T0)))
        a.i('s_lshr_b32 %s, %s, 1' % (sr(S_T0), sr(S_T0)))
        a.i('s_mul_i32 %s, %s, %d' % (sr(S_XG[k]), sr(S_T0), 16 * 896))
    a.i('s_lshl_b32 %s, %s, 7' % (sr(S_WQOFF), sr(S_W)))
    if flag('qrot'):
        a.i('s_add_u32 %s, %s, %s' % (sr(S_T0), sr(S_GRP), sr(S_H)))
        a.i('s_mul_i32 %s, %s, 37' % (sr(S_T1), sr(S_T0)))
        a.i('s_lshr_b32 %s, %s, 8' % (sr(S_T1), sr(S_T1)))
        a.i('s_mul_i32 %s, %s, 7' % (sr(S_T1), sr(S_T1)))
        a.i('s_sub_u32 %s, %s, %s' % (sr(S_P), sr(S_T0), sr(S_T1)))
        a.i('s_lshl_b32 %s, %s, 19' % (sr(S_T0), sr(S_P)))
        a.i('s_add_u32 %s, %s, %s' % (sr(S_WQOFF), sr(S_WQOFF), sr(S_T0)))
        a.i('s_lshl_b32 %s, %s, 7' % (sr(S_T0), sr(S_P)))
        for k in range(3):
            a.i('s_add_u32 %s, %s, %s' % (sr(S_XG[k]), sr(S_XG[k]), sr(S_T0)))
    a.i('s_lshl_b32 %s, %s, 13' % (sr(S_T3), sr(S_W)))
    a.i('s_lshl_b32 %s, %s, 9' % (sr(S_T0), sr(S_H)))
    a.i('s_sub_u32 %s, %d, %s' % (sr(S_T1), 448 * 8192, sr(S_T0)))
    a.i('s_mul_i32 %s, %s, %d' % (sr(S_T2), sr(S_GRP), 71680))
    a.i('s_waitcnt lgkmcnt(0)')
    build_srd(a, SRD_WQ, S_WQ, S_T0, sr(S_T1))
    build_srd(a, SRD_X, S_X, S_T2, 71680)

    def issue_tile(c):
        sl = c % 3
        for k in range(3):
            a.i('s_add_u32 m0, %s, %d' % (sr(S_XL[k]), XSLOT[sl]))
            a.i('buffer_load_dwordx4 %s, %s, %s offen lds' % (vr(LX[0]), sr(SRD_X, 4), sr(S_XG[k])))
            a.i('s_add_u32 %s, %s, 128' % (sr(S_XG[k]), sr(S_XG[k])))
        for u in range(4):
            a.i('s_add_u32 m0, %s, %d' % (sr(S_T3), WSLOT[sl] + u * 2048))
            a.i('buffer_load_dwordx4 %s, %s, %s offen lds' % (vr(LWQ[0]), sr(SRD_WQ, 4), sr(S_WQOFF)))
            a.i('buffer_load_dwordx4 %s, %s, %s offen offset:1024 lds' % (vr(LWQ[1]), sr(SRD_WQ, 4), sr(S_WQOFF)))
            a.i('s_add_u32 %s, %s, %d' % (sr(S_WQOFF), sr(S_WQOFF), 16 * 8192))
        if flag('qrot'):
            a.i('s_add_u32 %s, %s, 1' % (sr(S_P), sr(S_P)))
            a.i('s_cmp_eq_u32 %s, 7' % sr(S_P))
            a.i('s_cselect_b32 s88, %d, 0' % (7 << 19))
            a.i('s_cselect_b32 s89, %d, 0' % (7 << 7))
            a.i('s_sub_u32 %s, %s, s88' % (sr(S_WQOFF), sr(S_WQOFF)))
            for k in range(3):
                a.i('s_sub_u32 %s, %s, s89' % (sr(S_XG[k]), sr(S_XG[k])))

    for c in range(2):
        issue_tile(c)
    stamp_init(a)
    common_srds()
    build_srd(a, SRD_ST, S_K, S_T2, 524288)
    a.i('s_mov_b32 %s, %s' % (sr(S_CG), sr(S_W)))
    a.i('s_cmp_eq_u32 %s, 3' % sr(S_W))
    a.i('s_cselect_b32 %s, 0, %s' % (sr(SRD_WO + 2), sr(SRD_WO + 2)))
    T2 = (Q_T[0], Q_T[1])
    pat_U(a, V_PAT, T2, 512)
    a.i('s_lshl_b32 %s, %s, 13' % (sr(S_WBASE), sr(S_W)))
    seq_init(a)
    a.i('s_mov_b32 %s, 128' % sr(S_STEPU))
    a.i('s_lshl_b32 %s, %s, 14' % (sr(S_RING), sr(S_W)))
    a.i('s_add_u32 %s, %s, %d' % (sr(S_RING), sr(S_RING), KR0))
    a.i('s_lshl_b32 %s, %s, 5' % (sr(S_T0), sr(S_W)))
    addr_D_write(a, Q_PWA, T2, S_T0)
    a.i('v_add_u32 %s, %d, %s' % (vr(Q_PWA), PB, vr(Q_PWA)))
    a.i('v_bfe_u32 %s, %s, 4, 1' % (vr(T2[0]), vr(V_LANE)))
    a.i('v_mul_u32_u24 %s, %d, %s' % (vr(T2[0]), 2040, vr(T2[0])))
    a.i('v_add_u32 %s, %s, %s' % (vr(Q_PWA2), vr(T2[0]), vr(Q_PWA)))
    a.i('v_mov_b32 %s, %d' % (vr(Q_FLA), FL))
    for i in range(5):
        a.i('v_mov_b32 %s, 0' % vr(Q_L + i))
        for r in range(4):
            a.i('v_mov_b32 %s, 0' % vr(Q_MQ(i) + r))
    addr_U_read(a, Q_UA, T2)
    for c in range(7):
        n = 11 if c < 6 else 0
        a.i('s_waitcnt vmcnt(%d)' % n)
        barrier(a)
        if c <= 4:
            issue_tile(c + 2)
    for t in range(2):
        for u in range(4):
            if QLAG and t == 1 and u == 3:
                continue
            for x in dma_unit(t * 8192 + u * 2048, u == 3):
                a.i(x)
    barrier(a)
    QA = [Q_T[0], Q_T[1]]
    for e in range(2):
        a.i('v_mov_b32 %s, %s' % (vr(QA[e]), vr(Q_UA[e])))
        a.i('v_add_u32 %s, %s, %s' % (vr(Q_UA[e]), sr(S_RING), vr(Q_UA[e])))

    def qread(i, s):
        return 'ds_read_b128 %s, %s offset:%d' % (vr(Q_Q(i, s), 4), vr(QA[s & 1]), QB + (i * 4 + (s >> 1)) * 2048)

    def kread(par, s, buf):
        return 'ds_read_b128 %s, %s offset:%d' % (vr(Q_KF(buf), 4), vr(Q_UA[s & 1]), par * 8192 + (s >> 1) * 2048)

    a.i('s_waitcnt vmcnt(12)')
    a.i(kread(0, 0, 0))
    a.i(kread(0, 1, 1))
    a.i('s_waitcnt lgkmcnt(0)')
    a.i('s_mov_b32 %s, 0' % sr(S_P))
    barrier(a)

    q_rare = []
    q_setf = []

    def qk_phase(par, do_mfma, do_soft, tag):
        pp = 1 - par
        fill = {}
        mf = []
        if do_mfma:
            order = [(s, i) for s in range(6) for i in range(5)] + [(s, i) for i in range(5) for s in (6, 7)]
            for (s, i) in order:
                mf.append(lambda s=s, i=i: mfma(a, Q_S(par, i), Q_KF(s % 4), Q_Q(i, s), vr(Q_MQ(i), 4) if s == 0 else None))
            reads = [(0, 2, 0, 2), (1, 3, 0, 3), (5, 4, 0, 0), (10, 5, 0, 1), (15, 6, 0, 2), (20, 7, 0, 3),
                     (25, 0, 1, 0), (30, 1, 1, 1)]
            refills = [(3, 8, 0, 0), (16, 21, 1, 0), (26, 29, 2, 0), (33, 37, 3, 0)]
            if opt('qdma'):
                q = [int(x) for x in opt('qdma').split(',')]
                refills = [(q[2 * u], q[2 * u + 1], u, 0) for u in range(4)]
            if QLAG:
                q = [int(x) for x in opt('qdma', '2,7,12,17,22,27,32,37').split(',')]
                refills = [(q[0], q[1], 3, -1), (q[2], q[3], 0, 0), (q[4], q[5], 1, 0), (q[6], q[7], 2, 0)]
            ev = []
            for (m, s, dt, buf) in reads:
                ev.append((m, 0, 'need', dt, s >> 1, s, buf))
            for (ma, mb, u, dt) in refills:
                ev.append((ma, 1, 'dma', u, dt))
                ev.append((mb, 1, 'dma', u, dt))
            ev.sort(key=lambda e: (e[0], e[1]))
            issued = []
            need_n = {}
            for ph in range(4):
                for e in ev:
                    if e[2] == 'dma':
                        issued.append((ph + 2 + e[4], e[3]))
                    elif ph == 3:
                        key = (ph + e[3], e[4])
                        last = max(k for k, x in enumerate(issued) if x == key)
                        need_n[e[5]] = len(issued) - 1 - last
            for (m, s, dt, buf) in reads:
                if s % 2 == 0:
                    fill.setdefault(m, []).append('s_waitcnt vmcnt(%d)' % need_n[s])
                fill.setdefault(m, []).append(kread(pp if dt else par, s, buf))
            for (ma, mb, u, dt) in refills:
                place_dma(fill, (pp if dt else par) * 8192 + u * 2048, u == 3, ma, mb)
                if QLAG and dt and tag == 'even':
                    def sw():
                        a.i('s_cmp_eq_u32 %s, 14' % sr(S_P))
                        a.i('s_cbranch_scc0 L_qnosw2')
                        switch_to_wo(a, (Q_T[5], Q_T[6]))
                        a.label('L_qnosw2')
                    fill.setdefault(mb, []).append(sw)
        if tag == 'p0':
            qr = [qread(i, s) for s in range(8) for i in range(5)]
            fill.setdefault(-1, []).extend(qr[:10])
            for k, x in enumerate(qr[10:]):
                fill.setdefault(k * 2 // 3, []).append(x)
        if do_soft:
            fill.setdefault(-1, []).append('ds_read_b32 %s, %s offset:%d' % (vr(Q_T[2]), vr(Q_FLA), pp * 4))
            chk = ['v_cmp_eq_u32 vcc, %s, %s' % (sr(S_P), vr(Q_T[2]))]

            def br():
                a.i('s_cbranch_vccnz L_q%s_%s' % ('join' if flag('norare') else 'rare', tag))
                a.label('L_qjoin_%s' % tag)
            chk.append(br)
            q_rare.append((tag, par, do_mfma))
            soft = []
            for i in range(5):
                S = Q_S(pp, i)
                t0, t1 = (Q_T[0], Q_T[1]) if i % 2 == 0 else (Q_T[3], Q_T[4])
                for r in range(4):
                    soft.append('v_exp_f32 %s, %s' % (vr(S + r), vr(S + r)))
                soft.append('v_add_f32 %s, %s, %s' % (vr(t0), vr(S), vr(S + 1)))
                soft.append('v_add_f32 %s, %s, %s' % (vr(t1), vr(S + 2), vr(S + 3)))
                D = S if i % 2 == 0 else Q_S(pp, i - 1) + 2
                if flag('pw64'):
                    D = S
                soft.append('v_cvt_pk_bf16_f32 %s, %s, %s' % (vr(D), vr(S), vr(S + 1)))
                soft.append('v_cvt_pk_bf16_f32 %s, %s, %s' % (vr(D + 1), vr(S + 2), vr(S + 3)))
                soft.append('v_add_f32 %s, %s, %s' % (vr(t0), vr(t0), vr(t1)))
                if i == 4 or flag('pw64'):
                    soft.append('ds_write_b64 %s, %s offset:%d' % (vr(Q_PWA), vr(S, 2), pp * 10240 + i * 2048))
                elif i % 2 == 1:
                    A = Q_S(pp, i - 1)
                    soft.append('v_permlane16_swap_b32 %s, %s' % (vr(A), vr(A + 2)))
                    soft.append('v_permlane16_swap_b32 %s, %s' % (vr(A + 1), vr(A + 3)))
                    soft.append('ds_write_b128 %s, %s offset:%d' % (vr(Q_PWA2), vr(A, 4), pp * 10240 + (i - 1) * 2048))
                soft.append('v_add_f32 %s, %s, %s' % (vr(Q_L + i), vr(Q_L + i), vr(t0)))
            if do_mfma:
                fill.setdefault(5, []).extend(chk)
                if opt('wpos'):
                    wr = [x for x in soft if x.startswith('ds_write')]
                    soft = [x for x in soft if not x.startswith('ds_write')]
                    wp = [int(x) for x in opt('wpos').split(',')]
                    spread(fill, soft, 6, int(opt('softend', 31)))
                    for k, x in enumerate(wr):
                        fill.setdefault(wp[k] if len(wp) > 1 else wp[0], []).append(x)
                else:
                    spread(fill, soft, 6, int(opt('softend', 31)))
            else:
                fill.setdefault(-1, []).extend(chk + soft)
        if tag == 'p0':
            M = [Q_S(1, 0) + k for k in range(5)]
            t5, adw, ad4 = Q_S(1, 0) + 5, Q_S(1, 0) + 6, Q_S(1, 0) + 7
            pre = ['v_and_b32 %s, 15, %s' % (vr(ad4), vr(V_LANE)),
                   'v_lshlrev_b32 %s, 7, %s' % (vr(ad4), vr(ad4)),
                   's_lshl_b32 %s, %s, 2' % (sr(S_T0), sr(S_W)),
                   's_add_u32 %s, %s, %d' % (sr(S_T0), sr(S_T0), RM),
                   'v_add_u32 %s, %s, %s' % (vr(ad4), sr(S_T0), vr(ad4)),
                   'v_bfe_u32 %s, %s, 4, 1' % (vr(adw), vr(V_LANE)),
                   'v_lshlrev_b32 %s, 5, %s' % (vr(adw), vr(adw)),
                   'v_lshrrev_b32 %s, 5, %s' % (vr(t5), vr(V_LANE)),
                   'v_lshlrev_b32 %s, 4, %s' % (vr(t5), vr(t5)),
                   'v_add3_u32 %s, %s, %s, %s' % (vr(adw), vr(adw), vr(t5), vr(ad4))]
            spread(fill, pre, 22, 31)
            for i in range(5):
                S = Q_S(par, i)
                fill.setdefault(min(34 + 2 * i, 40), []).extend([
                    'v_max3_f32 %s, %s, %s, %s' % (vr(M[i]), vr(S), vr(S + 1), vr(S + 2)),
                    'v_max_f32 %s, %s, %s' % (vr(M[i]), vr(M[i]), vr(S + 3))])

            def red0():
                a.i('v_permlane32_swap_b32 %s, %s' % (vr(M[0]), vr(M[1])))
                a.i('v_permlane32_swap_b32 %s, %s' % (vr(M[2]), vr(M[3])))
                a.i('v_max_f32 %s, %s, %s' % (vr(M[0]), vr(M[0]), vr(M[1])))
                a.i('v_max_f32 %s, %s, %s' % (vr(M[2]), vr(M[2]), vr(M[3])))
                xreduce(a, 'v_max_f32', M[4], t5)
                a.i('v_permlane16_swap_b32 %s, %s' % (vr(M[0]), vr(M[2])))
                a.i('v_max_f32 %s, %s, %s' % (vr(M[0]), vr(M[0]), vr(M[2])))
                a.i('ds_write_b32 %s, %s offset:64' % (vr(ad4), vr(M[4])))
                a.i('ds_write_b32 %s, %s' % (vr(adw), vr(M[0])))
            fill.setdefault(41, []).append(red0)
        elif do_mfma:
            M0_, M1_ = Q_T[5], Q_T[6]
            for i in range(5):
                S = Q_S(par, i)
                m = min(34 + 2 * i, 40)
                if i == 0:
                    ops = ['v_max3_f32 %s, %s, %s, %s' % (vr(M0_), vr(S), vr(S + 1), vr(S + 2)),
                           'v_mov_b32 %s, %s' % (vr(M1_), vr(S + 3))]
                else:
                    ops = ['v_max3_f32 %s, %s, %s, %s' % (vr(M0_), vr(M0_), vr(S), vr(S + 1)),
                           'v_max3_f32 %s, %s, %s, %s' % (vr(M1_), vr(M1_), vr(S + 2), vr(S + 3))]
                fill.setdefault(m, []).extend(ops)

            def endchk():
                a.i('v_max_f32 %s, %s, %s' % (vr(M0_), vr(M0_), vr(M1_)))
                a.i('v_cmp_lt_f32 vcc, %s, %s' % (f32hex(THR), vr(M0_)))
                a.i('s_cbranch_vccnz L_q%s_%s' % ('setj' if flag('norare') else 'setf', tag))
                a.label('L_qsetj_%s' % tag)
            fill.setdefault(41, []).append(endchk)
            q_setf.append((tag, par))
        run_stream(a, mf, fill)
        a.i('s_add_u32 %s, %s, 1' % (sr(S_P), sr(S_P)))
        a.i('s_waitcnt lgkmcnt(0)')
        barrier(a)

    qk_phase(0, True, False, 'p0')
    ad = Q_T[0]
    a.i('v_and_b32 %s, 15, %s' % (vr(ad), vr(V_LANE)))
    a.i('v_lshlrev_b32 %s, 7, %s' % (vr(ad), vr(ad)))
    a.i('v_add_u32 %s, %d, %s' % (vr(ad), RM, vr(ad)))
    for i in range(5):
        a.i('ds_read_b128 %s, %s offset:%d' % (vr(Q_S(1, i), 4), vr(ad), 16 * i))
    for i in range(5):
        R = Q_S(1, i)
        a.i('v_max3_f32 %s, %s, %s, %s' % (vr(R), vr(R), vr(R + 1), vr(R + 2)))
        a.i('v_max_f32 %s, %s, %s' % (vr(R), vr(R), vr(R + 3)))
        for r in range(4):
            a.i('v_sub_f32 %s, 0, %s' % (vr(Q_MQ(i) + r), vr(R)))
    for i in range(5):
        for r in range(4):
            a.i('v_add_f32 %s, %s, %s' % (vr(Q_S(0, i) + r), vr(Q_S(0, i) + r), vr(Q_MQ(i))))
    a.label('L_qloop')
    INLOOP[0] = True
    qk_phase(1, True, True, 'odd')
    a.i('s_cmp_eq_u32 %s, 16' % sr(S_P))
    a.i('s_cbranch_scc1 L_qdone')
    if not QLAG:
        a.i('s_cmp_eq_u32 %s, 14' % sr(S_P))
        a.i('s_cbranch_scc0 L_qnosw')
        switch_to_wo(a, (Q_T[0], Q_T[1]))
        a.label('L_qnosw')
    qk_phase(0, True, True, 'even')
    a.i('s_branch L_qloop')
    a.reset()
    a.label('L_qdone')
    INLOOP[0] = False
    if QLAG:
        for x in dma_unit(8192 + 3 * 2048, True):
            a.i(x)
    qk_phase(0, False, True, 'p16')
    ad4, adw, t5 = Q_T[0], Q_T[1], Q_T[3]
    a.i('v_and_b32 %s, 15, %s' % (vr(ad4), vr(V_LANE)))
    a.i('v_lshlrev_b32 %s, 7, %s' % (vr(ad4), vr(ad4)))
    a.i('s_lshl_b32 %s, %s, 2' % (sr(S_T0), sr(S_W)))
    a.i('s_add_u32 %s, %s, %d' % (sr(S_T0), sr(S_T0), RM))
    a.i('v_add_u32 %s, %s, %s' % (vr(ad4), sr(S_T0), vr(ad4)))
    a.i('v_bfe_u32 %s, %s, 4, 1' % (vr(adw), vr(V_LANE)))
    a.i('v_lshlrev_b32 %s, 5, %s' % (vr(adw), vr(adw)))
    a.i('v_lshrrev_b32 %s, 5, %s' % (vr(t5), vr(V_LANE)))
    a.i('v_lshlrev_b32 %s, 4, %s' % (vr(t5), vr(t5)))
    a.i('v_add3_u32 %s, %s, %s, %s' % (vr(adw), vr(adw), vr(t5), vr(ad4)))
    L = [Q_L + i for i in range(5)]
    a.i('v_permlane32_swap_b32 %s, %s' % (vr(L[0]), vr(L[1])))
    a.i('v_permlane32_swap_b32 %s, %s' % (vr(L[2]), vr(L[3])))
    a.i('v_add_f32 %s, %s, %s' % (vr(L[0]), vr(L[0]), vr(L[1])))
    a.i('v_add_f32 %s, %s, %s' % (vr(L[2]), vr(L[2]), vr(L[3])))
    xreduce(a, 'v_add_f32', L[4], t5)
    a.i('v_permlane16_swap_b32 %s, %s' % (vr(L[0]), vr(L[2])))
    a.i('v_add_f32 %s, %s, %s' % (vr(L[0]), vr(L[0]), vr(L[2])))
    a.i('ds_write_b32 %s, %s offset:64' % (vr(ad4), vr(L[4])))
    a.i('ds_write_b32 %s, %s' % (vr(adw), vr(L[0])))
    a.i('s_waitcnt lgkmcnt(0)')
    addr_T_read(a, G_TA, (G_T[0], G_T[1]), S_RING)
    addr_U_read(a, G_UB, (G_T[0], G_T[1]), base_imm=OB)
    for k in range(20):
        for r in range(4):
            a.i('v_mov_b32 %s, 0' % vr(ACC_W(k // 5, k % 5) + r))
    a.i('s_waitcnt vmcnt(0)')
    barrier(a)
    barrier(a)
    a.i('s_cmp_eq_u32 %s, 3' % sr(S_W))
    a.i('s_cbranch_scc1 %s' % ('L_pub' if flag('fused') else 'L_fin'))
    a.i('s_branch L_oproj')
    a.reset()
    for tag, par in q_setf:
        a.label('L_qsetf_%s' % tag)
        a.i('s_add_u32 %s, %s, 1' % (sr(S_T0), sr(S_P)))
        a.i('v_mov_b32 %s, %s' % (vr(Q_T[5]), sr(S_T0)))
        a.i('ds_write_b32 %s, %s offset:%d' % (vr(Q_FLA), vr(Q_T[5]), par * 4))
        a.i('s_branch L_qsetj_%s' % tag)
        a.reset()
    for tag, par, has_cur in q_rare:
        pp = 1 - par
        a.label('L_qrare_%s' % tag)
        a.fence(10)
        ad, t0, mx = Q_T[1], Q_T[0], Q_T[6]
        a.i('v_and_b32 %s, 15, %s' % (vr(ad), vr(V_LANE)))
        a.i('v_lshlrev_b32 %s, 5, %s' % (vr(ad), vr(ad)))
        a.i('v_add_u32 %s, %d, %s' % (vr(ad), SM, vr(ad)))
        a.i('s_lshl_b32 %s, %s, 9' % (sr(S_T0), sr(S_W)))
        a.i('v_add_u32 %s, %s, %s' % (vr(Q_T[3]), sr(S_T0), vr(ad)))
        for i in range(5):
            S = Q_S(pp, i)
            a.i('v_max3_f32 %s, %s, %s, %s' % (vr(mx), vr(S), vr(S + 1), vr(S + 2)))
            a.i('v_max_f32 %s, %s, %s' % (vr(mx), vr(mx), vr(S + 3)))
            xreduce(a, 'v_max_f32', mx, t0)
            a.i('ds_write_b32 %s, %s offset:%d' % (vr(Q_T[3]), vr(mx), RM - SM + 4 * i))
        a.i('s_waitcnt lgkmcnt(0)')
        a.i('s_barrier')
        for i in range(5):
            r4 = [Q_T[3], Q_T[4], Q_T[5], Q_T[0]]
            for w in range(4):
                a.i('ds_read_b32 %s, %s offset:%d' % (vr(r4[w]), vr(ad), RM - SM + w * 512 + 4 * i))
            a.i('v_max3_f32 %s, %s, %s, %s' % (vr(mx), vr(r4[0]), vr(r4[1]), vr(r4[2])))
            a.i('v_max3_f32 %s, %s, %s, %s' % (vr(mx), vr(mx), vr(r4[3]), 0))
            for r in range(4):
                a.i('v_sub_f32 %s, %s, %s' % (vr(Q_S(pp, i) + r), vr(Q_S(pp, i) + r), vr(mx)))
                if has_cur:
                    a.i('v_sub_f32 %s, %s, %s' % (vr(Q_S(par, i) + r), vr(Q_S(par, i) + r), vr(mx)))
                a.i('v_sub_f32 %s, %s, %s' % (vr(Q_MQ(i) + r), vr(Q_MQ(i) + r), vr(mx)))
            a.i('v_exp_f32 %s, -%s' % (vr(t0), vr(mx)))
            a.i('v_mul_f32 %s, %s, %s' % (vr(Q_L + i), vr(Q_L + i), vr(t0)))
            a.i('ds_write_b32 %s, %s offset:%d' % (vr(ad), vr(t0), AL - SM + pp * 512 + 4 * i))
        a.i('s_waitcnt lgkmcnt(0)')
        a.fence(4)
        a.i('s_branch L_qjoin_%s' % tag)
        a.reset()

    a.label('L_pv')
    ROLE[0] = 'p'
    GT = (G_T[0], G_T[1])
    addr_T_read(a, G_TA, GT)
    a.i('v_mov_b32 %s, %s' % (vr(G_T[2]), vr(G_TA[0])))
    addr_U_read(a, G_UB, GT)
    a.i('v_mov_b32 %s, %s' % (vr(G_T[3]), vr(G_UB[0])))
    for k in range(80):
        a.i('v_mov_b32 %s, 0' % vr(176 + k))
    a.i('s_waitcnt lgkmcnt(0)')
    stamp_init(a)
    common_srds()
    build_srd(a, SRD_ST, S_V, S_T2, 524288)
    a.i('s_add_u32 %s, %s, 3' % (sr(S_CG), sr(S_W)))
    if flag('fused'):
        a.i('s_mul_i32 %s, %s, 4352' % (sr(S_T0), sr(S_GRP)))
        a.i('s_add_u32 %s, %s, %d' % (sr(S_T0), sr(S_T0), FLAG_BASE))
        build_srd(a, SRD_FG, S_WS, S_T0, 64)
        a.i('s_mov_b32 %s, 0' % sr(S_CLR))
        a.i('s_cmp_lg_u32 %s, 7' % sr(S_WAVE))
        a.i('s_cbranch_scc1 L_noclr')
        a.i('s_mov_b32 s36, %s' % sr(S_DBG))
        a.i('s_mov_b32 s37, %s' % sr(S_DBG + 1))
        a.i('s_mov_b32 s38, 256')
        a.i('s_mov_b32 s39, 0x20000')
        a.i('v_lshlrev_b32 %s, 8, %s' % (vr(G_AL), vr(V_LANE)))
        a.i('v_mov_b32 %s, 0' % vr(G_AL + 1))
        a.i('s_lshl_b32 %s, %s, 2' % (sr(S_T0), sr(S_H)))
        a.i('buffer_store_dword %s, %s, %s, %s offen sc1' % (vr(G_AL + 1), vr(G_AL), sr(SRD_FG, 4), sr(S_T0)))
        a.i('s_lshl_b32 %s, 1, %s' % (sr(S_T0), sr(S_H)))
        a.i('v_mov_b32 %s, %s' % (vr(G_AL + 2), sr(S_T0)))
        a.i('s_lshl_b32 %s, %s, 4' % (sr(S_T0), sr(S_GRP)))
        a.i('s_waitcnt vmcnt(0)')
        a.i('buffer_atomic_or %s, %s, s[36:39], %s offen sc1' % (vr(G_AL + 2), vr(G_AL), sr(S_T0)))
        a.label('L_noclr')
    if flag('pfwo'):
        a.i('s_lshl_b32 %s, %s, 2' % (sr(S_T0), sr(S_GRP)))
        a.i('s_add_u32 %s, %s, %s' % (sr(S_T0), sr(S_T0), sr(S_W)))
        a.i('s_mul_i32 %s, %s, %d' % (sr(S_PFO), sr(S_T0), 28 * 128))
        a.i('v_lshlrev_b32 %s, 7, %s' % (vr(G_AL + 4), vr(V_LANE)))
        a.i('v_cmp_gt_u32 vcc, 28, %s' % vr(V_LANE))
        a.i('v_mov_b32 %s, 0x7fffffff' % vr(G_AL + 3))
        a.i('v_cndmask_b32 %s, %s, %s, vcc' % (vr(G_AL + 4), vr(G_AL + 3), vr(G_AL + 4)))
    PFD = int(opt('pf', 0))
    if PFD:
        a.i('s_cmp_lt_u32 %s, 2' % sr(S_W))
        a.i('s_cselect_b32 %s, %s, %s' % (sr(S_T0), sr(S_K), sr(S_V)))
        a.i('s_cselect_b32 %s, %s, %s' % (sr(S_T1), sr(S_K + 1), sr(S_V + 1)))
        a.i('s_add_u32 %s, %s, %s' % (sr(SRD_PF), sr(S_T0), sr(S_T2)))
        a.i('s_addc_u32 %s, %s, 0' % (sr(SRD_PF + 1), sr(S_T1)))
        a.i('s_mov_b32 %s, 524288' % sr(SRD_PF + 2))
        a.i('s_mov_b32 %s, 0x20000' % sr(SRD_PF + 3))
        a.i('s_bfe_u32 %s, s2, 0x20003' % sr(S_T0))
        a.i('s_lshl_b32 %s, %s, 1' % (sr(S_T0), sr(S_T0)))
        a.i('s_and_b32 %s, %s, 1' % (sr(S_T1), sr(S_W)))
        a.i('s_add_u32 %s, %s, %s' % (sr(S_T0), sr(S_T0), sr(S_T1)))
        a.i('s_lshl_b32 %s, %s, 13' % (sr(S_PFO), sr(S_T0)))
        a.i('v_lshlrev_b32 %s, 7, %s' % (vr(G_AL + 4), vr(V_LANE)))
        for j in range(PFD):
            a.i('buffer_load_dword %s, %s, %s, %s offen' % (vr(G_AL + 3), vr(G_AL + 4), sr(SRD_PF, 4), sr(S_PFO)))
            a.i('s_add_u32 %s, %s, 65536' % (sr(S_PFO), sr(S_PFO)))
    a.i('s_mov_b32 %s, %s' % (sr(S_C), f32hex(CSCALE)))
    a.i('s_mov_b32 %s, %s' % (sr(S_C + 1), f32hex(CSCALE)))
    a.i('s_lshl_b32 %s, %s, 13' % (sr(S_T0), sr(S_W)))
    a.i('s_add_u32 %s, %s, %d' % (sr(S_WCUR), sr(S_T0), WSLOT[0]))
    a.i('s_add_u32 %s, %s, %d' % (sr(S_WN1), sr(S_T0), WSLOT[1]))
    a.i('s_add_u32 %s, %s, %d' % (sr(S_WN2), sr(S_T0), WSLOT[2]))
    a.i('s_mov_b32 %s, %d' % (sr(S_XCUR), XSLOT[0]))
    a.i('s_mov_b32 %s, %d' % (sr(S_XN1), XSLOT[1]))
    a.i('s_mov_b32 %s, %d' % (sr(S_XN2), XSLOT[2]))
    a.i('s_mov_b32 %s, 0' % sr(S_P))

    def q_addr_update():
        out = ['v_add_u32 %s, %s, %s' % (vr(G_TA[0]), sr(S_WCUR), vr(G_T[2])),
               'v_add_u32 %s, %s, %s' % (vr(G_UB[0]), sr(S_XCUR), vr(G_T[3]))]
        for k in (1, 2, 3):
            out.append('v_xor_b32 %s, %d, %s' % (vr(G_TA[k]), 32 * k, vr(G_TA[0])))
        out.append('v_xor_b32 %s, 64, %s' % (vr(G_UB[1]), vr(G_UB[0])))
        out += ['s_mov_b32 %s, %s' % (sr(S_T0), sr(S_WCUR)), 's_mov_b32 %s, %s' % (sr(S_WCUR), sr(S_WN1)),
                's_mov_b32 %s, %s' % (sr(S_WN1), sr(S_WN2)), 's_mov_b32 %s, %s' % (sr(S_WN2), sr(S_T0)),
                's_mov_b32 %s, %s' % (sr(S_T0), sr(S_XCUR)), 's_mov_b32 %s, %s' % (sr(S_XCUR), sr(S_XN1)),
                's_mov_b32 %s, %s' % (sr(S_XN1), sr(S_XN2)), 's_mov_b32 %s, %s' % (sr(S_XN2), sr(S_T0))]
        return out

    XI = lambda i: i * 2048
    for x in q_addr_update():
        a.i(x)
    barrier(a)
    A0 = a_reads(0, 0)
    for x in A0[0:2] + b_reads(0, XI) + A0[2:]:
        a.i(x)
    a.label('L_qproj')
    fill = {}
    spread(fill, b_reads(1, XI) + a_reads(1, 4096), 1, 8)
    spread(fill, q_addr_update(), 12, 19)
    run_stream(a, half_mfmas(a, ACC_O, 0), fill)
    a.i('s_waitcnt lgkmcnt(0)')
    barrier(a)
    fill = {}
    A0 = a_reads(0, 0)
    spread(fill, A0[0:2] + b_reads(0, XI) + A0[2:], 0, 9)
    fill.setdefault(17, []).extend(['s_add_u32 %s, %s, 1' % (sr(S_P), sr(S_P)), 's_cmp_lt_u32 %s, 7' % sr(S_P)])
    run_stream(a, half_mfmas(a, ACC_O, 1), fill)
    a.i('s_cbranch_scc1 L_qproj')
    if flag('pfwo'):
        a.i('buffer_load_dword %s, %s, %s, %s offen' % (vr(G_AL + 3), vr(G_AL + 4), sr(SRD_WO, 4), sr(S_PFO)))
    a.i('s_waitcnt lgkmcnt(0)')

    WA = [G_T[4], G_T[5], G_T[6], G_T[0]]

    def write_D_addr():
        return ['v_xor_b32 %s, %d, %s' % (vr(WA[ai]), 32 * ai, vr(G_T[4])) for ai in range(1, 4)]

    def write_D_ops(acc, ai, i, imm, scale):
        R = acc(ai, i)
        return ['v_pk_mul_f32 %s, %s, %s' % (vr(R, 2), vr(R, 2), scale),
                'v_pk_mul_f32 %s, %s, %s' % (vr(R + 2, 2), vr(R + 2, 2), scale),
                'v_cvt_pk_bf16_f32 %s, %s, %s' % (vr(R), vr(R), vr(R + 1)),
                'v_cvt_pk_bf16_f32 %s, %s, %s' % (vr(R + 1), vr(R + 2), vr(R + 3)),
                'ds_write_b64 %s, %s offset:%d' % (vr(WA[ai]), vr(R, 2), imm)]

    def write_D(acc, base_imm_of_i, scale):
        for x in write_D_addr():
            a.i(x)
        for ai in range(4):
            for i in range(5):
                for x in write_D_ops(acc, ai, i, base_imm_of_i(i), scale(i)):
                    a.i(x)
        a.i('s_waitcnt lgkmcnt(0)')

    addr_D_write(a, G_T[4], GT)
    a.i('s_lshl_b32 %s, %s, 11' % (sr(S_T0), sr(S_W)))
    a.i('v_add_u32 %s, %s, %s' % (vr(G_T[4]), sr(S_T0), vr(G_T[4])))
    a.i('v_mov_b32 %s, %d' % (vr(G_FLA), FL))
    a.i('v_mov_b32 %s, 0' % vr(G_AL))
    a.i('v_mov_b32 %s, 0' % vr(G_AL + 1))
    a.i('ds_write_b64 %s, %s' % (vr(G_FLA), vr(G_AL, 2)))
    write_D(ACC_O, lambda i: QB + i * 8192, lambda i: sr(S_C, 2))
    barrier(a)
    if flag('fused'):
        a.i('s_cmp_lg_u32 %s, 7' % sr(S_WAVE))
        a.i('s_cbranch_scc1 L_noclr2')
        a.i('v_lshlrev_b32 %s, 8, %s' % (vr(G_AL), vr(V_LANE)))
        a.i('s_lshl_b32 %s, %s, 4' % (sr(S_T0), sr(S_GRP)))
        a.i('buffer_load_dword %s, %s, s[36:39], %s offen sc1' % (vr(G_AL + 4), vr(G_AL), sr(S_T0)))
        a.label('L_noclr2')
    pat_T(a, V_PAT, GT, 512)
    a.i('s_lshl_b32 %s, %s, 7' % (sr(S_WBASE), sr(S_W)))
    seq_init(a)
    a.i('s_mov_b32 %s, 8192' % sr(S_STEPU))
    a.i('s_lshl_b32 %s, %s, 14' % (sr(S_RING), sr(S_W)))
    a.i('v_add_u32 %s, %s, %s' % (vr(G_TA[0]), sr(S_RING), vr(G_T[2])))
    for k in (1, 2, 3):
        a.i('v_xor_b32 %s, %d, %s' % (vr(G_TA[k]), 32 * k, vr(G_TA[0])))
    a.i('v_add_u32 %s, %d, %s' % (vr(G_UB[0]), PB, vr(G_T[3])))
    a.i('v_xor_b32 %s, 64, %s' % (vr(G_UB[1]), vr(G_UB[0])))
    a.i('v_and_b32 %s, 15, %s' % (vr(G_ALA), vr(V_LANE)))
    a.i('v_lshlrev_b32 %s, 5, %s' % (vr(G_ALA), vr(G_ALA)))
    a.i('v_add_u32 %s, %d, %s' % (vr(G_ALA), SM, vr(G_ALA)))
    for k in range(80):
        a.i('v_mov_b32 %s, 0' % vr(176 + k))
    for k in range(20):
        for r in range(4):
            a.i('v_mov_b32 %s, 0' % vr(ACC_W(k // 5, k % 5) + r))
    for r in range(20):
        a.i('v_mov_b32 %s, 0' % vr(G_BF(1, 0) + r))
    for r in range(16):
        a.i('v_mov_b32 %s, 0' % vr(G_AF(1, 0) + r))
    a.i('s_mov_b32 %s, 0' % sr(S_PEND))
    barrier(a)
    for k in range(6):
        for x in dma_unit(k * 2048, False):
            a.i(x)
    if flag('fused'):
        a.i('s_waitcnt vmcnt(12)')
        a.i('v_readfirstlane_b32 %s, %s' % (sr(S_CLR), vr(G_AL + 4)))
    barrier(a)
    a.i('s_mov_b32 %s, 2' % sr(S_P))

    pv_rare = []
    pv_sync = []

    def gemm_phase(par, acc, bimm, vm, refill, tag=None, bar=True, part1_mfma=True, reads=True):
        fill = {}
        if reads:
            pre = []
            if tag is not None:
                pre.append('ds_read_b32 %s, %s offset:%d' % (vr(G_T[6]), vr(G_FLA), (1 - par) * 4))
            pre += b_reads(0, bimm)
            pre.append('s_waitcnt vmcnt(%d)' % vm[0])
            pre += a_reads(0, par * 8192)
            if part1_mfma:
                spread(fill, pre, 0, 9)
            else:
                fill[-1] = pre
        if tag is not None:
            def br():
                a.i('v_cmp_eq_u32 vcc, %s, %s' % (sr(S_P), vr(G_T[6])))
                a.i('s_cbranch_vccnz L_p%s_%s' % ('syncj' if flag('norare') else 'sync', tag))
                a.label('L_psyncj_%s' % tag)
            fill.setdefault(6, []).append(br)
            pv_sync.append(tag)
        if refill[0]:
            place_dma(fill, (1 - par) * 8192 + 4096, False, PD[0], PD[1])
            place_dma(fill, (1 - par) * 8192 + 6144, True, PD[2], PD[3])
        run_stream(a, half_mfmas(a, acc, 1) if part1_mfma else [], fill)
        if not reads:
            return
        if tag is not None:
            a.i('s_cmp_lg_u32 %s, 0' % sr(S_PEND))
            a.i('s_cbranch_scc1 L_prare_%s' % tag)
            a.label('L_pjoin_%s' % tag)
            a.i('s_mov_b32 %s, %s' % (sr(S_PEND), sr(S_PEND2)))
            pv_rare.append((tag, par))
            if tag == 'even':
                a.i('s_cmp_eq_u32 %s, 16' % sr(S_P))
                a.i('s_cbranch_scc0 L_pnosw')
                switch_to_wo(a, GT)
                a.label('L_pnosw')
        a.i('s_waitcnt lgkmcnt(0)')
        fill = {}
        spread(fill, b_reads(1, bimm) + ['s_waitcnt vmcnt(%d)' % vm[1]] + a_reads(1, par * 8192 + 4096), 0, 9)
        if refill[1]:
            place_dma(fill, par * 8192, False, PD[4], PD[5])
            place_dma(fill, par * 8192 + 2048, False, PD[6], PD[7])
        if tag is not None:
            fill.setdefault(14, []).extend(['s_add_u32 %s, %s, 1' % (sr(S_P), sr(S_P)), 's_mov_b32 %s, 0' % sr(S_PEND2)])
        if tag == 'even' and PFD and not flag('pfonce'):
            fill.setdefault(5, []).extend([
                'v_lshlrev_b32 %s, 7, %s' % (vr(G_T[1]), vr(V_LANE)),
                'buffer_load_dword %s, %s, %s, %s offen' % (vr(G_T[0]), vr(G_T[1]), sr(SRD_PF, 4), sr(S_PFO)),
                's_add_u32 %s, %s, 65536' % (sr(S_PFO), sr(S_PFO))])
        run_stream(a, half_mfmas(a, acc, 0), fill)
        a.i('s_waitcnt lgkmcnt(0)')
        if bar:
            barrier(a)

    a.i('s_mov_b32 %s, 0' % sr(S_PEND2))
    a.label('L_ploop')
    INLOOP[0] = True
    gemm_phase(0, ACC_O, lambda i: i * 2048, (8, 8), (True, True), 'even')
    gemm_phase(1, ACC_O, lambda i: 10240 + i * 2048, (8, 8), (True, True), 'odd')
    a.i('s_cmp_lt_u32 %s, 18' % sr(S_P))
    a.i('s_cbranch_scc1 L_ploop')
    INLOOP[0] = False
    LT = G_BF(0, 0)
    RI = G_AF(0, 0)
    fill = {}
    pre = ['v_and_b32 %s, 15, %s' % (vr(G_T[1]), vr(V_LANE)),
           'v_lshlrev_b32 %s, 7, %s' % (vr(G_T[1]), vr(G_T[1])),
           'v_add_u32 %s, %d, %s' % (vr(G_T[1]), RM, vr(G_T[1]))]
    pre += ['ds_read_b128 %s, %s offset:%d' % (vr(LT + 4 * i, 4), vr(G_T[1]), 16 * i) for i in range(5)]
    fill[-1] = pre
    place_dma(fill, 8192 + 4096, False, 1, 2)
    place_dma(fill, 8192 + 6144, True, 4, 5)
    fill.setdefault(0, []).append('v_add_u32 %s, %d, %s' % (vr(G_T[4]), OB, vr(G_T[4])))
    fill.setdefault(3, []).extend(write_D_addr())
    rc = []
    for i in range(5):
        R = LT + 4 * i
        rc += ['v_add_f32 %s, %s, %s' % (vr(R), vr(R), vr(R + 1)),
               'v_add_f32 %s, %s, %s' % (vr(R + 2), vr(R + 2), vr(R + 3)),
               'v_add_f32 %s, %s, %s' % (vr(R), vr(R), vr(R + 2)),
               'v_rcp_f32 %s, %s' % (vr(RI + 2 * i), vr(R)),
               'v_rcp_f32 %s, %s' % (vr(RI + 2 * i + 1), vr(R))]
    spread(fill, rc, 5, 10)
    for ai in range(4):
        for i in range(5):
            m = 11 + (ai * 5 + i) * 3 // 5
            fill.setdefault(max(m, ai * 5 + i + 3), []).extend(write_D_ops(ACC_O, ai, i, i * 8192, vr(RI + 2 * i, 2)))
    run_stream(a, half_mfmas(a, ACC_O, 1), fill)
    a.i('s_waitcnt lgkmcnt(0)')
    a.i('v_add_u32 %s, %d, %s' % (vr(G_UB[0]), OB, vr(G_T[3])))
    a.i('v_xor_b32 %s, 64, %s' % (vr(G_UB[1]), vr(G_UB[0])))
    barrier(a)
    a.label('L_oproj')
    a.fence(4)
    OI = lambda tau: (lambda i: (i * 4 + tau) * 2048)
    gemm_phase(0, ACC_W, OI(0), (12, 8), (False, True), None, bar=False, part1_mfma=False)
    gemm_phase(1, ACC_W, OI(1), (8, 8), (True, True), None, bar=False)
    gemm_phase(0, ACC_W, OI(2), (8, 8), (True, False), None, bar=False)
    gemm_phase(1, ACC_W, OI(3), (4, 0), (False, False), None, bar=False)
    gemm_phase(0, ACC_W, None, None, (False, False), None, reads=False)
    stamp(a)
    a.i('v_lshlrev_b32 %s, 4, %s' % (vr(GT[0]), vr(V_LANE)))
    a.i('s_mul_i32 %s, %s, 10240' % (sr(S_T0), sr(S_CG)))
    k = 0
    for i in range(5):
        for ap in range(2):
            R0, R1 = ACC_W(2 * ap, i), ACC_W(2 * ap + 1, i)
            a.i('v_cvt_pk_bf16_f32 %s, %s, %s' % (vr(R0), vr(R0), vr(R0 + 1)))
            a.i('v_cvt_pk_bf16_f32 %s, %s, %s' % (vr(R0 + 1), vr(R0 + 2), vr(R0 + 3)))
            a.i('v_cvt_pk_bf16_f32 %s, %s, %s' % (vr(R0 + 2), vr(R1), vr(R1 + 1)))
            a.i('v_cvt_pk_bf16_f32 %s, %s, %s' % (vr(R0 + 3), vr(R1 + 2), vr(R1 + 3)))
            a.i('buffer_store_dwordx4 %s, %s, %s, %s offen offset:%d%s' % (vr(R0, 4), vr(GT[0]), sr(SRD_PO, 4), sr(S_T0), (k % 4) * 1024, opt('stpol', ' sc1' if flag('fused') else '').replace('_', ' ')))
            k += 1
            if k % 4 == 0:
                a.i('s_add_u32 %s, %s, 4096' % (sr(S_T0), sr(S_T0)))
    if flag('fused'):
        fused_reduce(a)
    a.label('L_fin')
    stamp_flush(a)
    a.label('L_end')
    a.i('s_endpgm')
    a.reset()
    for tag in pv_sync:
        a.label('L_psync_%s' % tag)
        a.i('s_barrier')
        a.i('s_mov_b32 %s, 1' % sr(S_PEND2))
        a.i('s_branch L_psyncj_%s' % tag)
        a.reset()
    for tag, par in pv_rare:
        a.label('L_prare_%s' % tag)
        a.i('ds_read_b128 %s, %s offset:%d' % (vr(G_AL, 4), vr(G_ALA), AL - SM + par * 512))
        a.i('ds_read_b32 %s, %s offset:%d' % (vr(G_AL + 4), vr(G_ALA), AL - SM + par * 512 + 16))
        a.i('s_waitcnt lgkmcnt(0)')
        a.fence(10)
        for ai in range(4):
            for i in range(5):
                for r in range(4):
                    R = ACC_O(ai, i) + r
                    a.i('v_mul_f32 %s, %s, %s' % (vr(R), vr(R), vr(G_AL + i)))
        a.fence(4)
        a.i('s_branch L_pjoin_%s' % tag)
        a.reset()


from gen import gen_reduce, HEADER, kd


def main():
    out = ARGS[0] if ARGS and not ARGS[0].startswith('--') else 'standalone__gqa_block_cached__near_ridge.s'
    a = Asm()
    gen_main(a, 'standalone__gqa_block_cached__near_ridge_kernel')
    if flag('fused'):
        hdr = '\n'.join(l for l in HEADER.split('\n') if 'gqa_reduce_kernel' not in l).replace('kernel=standalone__gqa_block_cached__near_ridge_kernel ', '')
        txt = hdr + a.text() + '.section .rodata,"a"\n.p2align 6\n' + kd('standalone__gqa_block_cached__near_ridge_kernel', 256, 100)
    else:
        gen_reduce(a, 'gqa_reduce_kernel')
        txt = HEADER + a.text() + '.section .rodata,"a"\n.p2align 6\n' + \
            kd('standalone__gqa_block_cached__near_ridge_kernel', 256, 100) + '.p2align 6\n' + kd('gqa_reduce_kernel', 80, 32)
    open(out, 'w').write(txt)
    print('wrote', out, a.nins, 'instructions')


if __name__ == '__main__':
    main()
```

```python
import struct, sys, math
from asmlib import Asm, vr, sr

ARGS = sys.argv[1:]
def opt(name, default=None):
    for x in ARGS:
        if x.startswith('--' + name + '='):
            return x.split('=', 1)[1]
    return default
def flag(name):
    return ('--' + name) in ARGS

K1 = 1024
KR0 = 64 * K1
PB = 128 * K1
SM = 152 * K1
FL = SM
AL = SM + 512
RM = SM + 1536
OB = 112 * K1
WSLOT = [128 * K1, 64 * K1, 96 * K1]
XSLOT = [40 * K1, 0, 10 * K1]
QB = 0
LDS_BYTES = 160 * K1


def f32hex(x):
    return '0x%08x' % struct.unpack('<I', struct.pack('<f', x))[0]


CSCALE = math.log2(math.e) / 16.0
THR = 8.0

S_X, S_K, S_V, S_WQ, S_WO, S_OUT, S_DBG, S_WS = 4, 6, 8, 10, 12, 14, 16, 18
S_WAVE, S_W, S_B, S_HKV, S_H, S_GRP = 20, 21, 22, 23, 24, 25
S_T0, S_T1, S_T2, S_T3 = 26, 27, 28, 29
S_C = 30
SRD_ST, SRD_WQ, SRD_X, SRD_WO, SRD_PO = 32, 36, 40, 44, 48
S_SOFF, S_STEPU, S_STEPL, S_RING, S_P, S_LO = 52, 53, 54, 55, 56, 57
S_CG = 58
S_XL = [59, 60, 61]
S_XG = [62, 63, 64]
S_WCUR, S_WN1, S_WN2, S_XCUR, S_XN1, S_XN2 = 65, 66, 67, 68, 69, 70
S_WQOFF = 71
S_PEND = 80
SRD_FG = 92
S_CLR = 83
FLAG_BASE = 64 << 20
S_SEQ = 90
S_TSTR = 54
S_WBASE = 57
SRD_PF = 84
S_PFO = 82
V_PF = 0 if not flag('stamps') else 71
V_PFD = 70
S_PEND2 = 81

V_LANE = 1
G_TA = [2, 3, 4, 5]
G_UB = [6, 7]
V_PAT = [8, 9]
G_FLA = 10
G_ALA = 11
G_AL = 12
G_T = [17, 18, 19, 20, 21, 22, 23]
G_BF = lambda e, i: 72 + e * 20 + i * 4
G_AF = lambda e, a: 112 + e * 16 + a * 4
ACC_O = lambda a, i: 176 + (a * 5 + i) * 4


def ACC_W(a, i):
    k = a * 5 + i
    return 144 + k * 4 if k < 8 else 24 + (k - 8) * 4


Q_UA = [2, 3]
Q_PWA = 4
Q_FLA = 5
Q_T = [6, 7, 18, 16, 17, 18, 19]
Q_PWA2 = 10
Q_L = 11
Q_MQ = lambda i: 20 + 4 * i
Q_KF = lambda k: 40 + k * 4
Q_S = lambda par, i: 56 + par * 20 + i * 4
Q_Q = lambda i, s: 96 + (i * 8 + s) * 4

MFMA = 'v_mfma_f32_16x16x32_bf16'
STAMPS = flag('stamps')
KVPOL = ' nt' if flag('nt') else ''
ROLE = ['q']
ROT = int(opt('rot', 0))
QLAG = flag('qlag')
PD = [int(x) for x in opt('pdma', '10,13,16,19,10,13,16,19').split(',')]
INLOOP = [False]


def stamp(a):
    if not STAMPS:
        return
    a.i('s_memrealtime s[72:73]' if flag('rt') else 's_memtime s[72:73]')
    a.i('s_waitcnt lgkmcnt(0)')
    a.i('s_mov_b32 m0, s74')
    a.i('s_nop 0')
    a.i('v_writelane_b32 v0, s72, m0')
    a.i('s_add_u32 s74, s74, 1')


def barrier(a):
    if flag('pre'):
        stamp(a)
    a.i('s_barrier')
    stamp(a)


def stamp_init(a):
    if not STAMPS:
        return
    a.i('s_mov_b32 s74, 0')
    a.i('s_lshl_b32 s75, s2, 3')
    a.i('s_add_u32 s75, s75, %s' % sr(S_WAVE))
    a.i('s_lshl_b32 s75, s75, 8')
    a.i('s_add_u32 s75, s75, %d' % (128 << 20))
    a.i('s_add_u32 s76, %s, s75' % sr(S_WS))
    a.i('s_addc_u32 s77, %s, 0' % sr(S_WS + 1))
    a.i('s_mov_b32 s78, 256')
    a.i('s_mov_b32 s79, 0x20000')
    a.i('v_mov_b32 v0, 0')
    a.i('s_memrealtime s[72:73]')
    a.i('s_waitcnt lgkmcnt(0)')
    a.i('v_writelane_b32 v0, s72, 62')
    stamp(a)


def stamp_flush(a):
    if not STAMPS:
        return
    a.i('s_waitcnt vmcnt(0)')
    stamp(a)
    a.i('s_memrealtime s[72:73]')
    a.i('s_waitcnt lgkmcnt(0)')
    a.i('v_writelane_b32 v0, s72, 63')
    a.i('v_lshlrev_b32 v2, 2, %s' % vr(V_LANE))
    a.i('buffer_store_dword v0, v2, s[76:79], 0 offen')


def mfma(a, d, A, B, c=None):
    a.i('%s %s, %s, %s, %s' % (MFMA, vr(d, 4), vr(A, 4), vr(B, 4), vr(d, 4) if c is None else c))


def build_srd(a, srd, ptr, off_sgpr, nrec):
    a.i('s_add_u32 %s, %s, %s' % (sr(srd), sr(ptr), sr(off_sgpr)))
    a.i('s_addc_u32 %s, %s, 0' % (sr(srd + 1), sr(ptr + 1)))
    a.i('s_mov_b32 %s, %s' % (sr(srd + 2), nrec))
    a.i('s_mov_b32 %s, 0x20000' % sr(srd + 3))


def pat_U(a, dst, tmp, R, sub=True):
    t0, t1 = tmp
    a.i('v_lshrrev_b32 %s, 3, %s' % (vr(t1), vr(V_LANE)))
    a.i('v_and_b32 %s, 7, %s' % (vr(t0), vr(V_LANE)))
    a.i('v_xor_b32 %s, %s, %s' % (vr(t0), vr(t0), vr(t1)))
    a.i('v_lshlrev_b32 %s, 4, %s' % (vr(t0), vr(t0)))
    a.i('v_mul_u32_u24 %s, %d, %s' % (vr(t1), R, vr(t1)))
    a.i('v_add_u32 %s, %s, %s' % (vr(dst[0]), vr(t0), vr(t1)))
    a.i('v_add_u32 %s, %d, %s' % (vr(dst[1]), 8 * R - (1024 if sub else 0), vr(dst[0])))


def pat_T(a, dst, tmp, R):
    t0, t1 = tmp
    a.i('v_lshrrev_b32 %s, 3, %s' % (vr(t0), vr(V_LANE)))
    a.i('v_and_b32 %s, 2, %s' % (vr(t0), vr(t0)))
    a.i('v_and_b32 %s, 7, %s' % (vr(t1), vr(V_LANE)))
    a.i('v_xor_b32 %s, %s, %s' % (vr(t0), vr(t0), vr(t1)))
    a.i('v_lshlrev_b32 %s, 4, %s' % (vr(t0), vr(t0)))
    a.i('v_lshrrev_b32 %s, 3, %s' % (vr(t1), vr(V_LANE)))
    a.i('v_mul_u32_u24 %s, %d, %s' % (vr(t1), R, vr(t1)))
    a.i('v_add_u32 %s, %s, %s' % (vr(dst[0]), vr(t0), vr(t1)))
    a.i('v_xor_b32 %s, 64, %s' % (vr(t0), vr(t0)))
    a.i('v_add_u32 %s, %s, %s' % (vr(dst[1]), vr(t0), vr(t1)))
    a.i('v_add_u32 %s, %d, %s' % (vr(dst[1]), 8 * R - 1024, vr(dst[1])))


def addr_U_read(a, dst, tmp, base_sgpr=None, base_imm=0):
    t0, t1 = tmp
    a.i('v_and_b32 %s, 15, %s' % (vr(t0), vr(V_LANE)))
    a.i('v_and_b32 %s, 7, %s' % (vr(t1), vr(V_LANE)))
    a.i('v_lshlrev_b32 %s, 7, %s' % (vr(t0), vr(t0)))
    a.i('v_lshrrev_b32 %s, 4, %s' % (vr(dst[0]), vr(V_LANE)))
    a.i('v_xor_b32 %s, %s, %s' % (vr(t1), vr(t1), vr(dst[0])))
    a.i('v_lshlrev_b32 %s, 4, %s' % (vr(t1), vr(t1)))
    a.i('v_add_u32 %s, %s, %s' % (vr(dst[0]), vr(t0), vr(t1)))
    if base_imm:
        a.i('v_add_u32 %s, %d, %s' % (vr(dst[0]), base_imm, vr(dst[0])))
    if base_sgpr is not None:
        a.i('v_add_u32 %s, %s, %s' % (vr(dst[0]), sr(base_sgpr), vr(dst[0])))
    a.i('v_xor_b32 %s, 64, %s' % (vr(dst[1]), vr(dst[0])))


def addr_T_read(a, dst, tmp, base_sgpr=None):
    t0, t1 = tmp
    a.i('v_lshrrev_b32 %s, 4, %s' % (vr(t0), vr(V_LANE)))
    a.i('v_lshlrev_b32 %s, 10, %s' % (vr(t0), vr(t0)))
    a.i('v_bfe_u32 %s, %s, 2, 2' % (vr(t1), vr(V_LANE)))
    a.i('v_lshlrev_b32 %s, 7, %s' % (vr(t1), vr(t1)))
    a.i('v_add_u32 %s, %s, %s' % (vr(t0), vr(t0), vr(t1)))
    a.i('v_and_b32 %s, 3, %s' % (vr(t1), vr(V_LANE)))
    a.i('v_lshlrev_b32 %s, 3, %s' % (vr(t1), vr(t1)))
    a.i('v_add_u32 %s, %s, %s' % (vr(t0), vr(t0), vr(t1)))
    a.i('v_bfe_u32 %s, %s, 3, 2' % (vr(t1), vr(V_LANE)))
    a.i('v_lshlrev_b32 %s, 5, %s' % (vr(t1), vr(t1)))
    a.i('v_add_u32 %s, %s, %s' % (vr(dst[0]), vr(t0), vr(t1)))
    if base_sgpr is not None:
        a.i('v_add_u32 %s, %s, %s' % (vr(dst[0]), sr(base_sgpr), vr(dst[0])))
    for k in (1, 2, 3):
        a.i('v_xor_b32 %s, %d, %s' % (vr(dst[k]), 32 * k, vr(dst[0])))


def addr_D_write(a, dst, tmp, chunk2_sgpr=None):
    t0, t1 = tmp
    a.i('v_and_b32 %s, 15, %s' % (vr(t0), vr(V_LANE)))
    a.i('v_and_b32 %s, 7, %s' % (vr(t1), vr(V_LANE)))
    a.i('v_lshlrev_b32 %s, 7, %s' % (vr(t0), vr(t0)))
    a.i('v_lshrrev_b32 %s, 5, %s' % (vr(dst), vr(V_LANE)))
    a.i('v_xor_b32 %s, %s, %s' % (vr(t1), vr(t1), vr(dst)))
    a.i('v_lshlrev_b32 %s, 4, %s' % (vr(t1), vr(t1)))
    a.i('v_add_u32 %s, %s, %s' % (vr(t0), vr(t0), vr(t1)))
    a.i('v_bfe_u32 %s, %s, 4, 1' % (vr(t1), vr(V_LANE)))
    a.i('v_lshlrev_b32 %s, 3, %s' % (vr(t1), vr(t1)))
    a.i('v_add_u32 %s, %s, %s' % (vr(dst), vr(t0), vr(t1)))
    if chunk2_sgpr is not None:
        a.i('v_xor_b32 %s, %s, %s' % (vr(dst), sr(chunk2_sgpr), vr(dst)))


def dma_unit(lds_off, last):
    if flag('nodma') or flag('nodma' + ROLE[0]):
        return ['s_nop 0'] * 4
    KVPOL = ' nt' if (flag('nt') or flag('nt' + ROLE[0])) else ''
    return [
        's_add_u32 m0, %s, %d' % (sr(S_RING), lds_off),
        'buffer_load_dwordx4 %s, %s, %s offen%s lds' % (vr(V_PAT[0]), sr(SRD_ST, 4), sr(S_SOFF), KVPOL),
        'buffer_load_dwordx4 %s, %s, %s offen offset:1024%s lds' % (vr(V_PAT[1]), sr(SRD_ST, 4), sr(S_SOFF), KVPOL),
    ] + (next_tile() if (lds_off & 6144) == 6144 else ['s_add_u32 %s, %s, %s' % (sr(S_SOFF), sr(S_SOFF), sr(S_STEPU))])


def next_tile():
    return ['s_and_b32 %s, %s, 15' % (sr(S_SOFF), sr(S_SEQ)),
            's_lshr_b64 %s, %s, 4' % (sr(S_SEQ, 2), sr(S_SEQ, 2)),
            's_mul_i32 %s, %s, %s' % (sr(S_SOFF), sr(S_SOFF), sr(S_TSTR)),
            's_add_u32 %s, %s, %s' % (sr(S_SOFF), sr(S_SOFF), sr(S_WBASE))]


def place_dma(fill, lds_off, last, m_a, m_b):
    d = dma_unit(lds_off, last)
    fill.setdefault(m_a - 1, []).append(d[0])
    fill.setdefault(m_a, []).append(d[1])
    fill.setdefault(m_b, []).extend(d[2:])


def seq_init(a):
    if ROT:
        a.i('s_bfe_u32 %s, s2, 0x20003' % sr(S_T0))
        a.i('s_lshl_b32 %s, %s, 2' % (sr(S_T0), sr(S_T0)))
        a.i('s_lshr_b32 %s, 0x32103210, %s' % (sr(S_T0), sr(S_T0)))
        a.i('s_and_b32 %s, %s, 0xffff' % (sr(S_T0), sr(S_T0)))
        a.i('s_mul_i32 %s, %s, 0x10001' % (sr(S_T0), sr(S_T0)))
        a.i('s_add_u32 %s, %s, 0x44440000' % (sr(S_SEQ), sr(S_T0)))
        a.i('s_add_u32 %s, %s, 0xcccc8888' % (sr(S_SEQ + 1), sr(S_T0)))
        if ROT == 2:
            a.i('s_and_b32 %s, %s, 3' % (sr(S_T0), sr(S_B)))
            a.i('s_lshl_b32 %s, %s, 2' % (sr(S_T0), sr(S_T0)))
            a.i('s_sub_u32 %s, 32, %s' % (sr(S_T1), sr(S_T0)))
            a.i('s_mov_b32 s88, 0')
            a.i('s_mov_b32 s89, %s' % sr(S_SEQ))
            a.i('s_lshl_b64 s[88:89], s[88:89], %s' % sr(S_T1))
            a.i('s_lshr_b64 %s, %s, %s' % (sr(S_SEQ, 2), sr(S_SEQ, 2), sr(S_T0)))
            a.i('s_or_b32 %s, %s, s89' % (sr(S_SEQ + 1), sr(S_SEQ + 1)))
    else:
        a.i('s_mov_b32 %s, 0x76543210' % sr(S_SEQ))
        a.i('s_mov_b32 %s, 0xfedcba98' % sr(S_SEQ + 1))
    a.i('s_mov_b32 %s, 32768' % sr(S_TSTR))
    for x in next_tile():
        a.i(x)


def switch_to_wo(a, tmp):
    for k in range(3):
        a.i('s_mov_b32 %s, %s' % (sr(SRD_ST + k), sr(SRD_WO + k)))
    a.i('s_lshl_b32 %s, %s, 7' % (sr(S_SOFF), sr(S_CG)))
    a.i('s_mov_b32 %s, %s' % (sr(S_WBASE), sr(S_SOFF)))
    a.i('s_mov_b32 %s, %d' % (sr(S_STEPU), 16 * 896))
    a.i('s_mov_b32 %s, %d' % (sr(S_TSTR), 64 * 896))
    a.i('s_mov_b32 %s, 0x4321' % sr(S_SEQ))
    pat_T(a, V_PAT, tmp, 896)


def run_stream(a, mf, fill):
    def emit(lst):
        for x in lst:
            if callable(x):
                x()
            else:
                if INLOOP[0]:
                    if flag('nopw') and x.startswith('ds_write'):
                        continue
                    if flag('notr') and x.startswith('ds_read_b64_tr'):
                        continue
                    if flag('nokr') and x.startswith('ds_read_b128') and ROLE[0] == 'q':
                        continue
                    if flag('nopr') and x.startswith('ds_read_b128') and ROLE[0] == 'p':
                        continue
                    if flag('novalu') and x.startswith('v_') and ROLE[0] == 'q' and not x.startswith('v_cmp'):
                        continue
                a.i(x)
    for m in sorted(k for k in fill if k < 0):
        emit(fill[m])
    for m, f in enumerate(mf):
        f()
        emit(fill.get(m, []))
    for m in sorted(k for k in fill if k >= len(mf)):
        emit(fill[m])


def spread(fill, items, m0, m1):
    n = len(items)
    span = m1 - m0 + 1
    for k, it in enumerate(items):
        m = m0 + (k * span) // n
        fill.setdefault(m, []).append(it)


def a_reads(e_dst, imm):
    out = []
    for ai in range(4):
        for hh in range(2):
            out.append('ds_read_b64_tr_b16 %s, %s offset:%d' % (vr(G_AF(e_dst, ai) + 2 * hh, 2), vr(G_TA[ai]), imm + hh * 512))
    return out


def b_reads(e, imm_of_i):
    return ['ds_read_b128 %s, %s offset:%d' % (vr(G_BF(e, i), 4), vr(G_UB[e]), imm_of_i(i)) for i in range(5)]


def half_mfmas(a, acc, e):
    return [(lambda ai=ai, i=i: mfma(a, acc(ai, i), G_AF(e, ai), G_BF(e, i))) for ai in range(4) for i in range(5)]


def xreduce(a, op, v, t):
    a.i('v_mov_b32 %s, %s' % (vr(t), vr(v)))
    a.i('v_permlane32_swap_b32 %s, %s' % (vr(v), vr(t)))
    a.i('%s %s, %s, %s' % (op, vr(v), vr(v), vr(t)))
    a.i('v_mov_b32 %s, %s' % (vr(t), vr(v)))
    a.i('v_permlane16_swap_b32 %s, %s' % (vr(v), vr(t)))
    a.i('%s %s, %s, %s' % (op, vr(v), vr(v), vr(t)))


def fused_reduce(a):
    SRD_C, SRD_R, SRD_OUT = 36, 40, 44
    a.label('L_pub')
    a.i('v_mov_b32 v7, %d' % (SM + 4096))
    a.i('v_mov_b32 v4, 0')
    a.i('ds_write_b32 v7, v4')
    a.i('s_waitcnt vmcnt(0) lgkmcnt(0)')
    stamp(a)
    a.i('s_barrier')
    stamp(a)
    a.i('s_mov_b32 %s, %s' % (sr(SRD_C), sr(S_DBG)))
    a.i('s_mov_b32 %s, %s' % (sr(SRD_C + 1), sr(S_DBG + 1)))
    a.i('s_mov_b32 %s, 256' % sr(SRD_C + 2))
    a.i('s_mov_b32 %s, 0x20000' % sr(SRD_C + 3))
    a.i('s_mul_i32 %s, %s, %d' % (sr(S_T0), sr(S_GRP), 16 * 71680))
    build_srd(a, SRD_R, S_WS, S_T0, 16 * 71680)
    a.i('s_mov_b32 %s, %s' % (sr(SRD_OUT), sr(S_OUT)))
    a.i('s_mov_b32 %s, %s' % (sr(SRD_OUT + 1), sr(S_OUT + 1)))
    a.i('s_mov_b32 %s, %d' % (sr(SRD_OUT + 2), 1280 * 448 * 2))
    a.i('s_mov_b32 %s, 0x20000' % sr(SRD_OUT + 3))
    F, CG, I_, AP = 59, 60, 61, 62
    SEEN, NEW = 63, 64
    MW = SM + 4096
    a.i('v_mov_b32 v7, %d' % MW)
    a.i('s_mov_b32 %s, 0x40000' % sr(S_T1))
    a.i('s_cmp_lg_u32 %s, 7' % sr(S_WAVE))
    a.i('s_cbranch_scc1 L_red')
    a.i('v_lshlrev_b32 v2, 8, %s' % vr(V_LANE))
    a.i('s_lshl_b32 %s, %s, 2' % (sr(S_T2), sr(S_H)))
    a.i('v_mov_b32 v3, 1')
    a.i('buffer_store_dword v3, v2, %s, %s offen sc1' % (sr(SRD_FG, 4), sr(S_T2)))
    a.i('s_lshl_b32 %s, %s, 4' % (sr(S_T0), sr(S_GRP)))
    a.label('L_cpoll')
    a.i('s_cmp_eq_u32 %s, 0xffff' % sr(S_CLR))
    a.i('s_cbranch_scc1 L_cdone')
    a.i('buffer_load_dword v4, v2, %s, %s offen sc1' % (sr(SRD_C, 4), sr(S_T0)))
    a.i('s_waitcnt vmcnt(0)')
    a.i('v_readfirstlane_b32 %s, v4' % sr(S_CLR))
    a.i('s_sub_u32 %s, %s, 1' % (sr(S_T1), sr(S_T1)))
    a.i('s_cmp_lg_u32 %s, 0' % sr(S_T1))
    a.i('s_cbranch_scc1 L_cpoll')
    a.i('s_branch L_fin')
    a.label('L_cdone')
    a.i('v_lshlrev_b32 v2, 2, %s' % vr(V_LANE))
    a.label('L_poll')
    a.i('buffer_load_dword v4, v2, %s, 0 offen sc1' % sr(SRD_FG, 4))
    a.i('s_waitcnt vmcnt(0)')
    a.i('v_cmp_eq_u32 vcc, 1, v4')
    a.i('s_and_b32 %s, vcc_lo, 0xffff' % sr(S_T2))
    a.i('v_mov_b32 v4, %s' % sr(S_T2))
    a.i('ds_write_b32 v7, v4')
    a.i('s_waitcnt lgkmcnt(0)')
    a.i('s_cmp_eq_u32 %s, 0xffff' % sr(S_T2))
    a.i('s_cbranch_scc1 L_fin')
    a.i('s_sleep %s' % opt('psleep', '2'))
    a.i('s_sub_u32 %s, %s, 1' % (sr(S_T1), sr(S_T1)))
    a.i('s_cmp_lg_u32 %s, 0' % sr(S_T1))
    a.i('s_cbranch_scc1 L_poll')
    a.i('s_branch L_fin')
    a.reset()
    a.label('L_red')
    a.i('s_lshl_b32 %s, %s, 4' % (sr(F), sr(S_WAVE)))
    a.i('s_add_u32 %s, %s, %s' % (sr(F), sr(F), sr(S_H)))
    a.i('s_cmp_ge_u32 %s, 70' % sr(F))
    a.i('s_cbranch_scc1 L_fin')
    a.i('s_lshl_b32 %s, %s, 10' % (sr(S_T0), sr(F)))
    a.i('v_lshlrev_b32 v2, 4, %s' % vr(V_LANE))
    a.i('v_add_u32 v2, %s, v2' % sr(S_T0))
    a.i('s_mov_b32 %s, 0' % sr(SEEN))
    a.i('s_lshl_b32 %s, %s, 4' % (sr(S_T1), sr(S_T1)))
    a.label('L_rpoll')
    a.i('ds_read_b32 v4, v7')
    a.i('s_waitcnt lgkmcnt(0)')
    a.i('v_readfirstlane_b32 %s, v4' % sr(NEW))
    a.i('s_andn2_b32 %s, %s, %s' % (sr(NEW), sr(NEW), sr(SEEN)))
    a.i('s_cbranch_scc0 L_rnone')
    for h in range(16):
        a.i('s_bitcmp1_b32 %s, %d' % (sr(NEW), h))
        a.i('s_cbranch_scc0 L_rskip%d' % h)
        a.i('s_mov_b32 %s, %d' % (sr(S_T0), h * 71680))
        a.i('buffer_load_dwordx4 %s, v2, %s, %s offen sc1' % (vr(16 + 4 * h, 4), sr(SRD_R, 4), sr(S_T0)))
        a.label('L_rskip%d' % h)
    a.i('s_or_b32 %s, %s, %s' % (sr(SEEN), sr(SEEN), sr(NEW)))
    a.i('s_cmp_eq_u32 %s, 0xffff' % sr(SEEN))
    a.i('s_cbranch_scc1 L_rall')
    a.label('L_rnone')
    a.i('s_sleep 1')
    a.i('s_sub_u32 %s, %s, 1' % (sr(S_T1), sr(S_T1)))
    a.i('s_cmp_lg_u32 %s, 0' % sr(S_T1))
    a.i('s_cbranch_scc1 L_rpoll')
    a.label('L_rall')
    stamp(a)
    a.i('s_mul_i32 %s, %s, 205' % (sr(CG), sr(F)))
    a.i('s_lshr_b32 %s, %s, 11' % (sr(CG), sr(CG)))
    a.i('s_mul_i32 %s, %s, 10' % (sr(AP), sr(CG)))
    a.i('s_sub_u32 %s, %s, %s' % (sr(AP), sr(F), sr(AP)))
    a.i('s_lshr_b32 %s, %s, 1' % (sr(I_), sr(AP)))
    a.i('s_and_b32 %s, %s, 1' % (sr(AP), sr(AP)))
    a.i('s_mul_i32 %s, %s, 80' % (sr(S_T1), sr(S_GRP)))
    a.i('s_lshl_b32 %s, %s, 4' % (sr(I_), sr(I_)))
    a.i('s_add_u32 %s, %s, %s' % (sr(S_T1), sr(S_T1), sr(I_)))
    a.i('s_mul_i32 %s, %s, 896' % (sr(S_T1), sr(S_T1)))
    a.i('s_lshl_b32 %s, %s, 7' % (sr(CG), sr(CG)))
    a.i('s_add_u32 %s, %s, %s' % (sr(S_T1), sr(S_T1), sr(CG)))
    a.i('s_lshl_b32 %s, %s, 6' % (sr(AP), sr(AP)))
    a.i('s_add_u32 %s, %s, %s' % (sr(S_T1), sr(S_T1), sr(AP)))
    a.i('v_and_b32 v3, 15, %s' % vr(V_LANE))
    a.i('v_mul_u32_u24 v3, 896, v3')
    a.i('v_lshrrev_b32 v4, 4, %s' % vr(V_LANE))
    a.i('v_lshlrev_b32 v4, 3, v4')
    a.i('v_add_u32 v3, v3, v4')
    a.i('s_mov_b32 %s, 0xffff0000' % sr(S_T2))
    a.i('v_mov_b32 v5, 0x3f80')
    a.i('v_mov_b32 v6, 0x3f800000')
    a.i('s_waitcnt vmcnt(0)')
    for h in range(16):
        for r in range(4):
            src = 16 + 4 * h + r
            if h == 0:
                a.i('v_lshlrev_b32 %s, 16, %s' % (vr(8 + 2 * r), vr(src)))
                a.i('v_and_b32 %s, %s, %s' % (vr(9 + 2 * r), sr(S_T2), vr(src)))
            elif flag('dot2'):
                a.i('v_dot2c_f32_bf16 %s, %s, v5' % (vr(8 + 2 * r), vr(src)))
                a.i('v_dot2c_f32_bf16 %s, %s, v6' % (vr(9 + 2 * r), vr(src)))
            else:
                a.i('v_lshlrev_b32 v5, 16, %s' % vr(src))
                a.i('v_and_b32 v6, %s, %s' % (sr(S_T2), vr(src)))
                a.i('v_add_f32 %s, %s, v5' % (vr(8 + 2 * r), vr(8 + 2 * r)))
                a.i('v_add_f32 %s, %s, v6' % (vr(9 + 2 * r), vr(9 + 2 * r)))
    a.i('s_nop 3')
    for r in range(4):
        a.i('v_cvt_pk_bf16_f32 %s, %s, %s' % (vr(16 + r), vr(8 + 2 * r), vr(9 + 2 * r)))
    a.i('buffer_store_dwordx2 v[16:17], v3, %s, %s offen' % (sr(SRD_OUT, 4), sr(S_T1)))
    a.i('buffer_store_dwordx2 v[18:19], v3, %s, %s offen offset:32' % (sr(SRD_OUT, 4), sr(S_T1)))


def gen_main(a, name):
    a.raw('.globl %s' % name)
    a.raw('.p2align 8')
    a.raw('.type %s,@function' % name)
    a.label(name)
    a.i('s_cmp_ge_u32 s2, 256')
    a.i('s_cbranch_scc1 L_end')
    a.i('s_load_dwordx16 s[4:19], s[0:1], 0')
    a.i('v_and_b32 %s, 63, v0' % vr(V_LANE))
    a.i('v_lshrrev_b32 v2, 6, v0')
    a.i('v_readfirstlane_b32 %s, v2' % sr(S_WAVE))
    if flag('badmap'):
        a.i('s_and_b32 s26, s2, 3')
        a.i('s_lshl_b32 s26, s26, 3')
        a.i('s_bfe_u32 s27, s2, 0x30002')
        a.i('s_and_b32 s2, s2, 0xe0')
        a.i('s_or_b32 s2, s2, s26')
        a.i('s_or_b32 s2, s2, s27')
    a.i('s_and_b32 %s, s2, 7' % sr(S_HKV))
    a.i('s_lshr_b32 %s, s2, 5' % sr(S_B))
    a.i('s_bfe_u32 %s, s2, 0x10004' % sr(S_T0))
    a.i('s_bfe_u32 %s, s2, 0x10003' % sr(S_T1))
    a.i('s_lshl_b32 %s, %s, 1' % (sr(S_H), sr(S_HKV)))
    a.i('s_add_u32 %s, %s, %s' % (sr(S_H), sr(S_H), sr(S_T0)))
    a.i('s_lshl_b32 %s, %s, 1' % (sr(S_GRP), sr(S_B)))
    a.i('s_add_u32 %s, %s, %s' % (sr(S_GRP), sr(S_GRP), sr(S_T1)))
    a.i('s_and_b32 %s, %s, 3' % (sr(S_W), sr(S_WAVE)))
    a.i('s_cmp_ge_u32 %s, 4' % sr(S_WAVE))
    a.i('s_cbranch_scc1 L_pv')

    def common_srds():
        a.i('s_mul_i32 %s, %s, %d' % (sr(S_T0), sr(S_H), 229376))
        build_srd(a, SRD_WO, S_WO, S_T0, 229376)
        a.i('s_lshl_b32 %s, %s, 4' % (sr(S_T0), sr(S_GRP)))
        a.i('s_add_u32 %s, %s, %s' % (sr(S_T0), sr(S_T0), sr(S_H)))
        a.i('s_mul_i32 %s, %s, %d' % (sr(S_T0), sr(S_T0), 71680))
        build_srd(a, SRD_PO, S_WS, S_T0, 71680)
        a.i('s_lshl_b32 %s, %s, 3' % (sr(S_T0), sr(S_B)))
        a.i('s_add_u32 %s, %s, %s' % (sr(S_T0), sr(S_T0), sr(S_HKV)))
        if flag('kvsame'):
            a.i('s_mov_b32 %s, %s' % (sr(S_T0), sr(S_HKV)))
        a.i('s_lshl_b32 %s, %s, 19' % (sr(S_T2), sr(S_T0)))

    LWQ = [100, 101]
    LX = [102, 103]
    LT = (104, 105)
    pat_T(a, LWQ, LT, 8192)
    pat_U(a, LX, LT, 896, sub=False)
    a.i('s_and_b32 %s, %s, 1' % (sr(S_T0), sr(S_W)))
    a.i('s_cmp_eq_u32 %s, 1' % sr(S_T0))
    a.i('s_cselect_b64 vcc, -1, 0')
    a.i('v_cndmask_b32 %s, %s, %s, vcc' % (vr(LX[0]), vr(LX[0]), vr(LX[1])))
    for k in range(3):
        a.i('s_add_u32 %s, %s, %d' % (sr(S_T0), sr(S_W), 4 * k))
        if k == 2:
            a.i('s_add_u32 %s, %s, 4' % (sr(S_T1), sr(S_W)))
            a.i('s_cmp_ge_u32 %s, 10' % sr(S_T0))
            a.i('s_cselect_b32 %s, %s, %s' % (sr(S_T0), sr(S_T1), sr(S_T0)))
        a.i('s_lshl_b32 %s, %s, 10' % (sr(S_XL[k]), sr(S_T0)))
        a.i('s_lshr_b32 %s, %s, 1' % (sr(S_T0), sr(S_T0)))
        a.i('s_mul_i32 %s, %s, %d' % (sr(S_XG[k]), sr(S_T0), 16 * 896))
    a.i('s_lshl_b32 %s, %s, 7' % (sr(S_WQOFF), sr(S_W)))
    if flag('qrot'):
        a.i('s_add_u32 %s, %s, %s' % (sr(S_T0), sr(S_GRP), sr(S_H)))
        a.i('s_mul_i32 %s, %s, 37' % (sr(S_T1), sr(S_T0)))
        a.i('s_lshr_b32 %s, %s, 8' % (sr(S_T1), sr(S_T1)))
        a.i('s_mul_i32 %s, %s, 7' % (sr(S_T1), sr(S_T1)))
        a.i('s_sub_u32 %s, %s, %s' % (sr(S_P), sr(S_T0), sr(S_T1)))
        a.i('s_lshl_b32 %s, %s, 19' % (sr(S_T0), sr(S_P)))
        a.i('s_add_u32 %s, %s, %s' % (sr(S_WQOFF), sr(S_WQOFF), sr(S_T0)))
        a.i('s_lshl_b32 %s, %s, 7' % (sr(S_T0), sr(S_P)))
        for k in range(3):
            a.i('s_add_u32 %s, %s, %s' % (sr(S_XG[k]), sr(S_XG[k]), sr(S_T0)))
    a.i('s_lshl_b32 %s, %s, 13' % (sr(S_T3), sr(S_W)))
    a.i('s_lshl_b32 %s, %s, 9' % (sr(S_T0), sr(S_H)))
    a.i('s_sub_u32 %s, %d, %s' % (sr(S_T1), 448 * 8192, sr(S_T0)))
    a.i('s_mul_i32 %s, %s, %d' % (sr(S_T2), sr(S_GRP), 71680))
    a.i('s_waitcnt lgkmcnt(0)')
    build_srd(a, SRD_WQ, S_WQ, S_T0, sr(S_T1))
    build_srd(a, SRD_X, S_X, S_T2, 71680)

    def issue_tile(c):
        sl = c % 3
        for k in range(3):
            a.i('s_add_u32 m0, %s, %d' % (sr(S_XL[k]), XSLOT[sl]))
            a.i('buffer_load_dwordx4 %s, %s, %s offen lds' % (vr(LX[0]), sr(SRD_X, 4), sr(S_XG[k])))
            a.i('s_add_u32 %s, %s, 128' % (sr(S_XG[k]), sr(S_XG[k])))
        for u in range(4):
            a.i('s_add_u32 m0, %s, %d' % (sr(S_T3), WSLOT[sl] + u * 2048))
            a.i('buffer_load_dwordx4 %s, %s, %s offen lds' % (vr(LWQ[0]), sr(SRD_WQ, 4), sr(S_WQOFF)))
            a.i('buffer_load_dwordx4 %s, %s, %s offen offset:1024 lds' % (vr(LWQ[1]), sr(SRD_WQ, 4), sr(S_WQOFF)))
            a.i('s_add_u32 %s, %s, %d' % (sr(S_WQOFF), sr(S_WQOFF), 16 * 8192))
        if flag('qrot'):
            a.i('s_add_u32 %s, %s, 1' % (sr(S_P), sr(S_P)))
            a.i('s_cmp_eq_u32 %s, 7' % sr(S_P))
            a.i('s_cselect_b32 s88, %d, 0' % (7 << 19))
            a.i('s_cselect_b32 s89, %d, 0' % (7 << 7))
            a.i('s_sub_u32 %s, %s, s88' % (sr(S_WQOFF), sr(S_WQOFF)))
            for k in range(3):
                a.i('s_sub_u32 %s, %s, s89' % (sr(S_XG[k]), sr(S_XG[k])))

    for c in range(2):
        issue_tile(c)
    stamp_init(a)
    common_srds()
    build_srd(a, SRD_ST, S_K, S_T2, 524288)
    a.i('s_mov_b32 %s, %s' % (sr(S_CG), sr(S_W)))
    a.i('s_cmp_eq_u32 %s, 3' % sr(S_W))
    a.i('s_cselect_b32 %s, 0, %s' % (sr(SRD_WO + 2), sr(SRD_WO + 2)))
    T2 = (Q_T[0], Q_T[1])
    pat_U(a, V_PAT, T2, 512)
    a.i('s_lshl_b32 %s, %s, 13' % (sr(S_WBASE), sr(S_W)))
    seq_init(a)
    a.i('s_mov_b32 %s, 128' % sr(S_STEPU))
    a.i('s_lshl_b32 %s, %s, 14' % (sr(S_RING), sr(S_W)))
    a.i('s_add_u32 %s, %s, %d' % (sr(S_RING), sr(S_RING), KR0))
    a.i('s_lshl_b32 %s, %s, 5' % (sr(S_T0), sr(S_W)))
    addr_D_write(a, Q_PWA, T2, S_T0)
    a.i('v_add_u32 %s, %d, %s' % (vr(Q_PWA), PB, vr(Q_PWA)))
    a.i('v_bfe_u32 %s, %s, 4, 1' % (vr(T2[0]), vr(V_LANE)))
    a.i('v_mul_u32_u24 %s, %d, %s' % (vr(T2[0]), 2040, vr(T2[0])))
    a.i('v_add_u32 %s, %s, %s' % (vr(Q_PWA2), vr(T2[0]), vr(Q_PWA)))
    a.i('v_mov_b32 %s, %d' % (vr(Q_FLA), FL))
    for i in range(5):
        a.i('v_mov_b32 %s, 0' % vr(Q_L + i))
        for r in range(4):
            a.i('v_mov_b32 %s, 0' % vr(Q_MQ(i) + r))
    addr_U_read(a, Q_UA, T2)
    for c in range(7):
        n = 11 if c < 6 else 0
        a.i('s_waitcnt vmcnt(%d)' % n)
        barrier(a)
        if c <= 4:
            issue_tile(c + 2)
    for t in range(2):
        for u in range(4):
            if QLAG and t == 1 and u == 3:
                continue
            for x in dma_unit(t * 8192 + u * 2048, u == 3):
                a.i(x)
    barrier(a)
    QA = [Q_T[0], Q_T[1]]
    for e in range(2):
        a.i('v_mov_b32 %s, %s' % (vr(QA[e]), vr(Q_UA[e])))
        a.i('v_add_u32 %s, %s, %s' % (vr(Q_UA[e]), sr(S_RING), vr(Q_UA[e])))

    def qread(i, s):
        return 'ds_read_b128 %s, %s offset:%d' % (vr(Q_Q(i, s), 4), vr(QA[s & 1]), QB + (i * 4 + (s >> 1)) * 2048)

    def kread(par, s, buf):
        return 'ds_read_b128 %s, %s offset:%d' % (vr(Q_KF(buf), 4), vr(Q_UA[s & 1]), par * 8192 + (s >> 1) * 2048)

    a.i('s_waitcnt vmcnt(12)')
    a.i(kread(0, 0, 0))
    a.i(kread(0, 1, 1))
    a.i('s_waitcnt lgkmcnt(0)')
    a.i('s_mov_b32 %s, 0' % sr(S_P))
    barrier(a)

    q_rare = []
    q_setf = []

    def qk_phase(par, do_mfma, do_soft, tag):
        pp = 1 - par
        fill = {}
        mf = []
        if do_mfma:
            order = [(s, i) for s in range(6) for i in range(5)] + [(s, i) for i in range(5) for s in (6, 7)]
            for (s, i) in order:
                mf.append(lambda s=s, i=i: mfma(a, Q_S(par, i), Q_KF(s % 4), Q_Q(i, s), vr(Q_MQ(i), 4) if s == 0 else None))
            reads = [(0, 2, 0, 2), (1, 3, 0, 3), (5, 4, 0, 0), (10, 5, 0, 1), (15, 6, 0, 2), (20, 7, 0, 3),
                     (25, 0, 1, 0), (30, 1, 1, 1)]
            refills = [(3, 8, 0, 0), (16, 21, 1, 0), (26, 29, 2, 0), (33, 37, 3, 0)]
            if opt('qdma'):
                q = [int(x) for x in opt('qdma').split(',')]
                refills = [(q[2 * u], q[2 * u + 1], u, 0) for u in range(4)]
            if QLAG:
                q = [int(x) for x in opt('qdma', '2,7,12,17,22,27,32,37').split(',')]
                refills = [(q[0], q[1], 3, -1), (q[2], q[3], 0, 0), (q[4], q[5], 1, 0), (q[6], q[7], 2, 0)]
            ev = []
            for (m, s, dt, buf) in reads:
                ev.append((m, 0, 'need', dt, s >> 1, s, buf))
            for (ma, mb, u, dt) in refills:
                ev.append((ma, 1, 'dma', u, dt))
                ev.append((mb, 1, 'dma', u, dt))
            ev.sort(key=lambda e: (e[0], e[1]))
            issued = []
            need_n = {}
            for ph in range(4):
                for e in ev:
                    if e[2] == 'dma':
                        issued.append((ph + 2 + e[4], e[3]))
                    elif ph == 3:
                        key = (ph + e[3], e[4])
                        last = max(k for k, x in enumerate(issued) if x == key)
                        need_n[e[5]] = len(issued) - 1 - last
            for (m, s, dt, buf) in reads:
                if s % 2 == 0:
                    fill.setdefault(m, []).append('s_waitcnt vmcnt(%d)' % need_n[s])
                fill.setdefault(m, []).append(kread(pp if dt else par, s, buf))
            for (ma, mb, u, dt) in refills:
                place_dma(fill, (pp if dt else par) * 8192 + u * 2048, u == 3, ma, mb)
                if QLAG and dt and tag == 'even':
                    def sw():
                        a.i('s_cmp_eq_u32 %s, 14' % sr(S_P))
                        a.i('s_cbranch_scc0 L_qnosw2')
                        switch_to_wo(a, (Q_T[5], Q_T[6]))
                        a.label('L_qnosw2')
                    fill.setdefault(mb, []).append(sw)
        if tag == 'p0':
            qr = [qread(i, s) for s in range(8) for i in range(5)]
            fill.setdefault(-1, []).extend(qr[:10])
            for k, x in enumerate(qr[10:]):
                fill.setdefault(k * 2 // 3, []).append(x)
        if do_soft:
            fill.setdefault(-1, []).append('ds_read_b32 %s, %s offset:%d' % (vr(Q_T[2]), vr(Q_FLA), pp * 4))
            chk = ['v_cmp_eq_u32 vcc, %s, %s' % (sr(S_P), vr(Q_T[2]))]

            def br():
                a.i('s_cbranch_vccnz L_q%s_%s' % ('join' if flag('norare') else 'rare', tag))
                a.label('L_qjoin_%s' % tag)
            chk.append(br)
            q_rare.append((tag, par, do_mfma))
            soft = []
            for i in range(5):
                S = Q_S(pp, i)
                t0, t1 = (Q_T[0], Q_T[1]) if i % 2 == 0 else (Q_T[3], Q_T[4])
                for r in range(4):
                    soft.append('v_exp_f32 %s, %s' % (vr(S + r), vr(S + r)))
                soft.append('v_add_f32 %s, %s, %s' % (vr(t0), vr(S), vr(S + 1)))
                soft.append('v_add_f32 %s, %s, %s' % (vr(t1), vr(S + 2), vr(S + 3)))
                D = S if i % 2 == 0 else Q_S(pp, i - 1) + 2
                if flag('pw64'):
                    D = S
                soft.append('v_cvt_pk_bf16_f32 %s, %s, %s' % (vr(D), vr(S), vr(S + 1)))
                soft.append('v_cvt_pk_bf16_f32 %s, %s, %s' % (vr(D + 1), vr(S + 2), vr(S + 3)))
                soft.append('v_add_f32 %s, %s, %s' % (vr(t0), vr(t0), vr(t1)))
                if i == 4 or flag('pw64'):
                    soft.append('ds_write_b64 %s, %s offset:%d' % (vr(Q_PWA), vr(S, 2), pp * 10240 + i * 2048))
                elif i % 2 == 1:
                    A = Q_S(pp, i - 1)
                    soft.append('v_permlane16_swap_b32 %s, %s' % (vr(A), vr(A + 2)))
                    soft.append('v_permlane16_swap_b32 %s, %s' % (vr(A + 1), vr(A + 3)))
                    soft.append('ds_write_b128 %s, %s offset:%d' % (vr(Q_PWA2), vr(A, 4), pp * 10240 + (i - 1) * 2048))
                soft.append('v_add_f32 %s, %s, %s' % (vr(Q_L + i), vr(Q_L + i), vr(t0)))
            if do_mfma:
                fill.setdefault(5, []).extend(chk)
                if opt('wpos'):
                    wr = [x for x in soft if x.startswith('ds_write')]
                    soft = [x for x in soft if not x.startswith('ds_write')]
                    wp = [int(x) for x in opt('wpos').split(',')]
                    spread(fill, soft, 6, int(opt('softend', 31)))
                    for k, x in enumerate(wr):
                        fill.setdefault(wp[k] if len(wp) > 1 else wp[0], []).append(x)
                else:
                    spread(fill, soft, 6, int(opt('softend', 31)))
            else:
                fill.setdefault(-1, []).extend(chk + soft)
        if tag == 'p0':
            M = [Q_S(1, 0) + k for k in range(5)]
            t5, adw, ad4 = Q_S(1, 0) + 5, Q_S(1, 0) + 6, Q_S(1, 0) + 7
            pre = ['v_and_b32 %s, 15, %s' % (vr(ad4), vr(V_LANE)),
                   'v_lshlrev_b32 %s, 7, %s' % (vr(ad4), vr(ad4)),
                   's_lshl_b32 %s, %s, 2' % (sr(S_T0), sr(S_W)),
                   's_add_u32 %s, %s, %d' % (sr(S_T0), sr(S_T0), RM),
                   'v_add_u32 %s, %s, %s' % (vr(ad4), sr(S_T0), vr(ad4)),
                   'v_bfe_u32 %s, %s, 4, 1' % (vr(adw), vr(V_LANE)),
                   'v_lshlrev_b32 %s, 5, %s' % (vr(adw), vr(adw)),
                   'v_lshrrev_b32 %s, 5, %s' % (vr(t5), vr(V_LANE)),
                   'v_lshlrev_b32 %s, 4, %s' % (vr(t5), vr(t5)),
                   'v_add3_u32 %s, %s, %s, %s' % (vr(adw), vr(adw), vr(t5), vr(ad4))]
            spread(fill, pre, 22, 31)
            for i in range(5):
                S = Q_S(par, i)
                fill.setdefault(min(34 + 2 * i, 40), []).extend([
                    'v_max3_f32 %s, %s, %s, %s' % (vr(M[i]), vr(S), vr(S + 1), vr(S + 2)),
                    'v_max_f32 %s, %s, %s' % (vr(M[i]), vr(M[i]), vr(S + 3))])

            def red0():
                a.i('v_permlane32_swap_b32 %s, %s' % (vr(M[0]), vr(M[1])))
                a.i('v_permlane32_swap_b32 %s, %s' % (vr(M[2]), vr(M[3])))
                a.i('v_max_f32 %s, %s, %s' % (vr(M[0]), vr(M[0]), vr(M[1])))
                a.i('v_max_f32 %s, %s, %s' % (vr(M[2]), vr(M[2]), vr(M[3])))
                xreduce(a, 'v_max_f32', M[4], t5)
                a.i('v_permlane16_swap_b32 %s, %s' % (vr(M[0]), vr(M[2])))
                a.i('v_max_f32 %s, %s, %s' % (vr(M[0]), vr(M[0]), vr(M[2])))
                a.i('ds_write_b32 %s, %s offset:64' % (vr(ad4), vr(M[4])))
                a.i('ds_write_b32 %s, %s' % (vr(adw), vr(M[0])))
            fill.setdefault(41, []).append(red0)
        elif do_mfma:
            M0_, M1_ = Q_T[5], Q_T[6]
            for i in range(5):
                S = Q_S(par, i)
                m = min(34 + 2 * i, 40)
                if i == 0:
                    ops = ['v_max3_f32 %s, %s, %s, %s' % (vr(M0_), vr(S), vr(S + 1), vr(S + 2)),
                           'v_mov_b32 %s, %s' % (vr(M1_), vr(S + 3))]
                else:
                    ops = ['v_max3_f32 %s, %s, %s, %s' % (vr(M0_), vr(M0_), vr(S), vr(S + 1)),
                           'v_max3_f32 %s, %s, %s, %s' % (vr(M1_), vr(M1_), vr(S + 2), vr(S + 3))]
                fill.setdefault(m, []).extend(ops)

            def endchk():
                a.i('v_max_f32 %s, %s, %s' % (vr(M0_), vr(M0_), vr(M1_)))
                a.i('v_cmp_lt_f32 vcc, %s, %s' % (f32hex(THR), vr(M0_)))
                a.i('s_cbranch_vccnz L_q%s_%s' % ('setj' if flag('norare') else 'setf', tag))
                a.label('L_qsetj_%s' % tag)
            fill.setdefault(41, []).append(endchk)
            q_setf.append((tag, par))
        run_stream(a, mf, fill)
        a.i('s_add_u32 %s, %s, 1' % (sr(S_P), sr(S_P)))
        a.i('s_waitcnt lgkmcnt(0)')
        barrier(a)

    qk_phase(0, True, False, 'p0')
    ad = Q_T[0]
    a.i('v_and_b32 %s, 15, %s' % (vr(ad), vr(V_LANE)))
    a.i('v_lshlrev_b32 %s, 7, %s' % (vr(ad), vr(ad)))
    a.i('v_add_u32 %s, %d, %s' % (vr(ad), RM, vr(ad)))
    for i in range(5):
        a.i('ds_read_b128 %s, %s offset:%d' % (vr(Q_S(1, i), 4), vr(ad), 16 * i))
    for i in range(5):
        R = Q_S(1, i)
        a.i('v_max3_f32 %s, %s, %s, %s' % (vr(R), vr(R), vr(R + 1), vr(R + 2)))
        a.i('v_max_f32 %s, %s, %s' % (vr(R), vr(R), vr(R + 3)))
        for r in range(4):
            a.i('v_sub_f32 %s, 0, %s' % (vr(Q_MQ(i) + r), vr(R)))
    for i in range(5):
        for r in range(4):
            a.i('v_add_f32 %s, %s, %s' % (vr(Q_S(0, i) + r), vr(Q_S(0, i) + r), vr(Q_MQ(i))))
    a.label('L_qloop')
    INLOOP[0] = True
    qk_phase(1, True, True, 'odd')
    a.i('s_cmp_eq_u32 %s, 16' % sr(S_P))
    a.i('s_cbranch_scc1 L_qdone')
    if not QLAG:
        a.i('s_cmp_eq_u32 %s, 14' % sr(S_P))
        a.i('s_cbranch_scc0 L_qnosw')
        switch_to_wo(a, (Q_T[0], Q_T[1]))
        a.label('L_qnosw')
    qk_phase(0, True, True, 'even')
    a.i('s_branch L_qloop')
    a.reset()
    a.label('L_qdone')
    INLOOP[0] = False
    if QLAG:
        for x in dma_unit(8192 + 3 * 2048, True):
            a.i(x)
    qk_phase(0, False, True, 'p16')
    ad4, adw, t5 = Q_T[0], Q_T[1], Q_T[3]
    a.i('v_and_b32 %s, 15, %s' % (vr(ad4), vr(V_LANE)))
    a.i('v_lshlrev_b32 %s, 7, %s' % (vr(ad4), vr(ad4)))
    a.i('s_lshl_b32 %s, %s, 2' % (sr(S_T0), sr(S_W)))
    a.i('s_add_u32 %s, %s, %d' % (sr(S_T0), sr(S_T0), RM))
    a.i('v_add_u32 %s, %s, %s' % (vr(ad4), sr(S_T0), vr(ad4)))
    a.i('v_bfe_u32 %s, %s, 4, 1' % (vr(adw), vr(V_LANE)))
    a.i('v_lshlrev_b32 %s, 5, %s' % (vr(adw), vr(adw)))
    a.i('v_lshrrev_b32 %s, 5, %s' % (vr(t5), vr(V_LANE)))
    a.i('v_lshlrev_b32 %s, 4, %s' % (vr(t5), vr(t5)))
    a.i('v_add3_u32 %s, %s, %s, %s' % (vr(adw), vr(adw), vr(t5), vr(ad4)))
    L = [Q_L + i for i in range(5)]
    a.i('v_permlane32_swap_b32 %s, %s' % (vr(L[0]), vr(L[1])))
    a.i('v_permlane32_swap_b32 %s, %s' % (vr(L[2]), vr(L[3])))
    a.i('v_add_f32 %s, %s, %s' % (vr(L[0]), vr(L[0]), vr(L[1])))
    a.i('v_add_f32 %s, %s, %s' % (vr(L[2]), vr(L[2]), vr(L[3])))
    xreduce(a, 'v_add_f32', L[4], t5)
    a.i('v_permlane16_swap_b32 %s, %s' % (vr(L[0]), vr(L[2])))
    a.i('v_add_f32 %s, %s, %s' % (vr(L[0]), vr(L[0]), vr(L[2])))
    a.i('ds_write_b32 %s, %s offset:64' % (vr(ad4), vr(L[4])))
    a.i('ds_write_b32 %s, %s' % (vr(adw), vr(L[0])))
    a.i('s_waitcnt lgkmcnt(0)')
    addr_T_read(a, G_TA, (G_T[0], G_T[1]), S_RING)
    addr_U_read(a, G_UB, (G_T[0], G_T[1]), base_imm=OB)
    for k in range(20):
        for r in range(4):
            a.i('v_mov_b32 %s, 0' % vr(ACC_W(k // 5, k % 5) + r))
    a.i('s_waitcnt vmcnt(0)')
    barrier(a)
    barrier(a)
    a.i('s_cmp_eq_u32 %s, 3' % sr(S_W))
    a.i('s_cbranch_scc0 L_oproj')
    if flag('sbar'):
        a.i('s_barrier')
    a.i('s_branch %s' % ('L_pub' if flag('fused') else 'L_fin'))
    a.reset()
    for tag, par in q_setf:
        a.label('L_qsetf_%s' % tag)
        a.i('s_add_u32 %s, %s, 1' % (sr(S_T0), sr(S_P)))
        a.i('v_mov_b32 %s, %s' % (vr(Q_T[5]), sr(S_T0)))
        a.i('ds_write_b32 %s, %s offset:%d' % (vr(Q_FLA), vr(Q_T[5]), par * 4))
        a.i('s_branch L_qsetj_%s' % tag)
        a.reset()
    for tag, par, has_cur in q_rare:
        pp = 1 - par
        a.label('L_qrare_%s' % tag)
        a.fence(10)
        ad, t0, mx = Q_T[1], Q_T[0], Q_T[6]
        a.i('v_and_b32 %s, 15, %s' % (vr(ad), vr(V_LANE)))
        a.i('v_lshlrev_b32 %s, 5, %s' % (vr(ad), vr(ad)))
        a.i('v_add_u32 %s, %d, %s' % (vr(ad), SM, vr(ad)))
        a.i('s_lshl_b32 %s, %s, 9' % (sr(S_T0), sr(S_W)))
        a.i('v_add_u32 %s, %s, %s' % (vr(Q_T[3]), sr(S_T0), vr(ad)))
        for i in range(5):
            S = Q_S(pp, i)
            a.i('v_max3_f32 %s, %s, %s, %s' % (vr(mx), vr(S), vr(S + 1), vr(S + 2)))
            a.i('v_max_f32 %s, %s, %s' % (vr(mx), vr(mx), vr(S + 3)))
            xreduce(a, 'v_max_f32', mx, t0)
            a.i('ds_write_b32 %s, %s offset:%d' % (vr(Q_T[3]), vr(mx), RM - SM + 4 * i))
        a.i('s_waitcnt lgkmcnt(0)')
        a.i('s_barrier')
        for i in range(5):
            r4 = [Q_T[3], Q_T[4], Q_T[5], Q_T[0]]
            for w in range(4):
                a.i('ds_read_b32 %s, %s offset:%d' % (vr(r4[w]), vr(ad), RM - SM + w * 512 + 4 * i))
            a.i('v_max3_f32 %s, %s, %s, %s' % (vr(mx), vr(r4[0]), vr(r4[1]), vr(r4[2])))
            a.i('v_max3_f32 %s, %s, %s, %s' % (vr(mx), vr(mx), vr(r4[3]), 0))
            for r in range(4):
                a.i('v_sub_f32 %s, %s, %s' % (vr(Q_S(pp, i) + r), vr(Q_S(pp, i) + r), vr(mx)))
                if has_cur:
                    a.i('v_sub_f32 %s, %s, %s' % (vr(Q_S(par, i) + r), vr(Q_S(par, i) + r), vr(mx)))
                a.i('v_sub_f32 %s, %s, %s' % (vr(Q_MQ(i) + r), vr(Q_MQ(i) + r), vr(mx)))
            a.i('v_exp_f32 %s, -%s' % (vr(t0), vr(mx)))
            a.i('v_mul_f32 %s, %s, %s' % (vr(Q_L + i), vr(Q_L + i), vr(t0)))
            a.i('ds_write_b32 %s, %s offset:%d' % (vr(ad), vr(t0), AL - SM + pp * 512 + 4 * i))
        a.i('s_waitcnt lgkmcnt(0)')
        a.fence(4)
        a.i('s_branch L_qjoin_%s' % tag)
        a.reset()

    a.label('L_pv')
    ROLE[0] = 'p'
    GT = (G_T[0], G_T[1])
    addr_T_read(a, G_TA, GT)
    a.i('v_mov_b32 %s, %s' % (vr(G_T[2]), vr(G_TA[0])))
    addr_U_read(a, G_UB, GT)
    a.i('v_mov_b32 %s, %s' % (vr(G_T[3]), vr(G_UB[0])))
    for k in range(80):
        a.i('v_mov_b32 %s, 0' % vr(176 + k))
    a.i('s_waitcnt lgkmcnt(0)')
    stamp_init(a)
    common_srds()
    build_srd(a, SRD_ST, S_V, S_T2, 524288)
    a.i('s_add_u32 %s, %s, 3' % (sr(S_CG), sr(S_W)))
    if flag('fused'):
        a.i('s_mul_i32 %s, %s, 4352' % (sr(S_T0), sr(S_GRP)))
        a.i('s_add_u32 %s, %s, %d' % (sr(S_T0), sr(S_T0), FLAG_BASE))
        build_srd(a, SRD_FG, S_WS, S_T0, 64)
        a.i('s_mov_b32 %s, 0' % sr(S_CLR))
        a.i('s_cmp_lg_u32 %s, 7' % sr(S_WAVE))
        a.i('s_cbranch_scc1 L_noclr')
        a.i('s_mov_b32 s36, %s' % sr(S_DBG))
        a.i('s_mov_b32 s37, %s' % sr(S_DBG + 1))
        a.i('s_mov_b32 s38, 256')
        a.i('s_mov_b32 s39, 0x20000')
        a.i('v_lshlrev_b32 %s, 8, %s' % (vr(G_AL), vr(V_LANE)))
        a.i('v_mov_b32 %s, 0' % vr(G_AL + 1))
        a.i('s_lshl_b32 %s, %s, 2' % (sr(S_T0), sr(S_H)))
        a.i('buffer_store_dword %s, %s, %s, %s offen sc1' % (vr(G_AL + 1), vr(G_AL), sr(SRD_FG, 4), sr(S_T0)))
        a.i('s_lshl_b32 %s, 1, %s' % (sr(S_T0), sr(S_H)))
        a.i('v_mov_b32 %s, %s' % (vr(G_AL + 2), sr(S_T0)))
        a.i('s_lshl_b32 %s, %s, 4' % (sr(S_T0), sr(S_GRP)))
        a.i('s_waitcnt vmcnt(0)')
        a.i('buffer_atomic_or %s, %s, s[36:39], %s offen sc1' % (vr(G_AL + 2), vr(G_AL), sr(S_T0)))
        a.label('L_noclr')
    if flag('tlbw'):
        a.i('s_add_u32 s96, %s, %s' % (sr(S_K), sr(S_T2)))
        a.i('s_addc_u32 s97, %s, 0' % sr(S_K + 1))
        a.i('s_load_dword s98, s[96:97], 0')
        a.i('s_load_dword s98, %s, 0' % sr(SRD_ST, 2))
        a.i('s_load_dword s98, %s, 0' % sr(SRD_WO, 2))
        a.i('s_load_dword s98, %s, 0' % sr(SRD_PO, 2))
        a.i('s_load_dword s98, %s, 0' % sr(S_OUT, 2))
        a.i('s_load_dword s98, %s, 0x100000' % sr(S_OUT, 2))
        a.i('s_mul_i32 %s, %s, %d' % (sr(S_T0), sr(S_GRP), 16 * 71680))
        a.i('s_add_u32 s96, %s, %s' % (sr(S_WS), sr(S_T0)))
        a.i('s_addc_u32 s97, %s, 0' % sr(S_WS + 1))
        a.i('s_load_dword s98, s[96:97], 0')
        a.i('s_load_dword s98, s[96:97], 0xffffc')
        a.lds = []
    if flag('pfwo'):
        a.i('s_lshl_b32 %s, %s, 2' % (sr(S_T0), sr(S_GRP)))
        a.i('s_add_u32 %s, %s, %s' % (sr(S_T0), sr(S_T0), sr(S_W)))
        a.i('s_mul_i32 %s, %s, %d' % (sr(S_PFO), sr(S_T0), 28 * 128))
    PFD = int(opt('pf', 0))
    if PFD:
        a.i('s_cmp_lt_u32 %s, 2' % sr(S_W))
        a.i('s_cselect_b32 %s, %s, %s' % (sr(S_T0), sr(S_K), sr(S_V)))
        a.i('s_cselect_b32 %s, %s, %s' % (sr(S_T1), sr(S_K + 1), sr(S_V + 1)))
        a.i('s_add_u32 %s, %s, %s' % (sr(SRD_PF), sr(S_T0), sr(S_T2)))
        a.i('s_addc_u32 %s, %s, 0' % (sr(SRD_PF + 1), sr(S_T1)))
        a.i('s_mov_b32 %s, 524288' % sr(SRD_PF + 2))
        a.i('s_mov_b32 %s, 0x20000' % sr(SRD_PF + 3))
        a.i('s_bfe_u32 %s, s2, 0x20003' % sr(S_T0))
        a.i('s_lshl_b32 %s, %s, 1' % (sr(S_T0), sr(S_T0)))
        a.i('s_and_b32 %s, %s, 1' % (sr(S_T1), sr(S_W)))
        a.i('s_add_u32 %s, %s, %s' % (sr(S_T0), sr(S_T0), sr(S_T1)))
        a.i('s_lshl_b32 %s, %s, 13' % (sr(S_PFO), sr(S_T0)))
        a.i('v_lshlrev_b32 %s, 7, %s' % (vr(G_AL + 4), vr(V_LANE)))
        for j in range(PFD):
            a.i('buffer_load_dword %s, %s, %s, %s offen' % (vr(G_AL + 3), vr(G_AL + 4), sr(SRD_PF, 4), sr(S_PFO)))
            a.i('s_add_u32 %s, %s, 65536' % (sr(S_PFO), sr(S_PFO)))
    a.i('s_mov_b32 %s, %s' % (sr(S_C), f32hex(CSCALE)))
    a.i('s_mov_b32 %s, %s' % (sr(S_C + 1), f32hex(CSCALE)))
    a.i('s_lshl_b32 %s, %s, 13' % (sr(S_T0), sr(S_W)))
    a.i('s_add_u32 %s, %s, %d' % (sr(S_WCUR), sr(S_T0), WSLOT[0]))
    a.i('s_add_u32 %s, %s, %d' % (sr(S_WN1), sr(S_T0), WSLOT[1]))
    a.i('s_add_u32 %s, %s, %d' % (sr(S_WN2), sr(S_T0), WSLOT[2]))
    a.i('s_mov_b32 %s, %d' % (sr(S_XCUR), XSLOT[0]))
    a.i('s_mov_b32 %s, %d' % (sr(S_XN1), XSLOT[1]))
    a.i('s_mov_b32 %s, %d' % (sr(S_XN2), XSLOT[2]))
    a.i('s_mov_b32 %s, 0' % sr(S_P))

    def q_addr_update():
        out = ['v_add_u32 %s, %s, %s' % (vr(G_TA[0]), sr(S_WCUR), vr(G_T[2])),
               'v_add_u32 %s, %s, %s' % (vr(G_UB[0]), sr(S_XCUR), vr(G_T[3]))]
        for k in (1, 2, 3):
            out.append('v_xor_b32 %s, %d, %s' % (vr(G_TA[k]), 32 * k, vr(G_TA[0])))
        out.append('v_xor_b32 %s, 64, %s' % (vr(G_UB[1]), vr(G_UB[0])))
        out += ['s_mov_b32 %s, %s' % (sr(S_T0), sr(S_WCUR)), 's_mov_b32 %s, %s' % (sr(S_WCUR), sr(S_WN1)),
                's_mov_b32 %s, %s' % (sr(S_WN1), sr(S_WN2)), 's_mov_b32 %s, %s' % (sr(S_WN2), sr(S_T0)),
                's_mov_b32 %s, %s' % (sr(S_T0), sr(S_XCUR)), 's_mov_b32 %s, %s' % (sr(S_XCUR), sr(S_XN1)),
                's_mov_b32 %s, %s' % (sr(S_XN1), sr(S_XN2)), 's_mov_b32 %s, %s' % (sr(S_XN2), sr(S_T0))]
        return out

    XI = lambda i: i * 2048
    for x in q_addr_update():
        a.i(x)
    if flag('tlbw') and not flag('tlbnw'):
        a.i('s_waitcnt lgkmcnt(0)')
    barrier(a)
    A0 = a_reads(0, 0)
    for x in A0[0:2] + b_reads(0, XI) + A0[2:]:
        a.i(x)
    a.label('L_qproj')
    fill = {}
    spread(fill, b_reads(1, XI) + a_reads(1, 4096), 1, 8)
    spread(fill, q_addr_update(), 12, 19)
    run_stream(a, half_mfmas(a, ACC_O, 0), fill)
    a.i('s_waitcnt lgkmcnt(0)')
    barrier(a)
    fill = {}
    A0 = a_reads(0, 0)
    spread(fill, A0[0:2] + b_reads(0, XI) + A0[2:], 0, 9)
    fill.setdefault(17, []).extend(['s_add_u32 %s, %s, 1' % (sr(S_P), sr(S_P)), 's_cmp_lt_u32 %s, 7' % sr(S_P)])
    run_stream(a, half_mfmas(a, ACC_O, 1), fill)
    a.i('s_cbranch_scc1 L_qproj')
    a.i('s_waitcnt lgkmcnt(0)')

    WA = [G_T[4], G_T[5], G_T[6], G_T[0]]

    def write_D_addr():
        return ['v_xor_b32 %s, %d, %s' % (vr(WA[ai]), 32 * ai, vr(G_T[4])) for ai in range(1, 4)]

    def write_D_ops(acc, ai, i, imm, scale):
        R = acc(ai, i)
        return ['v_pk_mul_f32 %s, %s, %s' % (vr(R, 2), vr(R, 2), scale),
                'v_pk_mul_f32 %s, %s, %s' % (vr(R + 2, 2), vr(R + 2, 2), scale),
                'v_cvt_pk_bf16_f32 %s, %s, %s' % (vr(R), vr(R), vr(R + 1)),
                'v_cvt_pk_bf16_f32 %s, %s, %s' % (vr(R + 1), vr(R + 2), vr(R + 3)),
                'ds_write_b64 %s, %s offset:%d' % (vr(WA[ai]), vr(R, 2), imm)]

    def write_D(acc, base_imm_of_i, scale):
        for x in write_D_addr():
            a.i(x)
        for ai in range(4):
            for i in range(5):
                for x in write_D_ops(acc, ai, i, base_imm_of_i(i), scale(i)):
                    a.i(x)
        a.i('s_waitcnt lgkmcnt(0)')

    addr_D_write(a, G_T[4], GT)
    a.i('s_lshl_b32 %s, %s, 11' % (sr(S_T0), sr(S_W)))
    a.i('v_add_u32 %s, %s, %s' % (vr(G_T[4]), sr(S_T0), vr(G_T[4])))
    a.i('v_mov_b32 %s, %d' % (vr(G_FLA), FL))
    a.i('v_mov_b32 %s, 0' % vr(G_AL))
    a.i('v_mov_b32 %s, 0' % vr(G_AL + 1))
    a.i('ds_write_b64 %s, %s' % (vr(G_FLA), vr(G_AL, 2)))
    write_D(ACC_O, lambda i: QB + i * 8192, lambda i: sr(S_C, 2))
    barrier(a)
    if flag('fused'):
        a.i('s_cmp_lg_u32 %s, 7' % sr(S_WAVE))
        a.i('s_cbranch_scc1 L_noclr2')
        a.i('v_lshlrev_b32 %s, 8, %s' % (vr(G_AL), vr(V_LANE)))
        a.i('s_lshl_b32 %s, %s, 4' % (sr(S_T0), sr(S_GRP)))
        a.i('buffer_load_dword %s, %s, s[36:39], %s offen sc1' % (vr(G_AL + 4), vr(G_AL), sr(S_T0)))
        a.label('L_noclr2')
    pat_T(a, V_PAT, GT, 512)
    a.i('s_lshl_b32 %s, %s, 7' % (sr(S_WBASE), sr(S_W)))
    seq_init(a)
    a.i('s_mov_b32 %s, 8192' % sr(S_STEPU))
    a.i('s_lshl_b32 %s, %s, 14' % (sr(S_RING), sr(S_W)))
    a.i('v_add_u32 %s, %s, %s' % (vr(G_TA[0]), sr(S_RING), vr(G_T[2])))
    for k in (1, 2, 3):
        a.i('v_xor_b32 %s, %d, %s' % (vr(G_TA[k]), 32 * k, vr(G_TA[0])))
    a.i('v_add_u32 %s, %d, %s' % (vr(G_UB[0]), PB, vr(G_T[3])))
    a.i('v_xor_b32 %s, 64, %s' % (vr(G_UB[1]), vr(G_UB[0])))
    a.i('v_and_b32 %s, 15, %s' % (vr(G_ALA), vr(V_LANE)))
    a.i('v_lshlrev_b32 %s, 5, %s' % (vr(G_ALA), vr(G_ALA)))
    a.i('v_add_u32 %s, %d, %s' % (vr(G_ALA), SM, vr(G_ALA)))
    for k in range(80):
        a.i('v_mov_b32 %s, 0' % vr(176 + k))
    for k in range(20):
        for r in range(4):
            a.i('v_mov_b32 %s, 0' % vr(ACC_W(k // 5, k % 5) + r))
    for r in range(20):
        a.i('v_mov_b32 %s, 0' % vr(G_BF(1, 0) + r))
    for r in range(16):
        a.i('v_mov_b32 %s, 0' % vr(G_AF(1, 0) + r))
    a.i('s_mov_b32 %s, 0' % sr(S_PEND))
    barrier(a)
    for k in range(6):
        for x in dma_unit(k * 2048, False):
            a.i(x)
    if flag('fused'):
        a.i('s_waitcnt vmcnt(12)')
        a.i('v_readfirstlane_b32 %s, %s' % (sr(S_CLR), vr(G_AL + 4)))
    barrier(a)
    a.i('s_mov_b32 %s, 2' % sr(S_P))

    pv_rare = []
    pv_sync = []

    def gemm_phase(par, acc, bimm, vm, refill, tag=None, bar=True, part1_mfma=True, reads=True):
        fill = {}
        if reads:
            pre = []
            if tag is not None:
                pre.append('ds_read_b32 %s, %s offset:%d' % (vr(G_T[6]), vr(G_FLA), (1 - par) * 4))
            pre += b_reads(0, bimm)
            pre.append('s_waitcnt vmcnt(%d)' % vm[0])
            pre += a_reads(0, par * 8192)
            if part1_mfma:
                spread(fill, pre, 0, 9)
            else:
                fill[-1] = pre
        if tag is not None:
            def br():
                a.i('v_cmp_eq_u32 vcc, %s, %s' % (sr(S_P), vr(G_T[6])))
                a.i('s_cbranch_vccnz L_p%s_%s' % ('syncj' if flag('norare') else 'sync', tag))
                a.label('L_psyncj_%s' % tag)
            fill.setdefault(6, []).append(br)
            pv_sync.append(tag)
        if refill[0]:
            place_dma(fill, (1 - par) * 8192 + 4096, False, PD[0], PD[1])
            place_dma(fill, (1 - par) * 8192 + 6144, True, PD[2], PD[3])
        run_stream(a, half_mfmas(a, acc, 1) if part1_mfma else [], fill)
        if not reads:
            return
        if tag is not None:
            a.i('s_cmp_lg_u32 %s, 0' % sr(S_PEND))
            a.i('s_cbranch_scc1 L_prare_%s' % tag)
            a.label('L_pjoin_%s' % tag)
            a.i('s_mov_b32 %s, %s' % (sr(S_PEND), sr(S_PEND2)))
            pv_rare.append((tag, par))
            if tag == 'even' and flag('pfwo'):
                a.i('s_cmp_eq_u32 %s, %s' % (sr(S_P), opt('pfwoat', '10')))
                a.i('s_cbranch_scc0 L_pnopf')
                a.i('v_lshlrev_b32 %s, 7, %s' % (vr(G_T[1]), vr(V_LANE)))
                a.i('v_cmp_gt_u32 vcc, 28, %s' % vr(V_LANE))
                a.i('v_mov_b32 %s, 0x7fffffff' % vr(G_T[0]))
                a.i('v_cndmask_b32 %s, %s, %s, vcc' % (vr(G_T[1]), vr(G_T[0]), vr(G_T[1])))
                a.i('buffer_load_dword %s, %s, %s, %s offen' % (vr(G_T[0]), vr(G_T[1]), sr(SRD_WO, 4), sr(S_PFO)))
                a.label('L_pnopf')
            if tag == 'even':
                a.i('s_cmp_eq_u32 %s, 16' % sr(S_P))
                a.i('s_cbranch_scc0 L_pnosw')
                switch_to_wo(a, GT)
                a.label('L_pnosw')
        a.i('s_waitcnt lgkmcnt(0)')
        fill = {}
        spread(fill, b_reads(1, bimm) + ['s_waitcnt vmcnt(%d)' % vm[1]] + a_reads(1, par * 8192 + 4096), 0, 9)
        if refill[1]:
            place_dma(fill, par * 8192, False, PD[4], PD[5])
            place_dma(fill, par * 8192 + 2048, False, PD[6], PD[7])
        if tag is not None:
            fill.setdefault(14, []).extend(['s_add_u32 %s, %s, 1' % (sr(S_P), sr(S_P)), 's_mov_b32 %s, 0' % sr(S_PEND2)])
        if tag == 'even' and PFD and not flag('pfonce'):
            fill.setdefault(5, []).extend([
                'v_lshlrev_b32 %s, 7, %s' % (vr(G_T[1]), vr(V_LANE)),
                'buffer_load_dword %s, %s, %s, %s offen' % (vr(G_T[0]), vr(G_T[1]), sr(SRD_PF, 4), sr(S_PFO)),
                's_add_u32 %s, %s, 65536' % (sr(S_PFO), sr(S_PFO))])
        run_stream(a, half_mfmas(a, acc, 0), fill)
        a.i('s_waitcnt lgkmcnt(0)')
        if bar:
            barrier(a)

    a.i('s_mov_b32 %s, 0' % sr(S_PEND2))
    a.label('L_ploop')
    INLOOP[0] = True
    gemm_phase(0, ACC_O, lambda i: i * 2048, (8, 8), (True, True), 'even')
    gemm_phase(1, ACC_O, lambda i: 10240 + i * 2048, (8, 8), (True, True), 'odd')
    a.i('s_cmp_lt_u32 %s, 18' % sr(S_P))
    a.i('s_cbranch_scc1 L_ploop')
    INLOOP[0] = False
    LT = G_BF(0, 0)
    RI = G_AF(0, 0)
    fill = {}
    pre = ['v_and_b32 %s, 15, %s' % (vr(G_T[1]), vr(V_LANE)),
           'v_lshlrev_b32 %s, 7, %s' % (vr(G_T[1]), vr(G_T[1])),
           'v_add_u32 %s, %d, %s' % (vr(G_T[1]), RM, vr(G_T[1]))]
    pre += ['ds_read_b128 %s, %s offset:%d' % (vr(LT + 4 * i, 4), vr(G_T[1]), 16 * i) for i in range(5)]
    fill[-1] = pre
    place_dma(fill, 8192 + 4096, False, 1, 2)
    place_dma(fill, 8192 + 6144, True, 4, 5)
    fill.setdefault(0, []).append('v_add_u32 %s, %d, %s' % (vr(G_T[4]), OB, vr(G_T[4])))
    fill.setdefault(3, []).extend(write_D_addr())
    rc = []
    for i in range(5):
        R = LT + 4 * i
        rc += ['v_add_f32 %s, %s, %s' % (vr(R), vr(R), vr(R + 1)),
               'v_add_f32 %s, %s, %s' % (vr(R + 2), vr(R + 2), vr(R + 3)),
               'v_add_f32 %s, %s, %s' % (vr(R), vr(R), vr(R + 2)),
               'v_rcp_f32 %s, %s' % (vr(RI + 2 * i), vr(R)),
               'v_rcp_f32 %s, %s' % (vr(RI + 2 * i + 1), vr(R))]
    spread(fill, rc, 5, 10)
    for ai in range(4):
        for i in range(5):
            m = 11 + (ai * 5 + i) * 3 // 5
            fill.setdefault(max(m, ai * 5 + i + 3), []).extend(write_D_ops(ACC_O, ai, i, i * 8192, vr(RI + 2 * i, 2)))
    run_stream(a, half_mfmas(a, ACC_O, 1), fill)
    a.i('s_waitcnt lgkmcnt(0)')
    a.i('v_add_u32 %s, %d, %s' % (vr(G_UB[0]), OB, vr(G_T[3])))
    a.i('v_xor_b32 %s, 64, %s' % (vr(G_UB[1]), vr(G_UB[0])))
    barrier(a)
    a.label('L_oproj')
    a.fence(4)
    OI = lambda tau: (lambda i: (i * 4 + tau) * 2048)
    gemm_phase(0, ACC_W, OI(0), (12, 8), (False, True), None, bar=False, part1_mfma=False)
    gemm_phase(1, ACC_W, OI(1), (8, 8), (True, True), None, bar=False)
    gemm_phase(0, ACC_W, OI(2), (8, 8), (True, False), None, bar=False)
    if flag('sbar'):
        a.i('s_cmp_lt_u32 %s, 4' % sr(S_WAVE))
        a.i('s_cbranch_scc1 L_sb1')
        a.i('s_barrier')
        a.label('L_sb1')
    gemm_phase(1, ACC_W, OI(3), (4, 0), (False, False), None, bar=False)
    gemm_phase(0, ACC_W, None, None, (False, False), None, reads=False)
    stamp(a)
    if flag('sbar'):
        a.i('s_cmp_ge_u32 %s, 4' % sr(S_WAVE))
        a.i('s_cbranch_scc1 L_sb2')
        a.i('s_barrier')
        a.label('L_sb2')
    a.i('v_lshlrev_b32 %s, 4, %s' % (vr(GT[0]), vr(V_LANE)))
    a.i('s_mul_i32 %s, %s, 10240' % (sr(S_T0), sr(S_CG)))
    k = 0
    for i in range(5):
        for ap in range(2):
            R0, R1 = ACC_W(2 * ap, i), ACC_W(2 * ap + 1, i)
            a.i('v_cvt_pk_bf16_f32 %s, %s, %s' % (vr(R0), vr(R0), vr(R0 + 1)))
            a.i('v_cvt_pk_bf16_f32 %s, %s, %s' % (vr(R0 + 1), vr(R0 + 2), vr(R0 + 3)))
            a.i('v_cvt_pk_bf16_f32 %s, %s, %s' % (vr(R0 + 2), vr(R1), vr(R1 + 1)))
            a.i('v_cvt_pk_bf16_f32 %s, %s, %s' % (vr(R0 + 3), vr(R1 + 2), vr(R1 + 3)))
            a.i('buffer_store_dwordx4 %s, %s, %s, %s offen offset:%d%s' % (vr(R0, 4), vr(GT[0]), sr(SRD_PO, 4), sr(S_T0), (k % 4) * 1024, opt('stpol', ' sc1' if flag('fused') else '').replace('_', ' ')))
            k += 1
            if k % 4 == 0:
                a.i('s_add_u32 %s, %s, 4096' % (sr(S_T0), sr(S_T0)))
    if flag('fused'):
        fused_reduce(a)
    a.label('L_fin')
    stamp_flush(a)
    a.label('L_end')
    a.i('s_endpgm')
    a.reset()
    for tag in pv_sync:
        a.label('L_psync_%s' % tag)
        a.i('s_barrier')
        a.i('s_mov_b32 %s, 1' % sr(S_PEND2))
        a.i('s_branch L_psyncj_%s' % tag)
        a.reset()
    for tag, par in pv_rare:
        a.label('L_prare_%s' % tag)
        a.i('ds_read_b128 %s, %s offset:%d' % (vr(G_AL, 4), vr(G_ALA), AL - SM + par * 512))
        a.i('ds_read_b32 %s, %s offset:%d' % (vr(G_AL + 4), vr(G_ALA), AL - SM + par * 512 + 16))
        a.i('s_waitcnt lgkmcnt(0)')
        a.fence(10)
        for ai in range(4):
            for i in range(5):
                for r in range(4):
                    R = ACC_O(ai, i) + r
                    a.i('v_mul_f32 %s, %s, %s' % (vr(R), vr(R), vr(G_AL + i)))
        a.fence(4)
        a.i('s_branch L_pjoin_%s' % tag)
        a.reset()


from gen import gen_reduce, HEADER, kd


def main():
    out = ARGS[0] if ARGS and not ARGS[0].startswith('--') else 'standalone__gqa_block_cached__near_ridge.s'
    a = Asm()
    gen_main(a, 'standalone__gqa_block_cached__near_ridge_kernel')
    if flag('fused'):
        hdr = '\n'.join(l for l in HEADER.split('\n') if 'gqa_reduce_kernel' not in l).replace('kernel=standalone__gqa_block_cached__near_ridge_kernel ', '')
        txt = hdr + a.text() + '.section .rodata,"a"\n.p2align 6\n' + kd('standalone__gqa_block_cached__near_ridge_kernel', 256, 100)
    else:
        gen_reduce(a, 'gqa_reduce_kernel')
        txt = HEADER + a.text() + '.section .rodata,"a"\n.p2align 6\n' + \
            kd('standalone__gqa_block_cached__near_ridge_kernel', 256, 100) + '.p2align 6\n' + kd('gqa_reduce_kernel', 80, 32)
    open(out, 'w').write(txt)
    print('wrote', out, a.nins, 'instructions')


if __name__ == '__main__':
    main()
```

```python
import struct, sys, math
from asmlib import Asm, vr, sr

ARGS = sys.argv[1:]
def opt(name, default=None):
    for x in ARGS:
        if x.startswith('--' + name + '='):
            return x.split('=', 1)[1]
    return default
def flag(name):
    return ('--' + name) in ARGS

K1 = 1024
SLOT = 32 * K1
VR0 = 64 * K1
PB = 128 * K1
SM = 152 * K1
FL = SM
AL = SM + 512
RM = SM + 1536
MW = SM + 4100
OB_HI = 128 * K1
OB_LO = 24 * K1
WSLOT = [96 * K1, 64 * K1, 32 * K1]
XSLOT = [128 * K1, 138 * K1, 148 * K1]
QB = 96 * K1
LDS_BYTES = 160 * K1
FLAG_BASE = 64 << 20


def f32hex(x):
    return '0x%08x' % struct.unpack('<I', struct.pack('<f', x))[0]


CSCALE = math.log2(math.e) / 16.0
THR = 8.0

S_X, S_K, S_V, S_WQ, S_WO, S_OUT, S_DBG, S_WS = 4, 6, 8, 10, 12, 14, 16, 18
S_WAVE, S_W, S_B, S_HKV, S_H, S_GRP = 20, 21, 22, 23, 24, 25
S_T0, S_T1, S_T2, S_T3 = 26, 27, 28, 29
S_C = 30
SRD_ST, SRD_WQ, SRD_X, SRD_WO, SRD_PO = 32, 36, 40, 44, 48
S_SOFF, S_STEPU, S_TSTR, S_RING, S_P, S_WBASE = 52, 53, 54, 55, 56, 57
S_CG = 58
S_XL = [59, 60, 61]
S_XG = [62, 63, 64]
S_WCUR, S_WN1, S_WN2, S_XCUR, S_XN1, S_XN2 = 65, 66, 67, 68, 69, 70
S_WQOFF = 71
S_PEND, S_PEND2, S_PFO, S_V0OFF = 80, 81, 82, 83
SRD_AUX = 84
S_SEQ = 90
SRD_FG = 92

V_LANE = 1
G_TA = [2, 3, 4, 5]
G_UB = [6, 7]
V_PAT = [8, 9]
G_FLA = 10
G_ALA = 11
G_AL = 12
G_UB2 = [12, 13]
G_T = [17, 18, 19, 20, 21, 22, 23]
G_BF = lambda e, i: 72 + e * 20 + i * 4
G_AF = lambda e, a: 112 + e * 16 + a * 4
ACC_O = lambda a, i: 176 + (a * 5 + i) * 4


def ACC_W(a, i):
    k = a * 5 + i
    return 144 + k * 4 if k < 8 else 24 + (k - 8) * 4


Q_UA = [2, 3]
Q_PWA = 4
Q_FLA = 5
Q_T = [6, 7, 18, 16, 17, 18, 19]
Q_PWA2 = 10
Q_L = 11
Q_MQ = lambda i: 20 + 4 * i
Q_KF = lambda k: 40 + k * 4
Q_S = lambda par, i: 56 + par * 20 + i * 4
Q_Q = lambda i, s: 96 + (i * 8 + s) * 4

MFMA = 'v_mfma_f32_16x16x32_bf16'
STAMPS = flag('stamps')
ROLE = ['q']
PD = [int(x) for x in opt('pdma', '10,13,16,19,10,13,16,19').split(',')]
QD = [int(x) for x in opt('qdma', '3,8,16,21,26,29,33,37').split(',')]


def stamp(a):
    if not STAMPS:
        return
    a.i('s_memrealtime s[72:73]' if flag('rt') else 's_memtime s[72:73]')
    a.i('s_waitcnt lgkmcnt(0)')
    a.i('s_mov_b32 m0, s74')
    a.i('s_nop 0')
    a.i('v_writelane_b32 v0, s72, m0')
    a.i('s_add_u32 s74, s74, 1')


def barrier(a):
    if flag('pre'):
        stamp(a)
    a.i('s_barrier')
    stamp(a)


def stamp_init(a):
    if not STAMPS:
        return
    a.i('s_mov_b32 s74, 0')
    a.i('s_lshl_b32 s75, s2, 3')
    a.i('s_add_u32 s75, s75, %s' % sr(S_WAVE))
    a.i('s_lshl_b32 s75, s75, 8')
    a.i('s_add_u32 s75, s75, %d' % (128 << 20))
    a.i('s_add_u32 s76, %s, s75' % sr(S_WS))
    a.i('s_addc_u32 s77, %s, 0' % sr(S_WS + 1))
    a.i('s_mov_b32 s78, 256')
    a.i('s_mov_b32 s79, 0x20000')
    a.i('v_mov_b32 v0, 0')
    a.i('s_memrealtime s[72:73]')
    a.i('s_waitcnt lgkmcnt(0)')
    a.i('v_writelane_b32 v0, s72, 62')
    stamp(a)


def stamp_flush(a):
    if not STAMPS:
        return
    a.i('s_waitcnt vmcnt(0)')
    stamp(a)
    a.i('s_memrealtime s[72:73]')
    a.i('s_waitcnt lgkmcnt(0)')
    a.i('v_writelane_b32 v0, s72, 63')
    a.i('v_lshlrev_b32 v2, 2, %s' % vr(V_LANE))
    a.i('buffer_store_dword v0, v2, s[76:79], 0 offen')


def mfma(a, d, A, B, c=None):
    a.i('%s %s, %s, %s, %s' % (MFMA, vr(d, 4), vr(A, 4), vr(B, 4), vr(d, 4) if c is None else c))


def build_srd(a, srd, ptr, off_sgpr, nrec):
    if off_sgpr is None:
        a.i('s_mov_b32 %s, %s' % (sr(srd), sr(ptr)))
        a.i('s_mov_b32 %s, %s' % (sr(srd + 1), sr(ptr + 1)))
    else:
        a.i('s_add_u32 %s, %s, %s' % (sr(srd), sr(ptr), sr(off_sgpr)))
        a.i('s_addc_u32 %s, %s, 0' % (sr(srd + 1), sr(ptr + 1)))
    a.i('s_mov_b32 %s, %s' % (sr(srd + 2), nrec))
    a.i('s_mov_b32 %s, 0x20000' % sr(srd + 3))


def pat_U(a, dst, tmp, R, sub=True):
    t0, t1 = tmp
    a.i('v_lshrrev_b32 %s, 3, %s' % (vr(t1), vr(V_LANE)))
    a.i('v_and_b32 %s, 7, %s' % (vr(t0), vr(V_LANE)))
    a.i('v_xor_b32 %s, %s, %s' % (vr(t0), vr(t0), vr(t1)))
    a.i('v_lshlrev_b32 %s, 4, %s' % (vr(t0), vr(t0)))
    a.i('v_mul_u32_u24 %s, %d, %s' % (vr(t1), R, vr(t1)))
    a.i('v_add_u32 %s, %s, %s' % (vr(dst[0]), vr(t0), vr(t1)))
    a.i('v_add_u32 %s, %d, %s' % (vr(dst[1]), 8 * R - (1024 if sub else 0), vr(dst[0])))


def pat_T(a, dst, tmp, R):
    t0, t1 = tmp
    a.i('v_lshrrev_b32 %s, 3, %s' % (vr(t0), vr(V_LANE)))
    a.i('v_and_b32 %s, 2, %s' % (vr(t0), vr(t0)))
    a.i('v_and_b32 %s, 7, %s' % (vr(t1), vr(V_LANE)))
    a.i('v_xor_b32 %s, %s, %s' % (vr(t0), vr(t0), vr(t1)))
    a.i('v_lshlrev_b32 %s, 4, %s' % (vr(t0), vr(t0)))
    a.i('v_lshrrev_b32 %s, 3, %s' % (vr(t1), vr(V_LANE)))
    a.i('v_mul_u32_u24 %s, %d, %s' % (vr(t1), R, vr(t1)))
    a.i('v_add_u32 %s, %s, %s' % (vr(dst[0]), vr(t0), vr(t1)))
    a.i('v_xor_b32 %s, 64, %s' % (vr(t0), vr(t0)))
    a.i('v_add_u32 %s, %s, %s' % (vr(dst[1]), vr(t0), vr(t1)))
    a.i('v_add_u32 %s, %d, %s' % (vr(dst[1]), 8 * R - 1024, vr(dst[1])))


def addr_U_read(a, dst, tmp):
    t0, t1 = tmp
    a.i('v_and_b32 %s, 15, %s' % (vr(t0), vr(V_LANE)))
    a.i('v_and_b32 %s, 7, %s' % (vr(t1), vr(V_LANE)))
    a.i('v_lshlrev_b32 %s, 7, %s' % (vr(t0), vr(t0)))
    a.i('v_lshrrev_b32 %s, 4, %s' % (vr(dst[0]), vr(V_LANE)))
    a.i('v_xor_b32 %s, %s, %s' % (vr(t1), vr(t1), vr(dst[0])))
    a.i('v_lshlrev_b32 %s, 4, %s' % (vr(t1), vr(t1)))
    a.i('v_add_u32 %s, %s, %s' % (vr(dst[0]), vr(t0), vr(t1)))
    a.i('v_xor_b32 %s, 64, %s' % (vr(dst[1]), vr(dst[0])))


def addr_T_read(a, dst, tmp):
    t0, t1 = tmp
    a.i('v_lshrrev_b32 %s, 4, %s' % (vr(t0), vr(V_LANE)))
    a.i('v_lshlrev_b32 %s, 10, %s' % (vr(t0), vr(t0)))
    a.i('v_bfe_u32 %s, %s, 2, 2' % (vr(t1), vr(V_LANE)))
    a.i('v_lshlrev_b32 %s, 7, %s' % (vr(t1), vr(t1)))
    a.i('v_add_u32 %s, %s, %s' % (vr(t0), vr(t0), vr(t1)))
    a.i('v_and_b32 %s, 3, %s' % (vr(t1), vr(V_LANE)))
    a.i('v_lshlrev_b32 %s, 3, %s' % (vr(t1), vr(t1)))
    a.i('v_add_u32 %s, %s, %s' % (vr(t0), vr(t0), vr(t1)))
    a.i('v_bfe_u32 %s, %s, 3, 2' % (vr(t1), vr(V_LANE)))
    a.i('v_lshlrev_b32 %s, 5, %s' % (vr(t1), vr(t1)))
    a.i('v_add_u32 %s, %s, %s' % (vr(dst), vr(t0), vr(t1)))


def set_TA(base_sgpr, lane_v):
    out = ['v_add_u32 %s, %s, %s' % (vr(G_TA[0]), sr(base_sgpr), vr(lane_v))]
    for k in (1, 2, 3):
        out.append('v_xor_b32 %s, %d, %s' % (vr(G_TA[k]), 32 * k, vr(G_TA[0])))
    return out


def next_tile():
    return ['s_and_b32 %s, %s, 15' % (sr(S_SOFF), sr(S_SEQ)),
            's_lshr_b64 %s, %s, 4' % (sr(S_SEQ, 2), sr(S_SEQ, 2)),
            's_mul_i32 %s, %s, %s' % (sr(S_SOFF), sr(S_SOFF), sr(S_TSTR)),
            's_add_u32 %s, %s, %s' % (sr(S_SOFF), sr(S_SOFF), sr(S_WBASE))]


def dma_unit(par, u):
    if flag('nodma'):
        return ['s_nop 0'] * 4
    return [
        's_add_u32 m0, %s, %d' % (sr(S_RING), par * SLOT + u * 2048),
        'buffer_load_dwordx4 %s, %s, %s offen lds' % (vr(V_PAT[0]), sr(SRD_ST, 4), sr(S_SOFF)),
        'buffer_load_dwordx4 %s, %s, %s offen offset:1024 lds' % (vr(V_PAT[1]), sr(SRD_ST, 4), sr(S_SOFF)),
    ] + (next_tile() if u == 3 else ['s_add_u32 %s, %s, %s' % (sr(S_SOFF), sr(S_SOFF), sr(S_STEPU))])


def place_dma(fill, par, u, m_a, m_b):
    d = dma_unit(par, u)
    fill.setdefault(m_a - 1, []).append(d[0])
    fill.setdefault(m_a, []).append(d[1])
    fill.setdefault(m_b, []).extend(d[2:])


def seq_init(a):
    a.i('s_bfe_u32 %s, s2, 0x20003' % sr(S_T0))
    a.i('s_lshl_b32 %s, %s, 2' % (sr(S_T0), sr(S_T0)))
    a.i('s_lshr_b32 %s, 0x32103210, %s' % (sr(S_T0), sr(S_T0)))
    a.i('s_and_b32 %s, %s, 0xffff' % (sr(S_T0), sr(S_T0)))
    a.i('s_mul_i32 %s, %s, 0x10001' % (sr(S_T0), sr(S_T0)))
    a.i('s_add_u32 %s, %s, 0x44440000' % (sr(S_SEQ), sr(S_T0)))
    a.i('s_add_u32 %s, %s, 0xcccc8888' % (sr(S_SEQ + 1), sr(S_T0)))
    if not flag('nooff'):
        a.i('s_and_b32 %s, %s, 3' % (sr(S_T0), sr(S_B)))
        a.i('s_lshl_b32 %s, %s, 2' % (sr(S_T0), sr(S_T0)))
        a.i('s_sub_u32 %s, 32, %s' % (sr(S_T1), sr(S_T0)))
        a.i('s_mov_b32 s88, 0')
        a.i('s_mov_b32 s89, %s' % sr(S_SEQ))
        a.i('s_lshl_b64 s[88:89], s[88:89], %s' % sr(S_T1))
        a.i('s_lshr_b64 %s, %s, %s' % (sr(S_SEQ, 2), sr(S_SEQ, 2), sr(S_T0)))
        a.i('s_or_b32 %s, %s, s89' % (sr(S_SEQ + 1), sr(S_SEQ + 1)))
    a.i('s_mov_b32 %s, 32768' % sr(S_TSTR))


def switch_to_wo(a, tmp):
    for k in range(3):
        a.i('s_mov_b32 %s, %s' % (sr(SRD_ST + k), sr(SRD_WO + k)))
    a.i('s_lshl_b32 %s, %s, 7' % (sr(S_SOFF), sr(S_CG)))
    a.i('s_mov_b32 %s, %s' % (sr(S_WBASE), sr(S_SOFF)))
    a.i('s_mov_b32 %s, %d' % (sr(S_STEPU), 16 * 896))
    a.i('s_mov_b32 %s, %d' % (sr(S_TSTR), 64 * 896))
    a.i('s_mov_b32 %s, 0x4321' % sr(S_SEQ))
    pat_T(a, V_PAT, tmp, 896)


def run_stream(a, mf, fill):
    def emit(lst):
        for x in lst:
            if callable(x):
                x()
            else:
                a.i(x)
    for m in sorted(k for k in fill if k < 0):
        emit(fill[m])
    for m, f in enumerate(mf):
        f()
        emit(fill.get(m, []))
    for m in sorted(k for k in fill if k >= len(mf)):
        emit(fill[m])


def spread(fill, items, m0, m1):
    n = len(items)
    span = m1 - m0 + 1
    for k, it in enumerate(items):
        m = m0 + (k * span) // n
        fill.setdefault(m, []).append(it)


def a_reads(e_dst, imm):
    out = []
    for ai in range(4):
        for hh in range(2):
            out.append('ds_read_b64_tr_b16 %s, %s offset:%d' % (vr(G_AF(e_dst, ai) + 2 * hh, 2), vr(G_TA[ai]), imm + hh * 512))
    return out


def b_reads(e, src_of_i):
    out = []
    for i in range(5):
        regs, imm = src_of_i(i)
        out.append('ds_read_b128 %s, %s offset:%d' % (vr(G_BF(e, i), 4), vr(regs[e]), imm))
    return out


def half_mfmas(a, acc, e, order=None):
    order = order or [(ai, i) for ai in range(4) for i in range(5)]
    return [(lambda ai=ai, i=i: mfma(a, acc(ai, i), G_AF(e, ai), G_BF(e, i))) for (ai, i) in order]


def xreduce(a, op, v, t):
    a.i('v_mov_b32 %s, %s' % (vr(t), vr(v)))
    a.i('v_permlane32_swap_b32 %s, %s' % (vr(v), vr(t)))
    a.i('%s %s, %s, %s' % (op, vr(v), vr(v), vr(t)))
    a.i('v_mov_b32 %s, %s' % (vr(t), vr(v)))
    a.i('v_permlane16_swap_b32 %s, %s' % (vr(v), vr(t)))
    a.i('%s %s, %s, %s' % (op, vr(v), vr(v), vr(t)))


def rm_addr_ops(ad4, adw, t5):
    return ['v_and_b32 %s, 15, %s' % (vr(ad4), vr(V_LANE)),
            'v_lshlrev_b32 %s, 7, %s' % (vr(ad4), vr(ad4)),
            's_lshl_b32 %s, %s, 2' % (sr(S_T0), sr(S_W)),
            's_add_u32 %s, %s, %d' % (sr(S_T0), sr(S_T0), RM),
            'v_add_u32 %s, %s, %s' % (vr(ad4), sr(S_T0), vr(ad4)),
            'v_bfe_u32 %s, %s, 4, 1' % (vr(adw), vr(V_LANE)),
            'v_lshlrev_b32 %s, 5, %s' % (vr(adw), vr(adw)),
            'v_lshrrev_b32 %s, 5, %s' % (vr(t5), vr(V_LANE)),
            'v_lshlrev_b32 %s, 4, %s' % (vr(t5), vr(t5)),
            'v_add3_u32 %s, %s, %s, %s' % (vr(adw), vr(adw), vr(t5), vr(ad4))]


def rm_reduce_write(a, op, M, t5, ad4, adw):
    a.i('v_permlane32_swap_b32 %s, %s' % (vr(M[0]), vr(M[1])))
    a.i('v_permlane32_swap_b32 %s, %s' % (vr(M[2]), vr(M[3])))
    a.i('%s %s, %s, %s' % (op, vr(M[0]), vr(M[0]), vr(M[1])))
    a.i('%s %s, %s, %s' % (op, vr(M[2]), vr(M[2]), vr(M[3])))
    xreduce(a, op, M[4], t5)
    a.i('v_permlane16_swap_b32 %s, %s' % (vr(M[0]), vr(M[2])))
    a.i('%s %s, %s, %s' % (op, vr(M[0]), vr(M[0]), vr(M[2])))
    a.i('ds_write_b32 %s, %s offset:64' % (vr(ad4), vr(M[4])))
    a.i('ds_write_b32 %s, %s' % (vr(adw), vr(M[0])))


def gen_main(a, name):
    a.raw('.globl %s' % name)
    a.raw('.p2align 8')
    a.raw('.type %s,@function' % name)
    a.label(name)
    a.i('s_cmp_ge_u32 s2, 256')
    a.i('s_cbranch_scc1 L_end')
    a.i('s_load_dwordx16 s[4:19], s[0:1], 0')
    a.i('v_and_b32 %s, 63, v0' % vr(V_LANE))
    a.i('v_lshrrev_b32 v2, 6, v0')
    a.i('v_readfirstlane_b32 %s, v2' % sr(S_WAVE))
    a.i('s_and_b32 %s, s2, 7' % sr(S_HKV))
    a.i('s_lshr_b32 %s, s2, 5' % sr(S_B))
    a.i('s_bfe_u32 %s, s2, 0x10004' % sr(S_T0))
    a.i('s_bfe_u32 %s, s2, 0x10003' % sr(S_T1))
    a.i('s_lshl_b32 %s, %s, 1' % (sr(S_H), sr(S_HKV)))
    a.i('s_add_u32 %s, %s, %s' % (sr(S_H), sr(S_H), sr(S_T0)))
    a.i('s_lshl_b32 %s, %s, 1' % (sr(S_GRP), sr(S_B)))
    a.i('s_add_u32 %s, %s, %s' % (sr(S_GRP), sr(S_GRP), sr(S_T1)))
    a.i('s_and_b32 %s, %s, 3' % (sr(S_W), sr(S_WAVE)))
    a.i('s_cmp_ge_u32 %s, 4' % sr(S_WAVE))
    a.i('s_cbranch_scc1 L_pv')

    def common_srds():
        a.i('s_mul_i32 %s, %s, %d' % (sr(S_T0), sr(S_H), 229376))
        build_srd(a, SRD_WO, S_WO, S_T0, 229376)
        a.i('s_lshl_b32 %s, %s, 4' % (sr(S_T0), sr(S_GRP)))
        a.i('s_add_u32 %s, %s, %s' % (sr(S_T0), sr(S_T0), sr(S_H)))
        a.i('s_mul_i32 %s, %s, %d' % (sr(S_T0), sr(S_T0), 71680))
        build_srd(a, SRD_PO, S_WS, S_T0, 71680)
        a.i('s_mul_i32 %s, %s, 4352' % (sr(S_T0), sr(S_GRP)))
        a.i('s_add_u32 %s, %s, %d' % (sr(S_T0), sr(S_T0), FLAG_BASE))
        build_srd(a, SRD_FG, S_WS, S_T0, 128)
        a.i('s_lshl_b32 %s, %s, 3' % (sr(S_T0), sr(S_B)))
        a.i('s_add_u32 %s, %s, %s' % (sr(S_T0), sr(S_T0), sr(S_HKV)))
        if flag('kvsame'):
            a.i('s_mov_b32 %s, %s' % (sr(S_T0), sr(S_HKV)))
        a.i('s_lshl_b32 %s, %s, 19' % (sr(S_T2), sr(S_T0)))

    LWQ = [100, 101]
    LX = [102, 103]
    LT = (104, 105)
    LV = [106, 107]
    pat_T(a, LWQ, LT, 8192)
    pat_U(a, LX, LT, 896, sub=False)
    a.i('s_and_b32 %s, %s, 1' % (sr(S_T0), sr(S_W)))
    a.i('s_cmp_eq_u32 %s, 1' % sr(S_T0))
    a.i('s_cselect_b64 vcc, -1, 0')
    a.i('v_cndmask_b32 %s, %s, %s, vcc' % (vr(LX[0]), vr(LX[0]), vr(LX[1])))
    a.i('s_add_u32 %s, %s, %s' % (sr(S_T0), sr(S_GRP), sr(S_H)))
    a.i('s_mul_i32 %s, %s, 37' % (sr(S_T1), sr(S_T0)))
    a.i('s_lshr_b32 %s, %s, 8' % (sr(S_T1), sr(S_T1)))
    a.i('s_mul_i32 %s, %s, 7' % (sr(S_T1), sr(S_T1)))
    a.i('s_sub_u32 %s, %s, %s' % (sr(S_P), sr(S_T0), sr(S_T1)))
    a.i('s_lshl_b32 %s, %s, 7' % (sr(S_T2), sr(S_P)))
    for k in range(3):
        a.i('s_add_u32 %s, %s, %d' % (sr(S_T0), sr(S_W), 4 * k))
        if k == 2:
            a.i('s_add_u32 %s, %s, 4' % (sr(S_T1), sr(S_W)))
            a.i('s_cmp_ge_u32 %s, 10' % sr(S_T0))
            a.i('s_cselect_b32 %s, %s, %s' % (sr(S_T0), sr(S_T1), sr(S_T0)))
        a.i('s_lshl_b32 %s, %s, 10' % (sr(S_XL[k]), sr(S_T0)))
        a.i('s_lshr_b32 %s, %s, 1' % (sr(S_T0), sr(S_T0)))
        a.i('s_mul_i32 %s, %s, %d' % (sr(S_XG[k]), sr(S_T0), 16 * 896))
        a.i('s_add_u32 %s, %s, %s' % (sr(S_XG[k]), sr(S_XG[k]), sr(S_T2)))
    a.i('s_lshl_b32 %s, %s, 7' % (sr(S_WQOFF), sr(S_W)))
    a.i('s_lshl_b32 %s, %s, 19' % (sr(S_T0), sr(S_P)))
    a.i('s_add_u32 %s, %s, %s' % (sr(S_WQOFF), sr(S_WQOFF), sr(S_T0)))
    a.i('s_lshl_b32 %s, %s, 13' % (sr(S_RING), sr(S_W)))
    a.i('s_lshl_b32 %s, %s, 9' % (sr(S_T0), sr(S_H)))
    a.i('s_sub_u32 %s, %d, %s' % (sr(S_T1), 448 * 8192, sr(S_T0)))
    a.i('s_mul_i32 %s, %s, %d' % (sr(S_T2), sr(S_GRP), 71680))
    a.i('s_waitcnt lgkmcnt(0)')
    build_srd(a, SRD_WQ, S_WQ, S_T0, sr(S_T1))
    build_srd(a, SRD_X, S_X, S_T2, 71680)

    def issue_tile(c):
        sl = c % 3
        for k in range(3):
            a.i('s_add_u32 m0, %s, %d' % (sr(S_XL[k]), XSLOT[sl]))
            a.i('buffer_load_dwordx4 %s, %s, %s offen lds' % (vr(LX[0]), sr(SRD_X, 4), sr(S_XG[k])))
            a.i('s_add_u32 %s, %s, 128' % (sr(S_XG[k]), sr(S_XG[k])))
        for u in range(4):
            a.i('s_add_u32 m0, %s, %d' % (sr(S_RING), WSLOT[sl] + u * 2048))
            a.i('buffer_load_dwordx4 %s, %s, %s offen lds' % (vr(LWQ[0]), sr(SRD_WQ, 4), sr(S_WQOFF)))
            a.i('buffer_load_dwordx4 %s, %s, %s offen offset:1024 lds' % (vr(LWQ[1]), sr(SRD_WQ, 4), sr(S_WQOFF)))
            a.i('s_add_u32 %s, %s, %d' % (sr(S_WQOFF), sr(S_WQOFF), 16 * 8192))
        if c < 6:
            a.i('s_add_u32 %s, %s, 1' % (sr(S_P), sr(S_P)))
            a.i('s_cmp_eq_u32 %s, 7' % sr(S_P))
            a.i('s_cselect_b32 s88, %d, 0' % (7 << 19))
            a.i('s_cselect_b32 s89, %d, 0' % (7 << 7))
            a.i('s_sub_u32 %s, %s, s88' % (sr(S_WQOFF), sr(S_WQOFF)))
            for k in range(3):
                a.i('s_sub_u32 %s, %s, s89' % (sr(S_XG[k]), sr(S_XG[k])))

    for c in range(2):
        issue_tile(c)
    stamp_init(a)
    common_srds()
    build_srd(a, SRD_ST, S_K, S_T2, 524288)
    build_srd(a, SRD_AUX, S_V, S_T2, 524288)
    a.i('s_mov_b32 %s, %s' % (sr(S_CG), sr(S_W)))
    a.i('s_cmp_eq_u32 %s, 3' % sr(S_W))
    a.i('s_cselect_b32 %s, 0, %s' % (sr(SRD_WO + 2), sr(SRD_WO + 2)))
    T2 = (Q_T[0], Q_T[1])
    pat_U(a, V_PAT, T2, 512)
    pat_T(a, LV, LT, 512)
    a.i('s_lshl_b32 %s, %s, 13' % (sr(S_WBASE), sr(S_W)))
    seq_init(a)
    a.i('s_and_b32 %s, %s, 15' % (sr(S_V0OFF), sr(S_SEQ)))
    a.i('s_lshl_b32 %s, %s, 15' % (sr(S_V0OFF), sr(S_V0OFF)))
    a.i('s_lshl_b32 %s, %s, 7' % (sr(S_T0), sr(S_W)))
    a.i('s_add_u32 %s, %s, %s' % (sr(S_V0OFF), sr(S_V0OFF), sr(S_T0)))
    for x in next_tile():
        a.i(x)
    a.i('s_mov_b32 %s, 128' % sr(S_STEPU))
    t0, t1 = T2
    a.i('v_and_b32 %s, 15, %s' % (vr(t0), vr(V_LANE)))
    a.i('v_and_b32 %s, 7, %s' % (vr(t1), vr(V_LANE)))
    a.i('v_lshlrev_b32 %s, 7, %s' % (vr(t0), vr(t0)))
    a.i('v_lshrrev_b32 %s, 5, %s' % (vr(Q_PWA), vr(V_LANE)))
    a.i('v_xor_b32 %s, %s, %s' % (vr(t1), vr(t1), vr(Q_PWA)))
    a.i('v_lshlrev_b32 %s, 4, %s' % (vr(t1), vr(t1)))
    a.i('v_add_u32 %s, %s, %s' % (vr(t0), vr(t0), vr(t1)))
    a.i('s_lshl_b32 %s, %s, 5' % (sr(S_T0), sr(S_W)))
    a.i('v_xor_b32 %s, %s, %s' % (vr(t0), sr(S_T0), vr(t0)))
    a.i('v_add_u32 %s, %d, %s' % (vr(t0), PB, vr(t0)))
    a.i('v_bfe_u32 %s, %s, 4, 1' % (vr(t1), vr(V_LANE)))
    a.i('v_lshl_add_u32 %s, %s, 3, %s' % (vr(Q_PWA), vr(t1), vr(t0)))
    a.i('v_lshl_add_u32 %s, %s, 11, %s' % (vr(Q_PWA2), vr(t1), vr(t0)))
    a.i('v_mov_b32 %s, %d' % (vr(Q_FLA), FL))
    for i in range(5):
        a.i('v_mov_b32 %s, 0' % vr(Q_L + i))
        for r in range(4):
            a.i('v_mov_b32 %s, 0' % vr(Q_MQ(i) + r))
    addr_U_read(a, Q_UA, T2)
    QA = [Q_T[0], Q_T[1]]
    for e in range(2):
        a.i('v_add_u32 %s, %d, %s' % (vr(QA[e]), QB, vr(Q_UA[e])))
        a.i('v_add_u32 %s, %s, %s' % (vr(Q_UA[e]), sr(S_RING), vr(Q_UA[e])))
    for c in range(7):
        n = [11, 11, 11, 11, 11, 19, 8][c]
        a.i('s_waitcnt vmcnt(%d)' % n)
        barrier(a)
        if c <= 4:
            issue_tile(c + 2)
        if c == 4 or c == 6:
            for u in range(4):
                for x in dma_unit(0 if c == 4 else 1, u):
                    a.i(x)
    barrier(a)
    for u in range(4):
        a.i('s_add_u32 m0, %s, %d' % (sr(S_RING), VR0 + u * 2048))
        a.i('buffer_load_dwordx4 %s, %s, %s offen lds' % (vr(LV[0]), sr(SRD_AUX, 4), sr(S_V0OFF)))
        a.i('buffer_load_dwordx4 %s, %s, %s offen offset:1024 lds' % (vr(LV[1]), sr(SRD_AUX, 4), sr(S_V0OFF)))
        a.i('s_add_u32 %s, %s, 8192' % (sr(S_V0OFF), sr(S_V0OFF)))

    def qread(i, s):
        return 'ds_read_b128 %s, %s offset:%d' % (vr(Q_Q(i, s), 4), vr(QA[s & 1]), (i * 4 + (s >> 1)) * 2048)

    def kread(par, s, buf):
        return 'ds_read_b128 %s, %s offset:%d' % (vr(Q_KF(buf), 4), vr(Q_UA[s & 1]), par * SLOT + (s >> 1) * 2048)

    a.i('s_waitcnt vmcnt(22)')
    a.i(kread(0, 0, 0))
    a.i(kread(0, 1, 1))
    a.i('s_waitcnt lgkmcnt(0)')
    a.i('s_mov_b32 %s, 0' % sr(S_P))
    barrier(a)

    q_rare = []
    q_setf = []

    def qk_phase(par, do_mfma, do_soft, tag):
        pp = 1 - par
        fill = {}
        mf = []
        if do_mfma:
            order = [(s, i) for s in range(6) for i in range(5)] + [(s, i) for i in range(5) for s in (6, 7)]
            for (s, i) in order:
                mf.append(lambda s=s, i=i: mfma(a, Q_S(par, i), Q_KF(s % 4), Q_Q(i, s), vr(Q_MQ(i), 4) if s == 0 else None))
            reads = [(0, 2, 0, 2), (1, 3, 0, 3), (5, 4, 0, 0), (10, 5, 0, 1), (15, 6, 0, 2), (20, 7, 0, 3),
                     (25, 0, 1, 0), (30, 1, 1, 1)]
            refills = [(QD[2 * u], QD[2 * u + 1], u) for u in range(4)]
            ev = []
            for (m, s, dt, buf) in reads:
                ev.append((m, 0, 'need', dt, s >> 1, s, buf))
            for (ma, mb, u) in refills:
                ev.append((ma, 1, 'dma', u))
                ev.append((mb, 1, 'dma', u))
            ev.sort(key=lambda e: (e[0], e[1]))
            issued = []
            need_n = {}
            for ph in range(4):
                for e in ev:
                    if e[2] == 'dma':
                        issued.append((ph + 2, e[3]))
                    elif ph == 3:
                        key = (ph + e[3], e[4])
                        last = max(k for k, x in enumerate(issued) if x == key)
                        need_n[e[5]] = len(issued) - 1 - last
            for (m, s, dt, buf) in reads:
                if s % 2 == 0:
                    fill.setdefault(m, []).append('s_waitcnt vmcnt(%d)' % (need_n[s] + (8 if tag == 'p0' else 0)))
                fill.setdefault(m, []).append(kread(pp if dt else par, s, buf))
            for (ma, mb, u) in refills:
                place_dma(fill, par, u, ma, mb)
        if tag == 'p0':
            qr = [qread(i, s) for s in range(8) for i in range(5)]
            fill.setdefault(-1, []).extend(qr[:10])
            for k, x in enumerate(qr[10:]):
                fill.setdefault(k * 2 // 3, []).append(x)
        if do_soft:
            fill.setdefault(-1, []).append('ds_read_b32 %s, %s offset:%d' % (vr(Q_T[2]), vr(Q_FLA), pp * 4))
            chk = ['v_cmp_eq_u32 vcc, %s, %s' % (sr(S_P), vr(Q_T[2]))]

            def br():
                a.i('s_cbranch_vccnz L_qrare_%s' % tag)
                a.label('L_qjoin_%s' % tag)
            chk.append(br)
            q_rare.append((tag, par, do_mfma))
            soft = []
            for i in range(5):
                S = Q_S(pp, i)
                t0, t1 = (Q_T[0], Q_T[1]) if i % 2 == 0 else (Q_T[3], Q_T[4])
                for r in range(4):
                    soft.append('v_exp_f32 %s, %s' % (vr(S + r), vr(S + r)))
                soft.append('v_add_f32 %s, %s, %s' % (vr(t0), vr(S), vr(S + 1)))
                soft.append('v_add_f32 %s, %s, %s' % (vr(t1), vr(S + 2), vr(S + 3)))
                D = S if i % 2 == 0 else Q_S(pp, i - 1) + 2
                soft.append('v_cvt_pk_bf16_f32 %s, %s, %s' % (vr(D), vr(S), vr(S + 1)))
                soft.append('v_cvt_pk_bf16_f32 %s, %s, %s' % (vr(D + 1), vr(S + 2), vr(S + 3)))
                soft.append('v_add_f32 %s, %s, %s' % (vr(t0), vr(t0), vr(t1)))
                if i == 4:
                    soft.append('ds_write_b64 %s, %s offset:%d' % (vr(Q_PWA), vr(S, 2), pp * 10240 + i * 2048))
                elif i % 2 == 1:
                    A = Q_S(pp, i - 1)
                    soft.append('v_permlane16_swap_b32 %s, %s' % (vr(A), vr(A + 2)))
                    soft.append('v_permlane16_swap_b32 %s, %s' % (vr(A + 1), vr(A + 3)))
                    soft.append('ds_write_b128 %s, %s offset:%d' % (vr(Q_PWA2), vr(A, 4), pp * 10240 + (i - 1) * 2048))
                soft.append('v_add_f32 %s, %s, %s' % (vr(Q_L + i), vr(Q_L + i), vr(t0)))
            if do_mfma:
                fill.setdefault(5, []).extend(chk)
                spread(fill, soft, 6, int(opt('softend', 31)))
            else:
                fill.setdefault(-1, []).extend(chk + soft)
        if tag == 'p0':
            M = [Q_S(1, 0) + k for k in range(5)]
            t5, adw, ad4 = Q_S(1, 0) + 5, Q_S(1, 0) + 6, Q_S(1, 0) + 7
            spread(fill, rm_addr_ops(ad4, adw, t5), 22, 31)
            for i in range(5):
                S = Q_S(par, i)
                fill.setdefault(min(34 + 2 * i, 40), []).extend([
                    'v_max3_f32 %s, %s, %s, %s' % (vr(M[i]), vr(S), vr(S + 1), vr(S + 2)),
                    'v_max_f32 %s, %s, %s' % (vr(M[i]), vr(M[i]), vr(S + 3))])
            fill.setdefault(41, []).append(lambda: rm_reduce_write(a, 'v_max_f32', M, t5, ad4, adw))
        elif do_mfma:
            M0_, M1_ = Q_T[5], Q_T[6]
            for i in range(5):
                S = Q_S(par, i)
                m = min(34 + 2 * i, 40)
                if i == 0:
                    ops = ['v_max3_f32 %s, %s, %s, %s' % (vr(M0_), vr(S), vr(S + 1), vr(S + 2)),
                           'v_mov_b32 %s, %s' % (vr(M1_), vr(S + 3))]
                else:
                    ops = ['v_max3_f32 %s, %s, %s, %s' % (vr(M0_), vr(M0_), vr(S), vr(S + 1)),
                           'v_max3_f32 %s, %s, %s, %s' % (vr(M1_), vr(M1_), vr(S + 2), vr(S + 3))]
                fill.setdefault(m, []).extend(ops)

            def endchk():
                a.i('v_max_f32 %s, %s, %s' % (vr(M0_), vr(M0_), vr(M1_)))
                a.i('v_cmp_lt_f32 vcc, %s, %s' % (f32hex(THR), vr(M0_)))
                a.i('s_cbranch_vccnz L_qsetf_%s' % tag)
                a.label('L_qsetj_%s' % tag)
            fill.setdefault(41, []).append(endchk)
            q_setf.append((tag, par))
        run_stream(a, mf, fill)
        a.i('s_add_u32 %s, %s, 1' % (sr(S_P), sr(S_P)))
        a.i('s_waitcnt lgkmcnt(0)')
        barrier(a)

    qk_phase(0, True, False, 'p0')
    ad = Q_T[0]
    a.i('v_and_b32 %s, 15, %s' % (vr(ad), vr(V_LANE)))
    a.i('v_lshlrev_b32 %s, 7, %s' % (vr(ad), vr(ad)))
    a.i('v_add_u32 %s, %d, %s' % (vr(ad), RM, vr(ad)))
    for i in range(5):
        a.i('ds_read_b128 %s, %s offset:%d' % (vr(Q_S(1, i), 4), vr(ad), 16 * i))
    for i in range(5):
        R = Q_S(1, i)
        a.i('v_max3_f32 %s, %s, %s, %s' % (vr(R), vr(R), vr(R + 1), vr(R + 2)))
        a.i('v_max_f32 %s, %s, %s' % (vr(R), vr(R), vr(R + 3)))
        for r in range(4):
            a.i('v_sub_f32 %s, 0, %s' % (vr(Q_MQ(i) + r), vr(R)))
    for i in range(5):
        for r in range(4):
            a.i('v_add_f32 %s, %s, %s' % (vr(Q_S(0, i) + r), vr(Q_S(0, i) + r), vr(Q_MQ(i))))
    a.label('L_qloop')
    qk_phase(1, True, True, 'odd')
    a.i('s_cmp_eq_u32 %s, 16' % sr(S_P))
    a.i('s_cbranch_scc1 L_qdone')
    a.i('s_cmp_eq_u32 %s, 14' % sr(S_P))
    a.i('s_cbranch_scc0 L_qnosw')
    switch_to_wo(a, (Q_T[0], Q_T[1]))
    a.label('L_qnosw')
    qk_phase(0, True, True, 'even')
    a.i('s_branch L_qloop')
    a.reset()
    a.label('L_qdone')
    qk_phase(0, False, True, 'p16')
    ad4, adw, t5 = Q_T[0], Q_T[1], Q_T[3]
    for x in rm_addr_ops(ad4, adw, t5):
        a.i(x)
    rm_reduce_write(a, 'v_add_f32', [Q_L + i for i in range(5)], t5, ad4, adw)
    a.i('v_mov_b32 %s, %d' % (vr(t5), MW - 4))
    for r in range(4):
        a.i('v_mov_b32 v%d, 0' % (20 + r))
    a.i('ds_write_b128 %s, v[20:23]' % vr(t5))
    a.i('s_waitcnt lgkmcnt(0)')
    addr_T_read(a, G_T[2], (G_T[0], G_T[1]))
    for x in set_TA(S_RING, G_T[2]):
        a.i(x)
    addr_U_read(a, G_UB, (G_T[0], G_T[1]))
    for e in range(2):
        a.i('v_add_u32 %s, %d, %s' % (vr(G_UB2[e]), OB_LO, vr(G_UB[e])))
        a.i('v_add_u32 %s, %d, %s' % (vr(G_UB[e]), OB_HI, vr(G_UB[e])))
    for k in range(20):
        for r in range(4):
            a.i('v_mov_b32 %s, 0' % vr(ACC_W(k // 5, k % 5) + r))
    a.i('s_waitcnt vmcnt(0)')
    barrier(a)
    barrier(a)
    a.i('s_cmp_eq_u32 %s, 3' % sr(S_W))
    a.i('s_cbranch_scc0 L_oproj')
    build_srd(a, SRD_AUX, S_DBG, None, 256)
    a.i('v_mov_b32 v7, %d' % MW)
    a.i('v_lshlrev_b32 v2, 8, %s' % vr(V_LANE))
    a.i('v_lshlrev_b32 v5, 2, %s' % vr(V_LANE))
    a.i('v_mov_b32 v3, 1')
    a.i('s_mov_b32 %s, 0x40000' % sr(S_T1))
    a.i('s_lshl_b32 %s, %s, 4' % (sr(S_T0), sr(S_GRP)))
    a.i('buffer_load_dword v4, v2, %s, %s offen sc1' % (sr(SRD_AUX, 4), sr(S_T0)))
    a.i('s_barrier')
    a.label('L_cpoll')
    a.i('s_waitcnt vmcnt(0)')
    a.i('v_readfirstlane_b32 %s, v4' % sr(S_T2))
    a.i('s_cmp_eq_u32 %s, 0xffff' % sr(S_T2))
    a.i('s_cbranch_scc1 L_cdone')
    a.i('buffer_load_dword v4, v2, %s, %s offen sc1' % (sr(SRD_AUX, 4), sr(S_T0)))
    a.i('s_sub_u32 %s, %s, 1' % (sr(S_T1), sr(S_T1)))
    a.i('s_cmp_lg_u32 %s, 0' % sr(S_T1))
    a.i('s_cbranch_scc1 L_cpoll')
    a.i('s_branch L_fin')
    a.label('L_cdone')
    if flag('cwait'):
        a.label('L_cw')
        a.i('s_sleep 1')
        a.i('ds_read_b64 v[8:9], v7 offset:4')
        a.i('s_waitcnt lgkmcnt(0)')
        a.i('v_add_u32 v8, v8, v9')
        a.i('v_readfirstlane_b32 %s, v8' % sr(S_T2))
        a.i('s_cmp_eq_u32 %s, 7' % sr(S_T2))
        a.i('s_cbranch_scc0 L_cw')
    a.label('L_poll')
    a.i('buffer_load_dword v4, v5, %s, 0 offen sc1' % sr(SRD_FG, 4))
    a.i('s_waitcnt vmcnt(0)')
    a.i('v_cmp_eq_u32 vcc, 1, v4')
    a.i('s_mov_b32 %s, vcc_lo' % sr(S_T2))
    a.i('v_mov_b32 v4, %s' % sr(S_T2))
    a.i('ds_write_b32 v7, v4')
    a.i('s_waitcnt lgkmcnt(0)')
    a.i('s_cmp_eq_u32 %s, -1' % sr(S_T2))
    a.i('s_cbranch_scc1 L_fin')
    if opt('psleep'):
        a.i('s_sleep %s' % opt('psleep'))
    a.i('s_sub_u32 %s, %s, 1' % (sr(S_T1), sr(S_T1)))
    a.i('s_cmp_gt_i32 %s, 0' % sr(S_T1))
    a.i('s_cbranch_scc1 L_poll')
    a.i('s_branch L_fin')
    a.reset()
    for tag, par in q_setf:
        a.label('L_qsetf_%s' % tag)
        a.i('s_add_u32 %s, %s, 1' % (sr(S_T0), sr(S_P)))
        a.i('v_mov_b32 %s, %s' % (vr(Q_T[5]), sr(S_T0)))
        a.i('ds_write_b32 %s, %s offset:%d' % (vr(Q_FLA), vr(Q_T[5]), par * 4))
        a.i('s_branch L_qsetj_%s' % tag)
        a.reset()
    for tag, par, has_cur in q_rare:
        pp = 1 - par
        a.label('L_qrare_%s' % tag)
        a.fence(10)
        ad, t0, mx = Q_T[1], Q_T[0], Q_T[6]
        a.i('v_and_b32 %s, 15, %s' % (vr(ad), vr(V_LANE)))
        a.i('v_lshlrev_b32 %s, 5, %s' % (vr(ad), vr(ad)))
        a.i('v_add_u32 %s, %d, %s' % (vr(ad), SM, vr(ad)))
        a.i('s_lshl_b32 %s, %s, 9' % (sr(S_T0), sr(S_W)))
        a.i('v_add_u32 %s, %s, %s' % (vr(Q_T[3]), sr(S_T0), vr(ad)))
        for i in range(5):
            S = Q_S(pp, i)
            a.i('v_max3_f32 %s, %s, %s, %s' % (vr(mx), vr(S), vr(S + 1), vr(S + 2)))
            a.i('v_max_f32 %s, %s, %s' % (vr(mx), vr(mx), vr(S + 3)))
            xreduce(a, 'v_max_f32', mx, t0)
            a.i('ds_write_b32 %s, %s offset:%d' % (vr(Q_T[3]), vr(mx), RM - SM + 4 * i))
        a.i('s_waitcnt lgkmcnt(0)')
        a.i('s_barrier')
        for i in range(5):
            r4 = [Q_T[3], Q_T[4], Q_T[5], Q_T[0]]
            for w in range(4):
                a.i('ds_read_b32 %s, %s offset:%d' % (vr(r4[w]), vr(ad), RM - SM + w * 512 + 4 * i))
            a.i('v_max3_f32 %s, %s, %s, %s' % (vr(mx), vr(r4[0]), vr(r4[1]), vr(r4[2])))
            a.i('v_max3_f32 %s, %s, %s, 0' % (vr(mx), vr(mx), vr(r4[3])))
            for r in range(4):
                a.i('v_sub_f32 %s, %s, %s' % (vr(Q_S(pp, i) + r), vr(Q_S(pp, i) + r), vr(mx)))
                if has_cur:
                    a.i('v_sub_f32 %s, %s, %s' % (vr(Q_S(par, i) + r), vr(Q_S(par, i) + r), vr(mx)))
                a.i('v_sub_f32 %s, %s, %s' % (vr(Q_MQ(i) + r), vr(Q_MQ(i) + r), vr(mx)))
            a.i('v_exp_f32 %s, -%s' % (vr(t0), vr(mx)))
            a.i('v_mul_f32 %s, %s, %s' % (vr(Q_L + i), vr(Q_L + i), vr(t0)))
            a.i('ds_write_b32 %s, %s offset:%d' % (vr(ad), vr(t0), AL - SM + pp * 512 + 4 * i))
        a.i('s_waitcnt lgkmcnt(0)')
        a.fence(4)
        a.i('s_branch L_qjoin_%s' % tag)
        a.reset()

    a.label('L_pv')
    ROLE[0] = 'p'
    GT = (G_T[0], G_T[1])
    if flag('cpf'):
        a.i('s_cmp_ge_u32 s2, %s' % opt('cpfn', '16'))
        a.i('s_cbranch_scc1 L_nocpf')
        a.i('s_getpc_b64 s[96:97]')
        a.label('L_pcref')
        a.raw('    s_sub_u32 s96, s96, L_pcref-%s' % name)
        a.raw('    s_subb_u32 s97, s97, 0')
        a.i('s_lshl_b32 %s, %s, 13' % (sr(S_T0), sr(S_W)))
        a.i('v_lshlrev_b32 v2, 7, %s' % vr(V_LANE))
        a.i('v_add_u32 v2, %s, v2' % sr(S_T0))
        a.raw('    v_min_u32 v2, L_code_end-%s-4, v2' % name)
        a.i('global_load_dword v16, v2, s[96:97]')
        a.label('L_nocpf')
    addr_T_read(a, G_T[2], GT)
    addr_U_read(a, G_UB, GT)
    a.i('v_mov_b32 %s, %s' % (vr(G_T[3]), vr(G_UB[0])))
    t0, t1 = GT
    a.i('v_bfe_u32 %s, %s, 4, 1' % (vr(t0), vr(V_LANE)))
    a.i('v_lshrrev_b32 %s, 5, %s' % (vr(t1), vr(V_LANE)))
    a.i('v_lshl_add_u32 %s, %s, 1, %s' % (vr(t0), vr(t0), vr(t1)))
    a.i('v_and_b32 %s, 7, %s' % (vr(t1), vr(V_LANE)))
    a.i('v_xor_b32 %s, %s, %s' % (vr(t0), vr(t0), vr(t1)))
    a.i('v_lshlrev_b32 %s, 4, %s' % (vr(t0), vr(t0)))
    a.i('v_and_b32 %s, 15, %s' % (vr(t1), vr(V_LANE)))
    a.i('v_lshl_add_u32 %s, %s, 7, %s' % (vr(t0), vr(t1), vr(t0)))
    a.i('s_lshl_b32 %s, %s, 11' % (sr(S_T0), sr(S_W)))
    a.i('v_add_u32 %s, %s, %s' % (vr(G_T[4]), sr(S_T0), vr(t0)))
    for k in range(80):
        a.i('v_mov_b32 %s, 0' % vr(176 + k))
    a.i('s_waitcnt lgkmcnt(0)')
    stamp_init(a)
    common_srds()
    build_srd(a, SRD_ST, S_V, S_T2, 524288)
    build_srd(a, SRD_AUX, S_DBG, None, 256)
    a.i('s_add_u32 %s, %s, 3' % (sr(S_CG), sr(S_W)))
    a.i('v_lshlrev_b32 %s, 8, %s' % (vr(G_AL + 2), vr(V_LANE)))
    a.i('s_cmp_lg_u32 %s, 7' % sr(S_WAVE))
    a.i('s_cbranch_scc1 L_noclr')
    a.i('v_mov_b32 %s, 0' % vr(G_AL + 1))
    a.i('s_lshl_b32 %s, %s, 2' % (sr(S_T0), sr(S_H)))
    a.i('buffer_store_dword %s, %s, %s, %s offen sc1' % (vr(G_AL + 1), vr(G_AL + 2), sr(SRD_FG, 4), sr(S_T0)))
    a.i('buffer_store_dword %s, %s, %s, %s offen offset:64 sc1' % (vr(G_AL + 1), vr(G_AL + 2), sr(SRD_FG, 4), sr(S_T0)))
    a.label('L_noclr')
    a.i('s_lshl_b32 %s, %s, 2' % (sr(S_T0), sr(S_GRP)))
    a.i('s_add_u32 %s, %s, %s' % (sr(S_T0), sr(S_T0), sr(S_W)))
    a.i('s_mul_i32 %s, %s, %d' % (sr(S_PFO), sr(S_T0), 28 * 128))
    a.i('s_mov_b32 %s, %s' % (sr(S_C), f32hex(CSCALE)))
    a.i('s_mov_b32 %s, %s' % (sr(S_C + 1), f32hex(CSCALE)))
    a.i('s_lshl_b32 %s, %s, 13' % (sr(S_T0), sr(S_W)))
    a.i('s_add_u32 %s, %s, %d' % (sr(S_RING), sr(S_T0), VR0))
    a.i('s_add_u32 %s, %s, %d' % (sr(S_WCUR), sr(S_T0), WSLOT[0]))
    a.i('s_add_u32 %s, %s, %d' % (sr(S_WN1), sr(S_T0), WSLOT[1]))
    a.i('s_add_u32 %s, %s, %d' % (sr(S_WN2), sr(S_T0), WSLOT[2]))
    a.i('s_mov_b32 %s, %d' % (sr(S_XCUR), XSLOT[0]))
    a.i('s_mov_b32 %s, %d' % (sr(S_XN1), XSLOT[1]))
    a.i('s_mov_b32 %s, %d' % (sr(S_XN2), XSLOT[2]))
    a.i('s_mov_b32 %s, 0' % sr(S_P))
    pat_T(a, V_PAT, GT, 512)
    a.i('s_lshl_b32 %s, %s, 7' % (sr(S_WBASE), sr(S_W)))
    seq_init(a)
    for x in next_tile() + next_tile():
        a.i(x)
    a.i('s_mov_b32 %s, 8192' % sr(S_STEPU))
    a.i('v_mov_b32 %s, %d' % (vr(G_FLA), FL))
    a.i('v_and_b32 %s, 15, %s' % (vr(G_ALA), vr(V_LANE)))
    a.i('v_lshlrev_b32 %s, 5, %s' % (vr(G_ALA), vr(G_ALA)))
    a.i('v_add_u32 %s, %d, %s' % (vr(G_ALA), SM, vr(G_ALA)))
    for k in range(20):
        for r in range(4):
            a.i('v_mov_b32 %s, 0' % vr(ACC_W(k // 5, k % 5) + r))
    a.i('s_mov_b32 %s, 0' % sr(S_PEND))
    a.i('s_mov_b32 %s, 0' % sr(S_PEND2))

    def q_addr_update():
        out = set_TA(S_WCUR, G_T[2])
        out += ['v_add_u32 %s, %s, %s' % (vr(G_UB[0]), sr(S_XCUR), vr(G_T[3])),
                'v_xor_b32 %s, 64, %s' % (vr(G_UB[1]), vr(G_UB[0]))]
        out += ['s_mov_b32 %s, %s' % (sr(S_T0), sr(S_WCUR)), 's_mov_b32 %s, %s' % (sr(S_WCUR), sr(S_WN1)),
                's_mov_b32 %s, %s' % (sr(S_WN1), sr(S_WN2)), 's_mov_b32 %s, %s' % (sr(S_WN2), sr(S_T0)),
                's_mov_b32 %s, %s' % (sr(S_T0), sr(S_XCUR)), 's_mov_b32 %s, %s' % (sr(S_XCUR), sr(S_XN1)),
                's_mov_b32 %s, %s' % (sr(S_XN1), sr(S_XN2)), 's_mov_b32 %s, %s' % (sr(S_XN2), sr(S_T0))]
        return out

    XI = lambda i: (G_UB, i * 2048)
    for x in q_addr_update():
        a.i(x)
    barrier(a)
    A0 = a_reads(0, 0)
    for x in A0[0:2] + b_reads(0, XI) + A0[2:]:
        a.i(x)
    a.label('L_qproj')
    fill = {}
    spread(fill, b_reads(1, XI) + a_reads(1, 4096), 1, 8)
    spread(fill, q_addr_update(), 12, 18)
    fill.setdefault(19, []).extend(['s_add_u32 %s, %s, 1' % (sr(S_P), sr(S_P))])
    run_stream(a, half_mfmas(a, ACC_O, 0), fill)
    a.i('s_waitcnt lgkmcnt(0)')
    barrier(a)
    a.i('s_cmp_eq_u32 %s, 7' % sr(S_P))
    a.i('s_cbranch_scc1 L_qproj_last')
    fill = {}
    A0 = a_reads(0, 0)
    spread(fill, A0[0:2] + b_reads(0, XI) + A0[2:], 0, 9)
    run_stream(a, half_mfmas(a, ACC_O, 1), fill)
    a.i('s_branch L_qproj')
    a.reset()
    a.label('L_qproj_last')

    PAIR_ORDER = [(ap * 2 + d, i) for ap in range(2) for i in range(5) for d in range(2)]

    def final_half(acc, fill, m_first, scale, dst):
        for ap in range(2):
            for i in range(5):
                R0, R1 = acc(2 * ap, i), acc(2 * ap + 1, i)
                ad, imm = dst(ap, i)
                ops = []
                for R in (R0, R1):
                    if flag('pkmul'):
                        ops += ['v_pk_mul_f32 %s, %s, %s' % (vr(R, 2), vr(R, 2), scale(i, 2)),
                                'v_pk_mul_f32 %s, %s, %s' % (vr(R + 2, 2), vr(R + 2, 2), scale(i, 2))]
                    else:
                        ops += ['v_mul_f32 %s, %s, %s' % (vr(R + r), scale(i, 1), vr(R + r)) for r in range(4)]
                ops += ['v_cvt_pk_bf16_f32 %s, %s, %s' % (vr(R0), vr(R0), vr(R0 + 1)),
                        'v_cvt_pk_bf16_f32 %s, %s, %s' % (vr(R0 + 1), vr(R0 + 2), vr(R0 + 3)),
                        'v_cvt_pk_bf16_f32 %s, %s, %s' % (vr(R0 + 2), vr(R1), vr(R1 + 1)),
                        'v_cvt_pk_bf16_f32 %s, %s, %s' % (vr(R0 + 3), vr(R1 + 2), vr(R1 + 3)),
                        'v_permlane16_swap_b32 %s, %s' % (vr(R0), vr(R0 + 2)),
                        'v_permlane16_swap_b32 %s, %s' % (vr(R0 + 1), vr(R0 + 3)),
                        'ds_write_b128 %s, %s offset:%d' % (vr(ad), vr(R0, 4), imm)]
                k = ap * 5 + i
                fill.setdefault(max(m_first + k, 2 * k + 4), []).extend(ops)
        run_stream(a, half_mfmas(a, acc, 1, PAIR_ORDER), fill)
        a.i('s_waitcnt lgkmcnt(0)')

    fill = {-1: ['v_add_u32 %s, %d, %s' % (vr(G_T[5]), QB, vr(G_T[4])),
                 'v_xor_b32 %s, 64, %s' % (vr(G_T[6]), vr(G_T[5])),
                 'v_mov_b32 %s, 0' % vr(G_AL), 'v_mov_b32 %s, 0' % vr(G_AL + 1)],
            1: ['ds_write_b64 %s, %s' % (vr(G_FLA), vr(G_AL, 2))]}
    final_half(ACC_O, fill, 4, lambda i, n: sr(S_C, n), lambda ap, i: (G_T[5 + ap], i * 8192))
    barrier(a)
    a.i('s_cmp_lg_u32 %s, 7' % sr(S_WAVE))
    a.i('s_cbranch_scc1 L_noclr2')
    a.i('s_lshl_b32 %s, 1, %s' % (sr(S_T0), sr(S_H)))
    a.i('v_mov_b32 %s, %s' % (vr(G_AL + 1), sr(S_T0)))
    a.i('s_lshl_b32 %s, %s, 4' % (sr(S_T0), sr(S_GRP)))
    a.i('s_waitcnt vmcnt(0)')
    a.i('buffer_atomic_or %s, %s, %s, %s offen sc1' % (vr(G_AL + 1), vr(G_AL + 2), sr(SRD_AUX, 4), sr(S_T0)))
    a.label('L_noclr2')
    for x in set_TA(S_RING, G_T[2]):
        a.i(x)
    a.i('v_add_u32 %s, %d, %s' % (vr(G_UB[0]), PB, vr(G_T[3])))
    a.i('v_xor_b32 %s, 64, %s' % (vr(G_UB[1]), vr(G_UB[0])))
    for k in range(80):
        a.i('v_mov_b32 %s, 0' % vr(176 + k))
    barrier(a)
    for u in range(2):
        for x in dma_unit(1, u):
            a.i(x)
    for r in range(20):
        a.i('v_mov_b32 %s, 0' % vr(G_BF(1, 0) + r))
    for r in range(16):
        a.i('v_mov_b32 %s, 0' % vr(G_AF(1, 0) + r))
    barrier(a)
    a.i('s_mov_b32 %s, 2' % sr(S_P))

    pv_rare = []
    pv_sync = []

    def gemm_phase(par, acc, bsrc, vm, refill, tag=None, bar=True, part1_mfma=True):
        fill = {}
        pre = []
        if tag is not None:
            pre.append('ds_read_b32 %s, %s offset:%d' % (vr(G_T[6]), vr(G_FLA), (1 - par) * 4))
        pre += b_reads(0, bsrc)
        pre.append('s_waitcnt vmcnt(%d)' % vm[0])
        pre += a_reads(0, par * SLOT)
        if part1_mfma:
            spread(fill, pre, 0, 9)
        else:
            fill[-1] = pre
        if tag is not None:
            def br():
                a.i('v_cmp_eq_u32 vcc, %s, %s' % (sr(S_P), vr(G_T[6])))
                a.i('s_cbranch_vccnz L_psync_%s' % tag)
                a.label('L_psyncj_%s' % tag)
            fill.setdefault(6, []).append(br)
            pv_sync.append(tag)
        if refill[0]:
            place_dma(fill, 1 - par, 2, PD[0], PD[1])
            place_dma(fill, 1 - par, 3, PD[2], PD[3])
        run_stream(a, half_mfmas(a, acc, 1) if part1_mfma else [], fill)
        if tag is not None:
            a.i('s_cmp_lg_u32 %s, 0' % sr(S_PEND))
            a.i('s_cbranch_scc1 L_prare_%s' % tag)
            a.label('L_pjoin_%s' % tag)
            a.i('s_mov_b32 %s, %s' % (sr(S_PEND), sr(S_PEND2)))
            pv_rare.append((tag, par))
            if tag == 'even':
                a.i('s_cmp_eq_u32 %s, %s' % (sr(S_P), opt('pfwoat', '10')))
                a.i('s_cbranch_scc1 L_ppf')
                a.label('L_ppfj')
                a.i('s_cmp_eq_u32 %s, 16' % sr(S_P))
                a.i('s_cbranch_scc1 L_psw')
                a.label('L_pswj')
        a.i('s_waitcnt lgkmcnt(0)')
        fill = {}
        spread(fill, b_reads(1, bsrc) + ['s_waitcnt vmcnt(%d)' % vm[1]] + a_reads(1, par * SLOT + 4096), 0, 9)
        if refill[1]:
            place_dma(fill, par, 0, PD[4], PD[5])
            place_dma(fill, par, 1, PD[6], PD[7])
        if tag is not None:
            fill.setdefault(14, []).extend(['s_add_u32 %s, %s, 1' % (sr(S_P), sr(S_P)), 's_mov_b32 %s, 0' % sr(S_PEND2)])
        run_stream(a, half_mfmas(a, acc, 0), fill)
        a.i('s_waitcnt lgkmcnt(0)')
        if bar:
            barrier(a)

    a.label('L_ploop')
    gemm_phase(0, ACC_O, lambda i: (G_UB, i * 2048), (8, 8), (True, True), 'even')
    gemm_phase(1, ACC_O, lambda i: (G_UB, 10240 + i * 2048), (8, 8), (True, True), 'odd')
    a.i('s_cmp_lt_u32 %s, 18' % sr(S_P))
    a.i('s_cbranch_scc1 L_ploop')
    LT_ = G_BF(0, 0)
    RI = G_AF(0, 0)
    fill = {}
    pre = ['v_and_b32 %s, 15, %s' % (vr(G_T[1]), vr(V_LANE)),
           'v_lshlrev_b32 %s, 7, %s' % (vr(G_T[1]), vr(G_T[1])),
           'v_add_u32 %s, %d, %s' % (vr(G_T[1]), RM, vr(G_T[1]))]
    pre += ['ds_read_b128 %s, %s offset:%d' % (vr(LT_ + 4 * i, 4), vr(G_T[1]), 16 * i) for i in range(5)]
    fill[-1] = pre
    WH = [G_T[5], G_T[6]]
    WL = [G_AL + 2, G_AL + 3]
    fill[0] = ['v_add_u32 %s, %d, %s' % (vr(WH[0]), OB_HI, vr(G_T[4])), 'v_xor_b32 %s, 64, %s' % (vr(WH[1]), vr(WH[0]))]
    fill[1] = ['v_add_u32 %s, %d, %s' % (vr(WL[0]), OB_LO, vr(G_T[4])), 'v_xor_b32 %s, 64, %s' % (vr(WL[1]), vr(WL[0]))]
    rc = []
    for i in range(5):
        R = LT_ + 4 * i
        rc += ['v_add_f32 %s, %s, %s' % (vr(R), vr(R), vr(R + 1)),
               'v_add_f32 %s, %s, %s' % (vr(R + 2), vr(R + 2), vr(R + 3)),
               'v_add_f32 %s, %s, %s' % (vr(R), vr(R), vr(R + 2)),
               'v_rcp_f32 %s, %s' % (vr(RI + 2 * i), vr(R)),
               'v_rcp_f32 %s, %s' % (vr(RI + 2 * i + 1), vr(R))]
    spread(fill, rc, 3, 7)
    final_half(ACC_O, fill, 8, lambda i, n: vr(RI + 2 * i, n),
               lambda ap, i: (WH[ap], i * 8192) if i < 3 else (WL[ap], (i - 3) * SLOT))
    for u in (2, 3):
        for x in dma_unit(1, u):
            a.i(x)
    a.i('v_add_u32 %s, %d, %s' % (vr(G_UB[0]), OB_HI, vr(G_T[3])))
    a.i('v_xor_b32 %s, 64, %s' % (vr(G_UB[1]), vr(G_UB[0])))
    a.i('v_add_u32 %s, %d, %s' % (vr(G_UB2[0]), OB_LO, vr(G_T[3])))
    a.i('v_xor_b32 %s, 64, %s' % (vr(G_UB2[1]), vr(G_UB2[0])))
    barrier(a)
    a.label('L_oproj')
    a.fence(4)
    OI = lambda tau: (lambda i: (G_UB, (i * 4 + tau) * 2048) if i < 3 else (G_UB2, (i - 3) * SLOT + tau * 2048))
    gemm_phase(0, ACC_W, OI(0), (12, 8), (False, True), None, bar=False, part1_mfma=False)
    gemm_phase(1, ACC_W, OI(1), (8, 8), (True, True), None, bar=False)
    gemm_phase(0, ACC_W, OI(2), (8, 8), (True, False), None, bar=False)
    a.i('s_cmp_lt_u32 %s, 4' % sr(S_WAVE))
    a.i('s_cbranch_scc1 L_sb1')
    a.i('s_barrier')
    a.label('L_sb1')
    gemm_phase(1, ACC_W, OI(3), (4, 0), (False, False), None, bar=False)
    run_stream(a, half_mfmas(a, ACC_W, 1, PAIR_ORDER), {})
    stamp(a)
    a.i('s_cmp_ge_u32 %s, 4' % sr(S_WAVE))
    a.i('s_cbranch_scc1 L_sb2')
    a.i('s_barrier')
    a.label('L_sb2')
    a.i('v_lshlrev_b32 %s, 4, %s' % (vr(GT[0]), vr(V_LANE)))
    a.i('s_mul_i32 %s, %s, 10240' % (sr(S_T0), sr(S_CG)))
    a.i('s_add_u32 %s, %s, 4096' % (sr(S_T1), sr(S_T0)))
    a.i('s_add_u32 %s, %s, 8192' % (sr(S_T2), sr(S_T0)))
    for ap in range(2):
        for i in range(5):
            k = 2 * i + ap
            R0, R1 = ACC_W(2 * ap, i), ACC_W(2 * ap + 1, i)
            a.i('v_cvt_pk_bf16_f32 %s, %s, %s' % (vr(R0), vr(R0), vr(R0 + 1)))
            a.i('v_cvt_pk_bf16_f32 %s, %s, %s' % (vr(R0 + 1), vr(R0 + 2), vr(R0 + 3)))
            a.i('v_cvt_pk_bf16_f32 %s, %s, %s' % (vr(R0 + 2), vr(R1), vr(R1 + 1)))
            a.i('v_cvt_pk_bf16_f32 %s, %s, %s' % (vr(R0 + 3), vr(R1 + 2), vr(R1 + 3)))
            a.i('buffer_store_dwordx4 %s, %s, %s, %s offen offset:%d sc1' % (
                vr(R0, 4), vr(GT[0]), sr(SRD_PO, 4), sr([S_T0, S_T1, S_T2][k // 4]), (k % 4) * 1024))
    a.i('s_lshr_b32 %s, %s, 2' % (sr(S_T0), sr(S_WAVE)))
    a.i('s_lshl_b32 %s, %s, 2' % (sr(S_T1), sr(S_T0)))
    a.i('s_add_u32 %s, %s, %d' % (sr(S_T1), sr(S_T1), MW + 4))
    a.i('v_mov_b32 v6, %s' % sr(S_T1))
    a.i('v_mov_b32 v7, %d' % MW)
    a.i('v_mov_b32 v3, 1')
    a.i('v_cmp_eq_u32 vcc, 0, %s' % vr(V_LANE))
    a.i('v_cndmask_b32 v4, 0, v3, vcc')
    a.i('v_lshlrev_b32 v2, 8, %s' % vr(V_LANE))
    a.i('s_add_u32 %s, %s, 2' % (sr(S_T2), sr(S_T0)))
    a.i('s_lshl_b32 %s, %s, 6' % (sr(S_T0), sr(S_T0)))
    a.i('s_lshl_b32 %s, %s, 2' % (sr(S_T1), sr(S_H)))
    a.i('s_add_u32 %s, %s, %s' % (sr(S_T0), sr(S_T0), sr(S_T1)))
    a.i('s_waitcnt vmcnt(0)')
    a.i('ds_add_rtn_u32 v4, v6, v4')
    a.i('s_waitcnt lgkmcnt(0)')
    a.i('v_readfirstlane_b32 %s, v4' % sr(S_T1))
    a.i('s_cmp_eq_u32 %s, %s' % (sr(S_T1), sr(S_T2)))
    a.i('s_cbranch_scc0 L_nopub')
    a.i('buffer_store_dword v3, v2, %s, %s offen sc1' % (sr(SRD_FG, 4), sr(S_T0)))
    a.label('L_nopub')
    stamp(a)
    NJ = 1 if flag('r5') else 2
    a.i('s_cmp_ge_u32 %s, %d' % (sr(S_WAVE), 6 if flag('r5') else 3))
    a.i('s_cbranch_scc1 L_fin')
    SRD_R, SRD_OUT = 36, 40
    SEEN, NEW = 63, 64
    a.i('s_mul_i32 %s, %s, %d' % (sr(S_T0), sr(S_GRP), 16 * 71680))
    build_srd(a, SRD_R, S_WS, S_T0, 16 * 71680)
    build_srd(a, SRD_OUT, S_OUT, None, 1280 * 448 * 2)
    a.i('v_and_b32 v3, 15, %s' % vr(V_LANE))
    a.i('v_mul_u32_u24 v3, 896, v3')
    a.i('v_lshrrev_b32 v4, 4, %s' % vr(V_LANE))
    a.i('v_lshl_add_u32 v3, v4, 3, v3')
    a.i('v_lshlrev_b32 v2, 4, %s' % vr(V_LANE))
    LDA = [2, 5]
    STA = [3, 6]
    F, CG, AP = 59, 60, 61
    SH = [65, 66]
    PEND_ = 67
    for j in ((1, 0) if NJ == 2 else (0,)):
        a.i('s_add_u32 %s, %s, %d' % (sr(F), sr(S_CG), 3 * j))
        a.i('s_lshl_b32 %s, %s, 4' % (sr(F), sr(F)))
        a.i('s_add_u32 %s, %s, %s' % (sr(F), sr(F), sr(S_H)))
        a.i('s_mul_i32 %s, %s, 205' % (sr(CG), sr(F)))
        a.i('s_lshr_b32 %s, %s, 11' % (sr(CG), sr(CG)))
        a.i('s_mul_i32 %s, %s, 10' % (sr(AP), sr(CG)))
        a.i('s_sub_u32 %s, %s, %s' % (sr(AP), sr(F), sr(AP)))
        a.i('s_lshr_b32 %s, %s, 1' % (sr(S_T0), sr(AP)))
        a.i('s_lshl_b32 %s, %s, 4' % (sr(S_T0), sr(S_T0)))
        a.i('s_mul_i32 %s, %s, 80' % (sr(S_T1), sr(S_GRP)))
        a.i('s_add_u32 %s, %s, %s' % (sr(S_T1), sr(S_T1), sr(S_T0)))
        a.i('s_mul_i32 %s, %s, 896' % (sr(S_T1), sr(S_T1)))
        a.i('s_lshl_b32 %s, %s, 7' % (sr(CG), sr(CG)))
        a.i('s_add_u32 %s, %s, %s' % (sr(S_T1), sr(S_T1), sr(CG)))
        a.i('s_and_b32 %s, %s, 1' % (sr(AP), sr(AP)))
        a.i('s_lshl_b32 %s, %s, 6' % (sr(AP), sr(AP)))
        a.i('s_add_u32 %s, %s, %s' % (sr(S_T1), sr(S_T1), sr(AP)))
        a.i('s_lshl_b32 %s, %s, 10' % (sr(S_T0), sr(F)))
        a.i('s_cmp_ge_u32 %s, 30' % sr(F))
        a.i('s_cselect_b32 %s, 16, 0' % sr(SH[j]))
        a.i('s_cmp_ge_u32 %s, 70' % sr(F))
        a.i('s_cselect_b32 %s, 0x40000000, %s' % (sr(S_T0), sr(S_T0)))
        a.i('s_cselect_b32 %s, 0x40000000, %s' % (sr(S_T1), sr(S_T1)))
        a.i('v_add_u32 %s, %s, v2' % (vr(LDA[j]), sr(S_T0)))
        a.i('v_add_u32 %s, %s, v3' % (vr(STA[j]), sr(S_T1)))
    a.i('s_mov_b32 %s, 0' % sr(SEEN))
    a.i('s_mov_b32 %s, 0' % sr(PEND_))
    a.i('s_mov_b32 %s, 0x400000' % sr(S_T1))
    RB = lambda j, h: 32 + j * 64 + 4 * h
    AC = lambda j, k: 16 + j * 8 + k
    for k in range(16):
        a.i('v_mov_b32 v%d, 0' % (16 + k))
    a.i('v_mov_b32 v8, 0x3f80')
    a.i('v_mov_b32 v9, 0x3f800000')
    a.label('L_rpoll')
    a.i('ds_read_b32 v4, v7')
    a.i('s_waitcnt lgkmcnt(0)')
    a.i('v_readfirstlane_b32 %s, v4' % sr(S_T2))
    a.i('s_lshr_b32 %s, %s, 16' % (sr(NEW), sr(S_T2)))
    a.i('s_and_b32 %s, %s, %s' % (sr(NEW), sr(NEW), sr(S_T2)))
    if flag('rown'):
        a.i('s_bitcmp1_b32 %s, %s' % (sr(NEW), sr(S_H)))
        a.i('s_cbranch_scc0 L_rnone')
    if opt('rmin'):
        a.i('s_bcnt1_i32_b32 %s, %s' % (sr(S_T2), sr(NEW)))
        a.i('s_cmp_ge_u32 %s, %s' % (sr(S_T2), opt('rmin')))
        a.i('s_cbranch_scc0 L_rnone')
    a.i('s_andn2_b32 %s, %s, %s' % (sr(NEW), sr(NEW), sr(SEEN)))
    a.i('s_cbranch_scc0 L_rnone')
    for h in range(16):
        a.i('s_bitcmp1_b32 %s, %d' % (sr(NEW), h))
        a.i('s_cbranch_scc0 L_rskip%d' % h)
        a.i('s_mov_b32 %s, %d' % (sr(S_T0), h * 71680))
        for j in range(NJ):
            a.i('buffer_load_dwordx4 %s, %s, %s, %s offen sc1' % (vr(RB(j, h), 4), vr(LDA[j]), sr(SRD_R, 4), sr(S_T0)))
        a.label('L_rskip%d' % h)
    a.i('s_or_b32 %s, %s, %s' % (sr(SEEN), sr(SEEN), sr(NEW)))
    a.i('s_cmp_eq_u32 %s, 0xffff' % sr(SEEN))
    a.i('s_cbranch_scc1 L_rsum')
    a.label('L_rnone')
    a.i('s_sleep 1')
    a.i('s_sub_u32 %s, %s, 1' % (sr(S_T1), sr(S_T1)))
    a.i('s_cmp_lg_u32 %s, 0' % sr(S_T1))
    a.i('s_cbranch_scc1 L_rpoll')
    a.label('L_rsum')
    a.i('s_waitcnt vmcnt(0)')
    for h in range(16):
        for j in range(NJ):
            for r in range(4):
                a.i('v_dot2c_f32_bf16 %s, %s, v8' % (vr(AC(j, 2 * r)), vr(RB(j, h) + r)))
                a.i('v_dot2c_f32_bf16 %s, %s, v9' % (vr(AC(j, 2 * r + 1)), vr(RB(j, h) + r)))
    a.label('L_rall')
    stamp(a)
    a.i('s_nop 3')
    for j in range(NJ):
        for r in range(4):
            a.i('v_cvt_pk_bf16_f32 %s, %s, %s' % (vr(32 + 4 * j + r), vr(AC(j, 2 * r)), vr(AC(j, 2 * r + 1))))
        a.i('buffer_store_dwordx2 %s, %s, %s, 0 offen' % (vr(32 + 4 * j, 2), vr(STA[j]), sr(SRD_OUT, 4)))
        a.i('buffer_store_dwordx2 %s, %s, %s, 0 offen offset:32' % (vr(34 + 4 * j, 2), vr(STA[j]), sr(SRD_OUT, 4)))
    a.label('L_fin')
    stamp_flush(a)
    a.label('L_end')
    a.i('s_endpgm')
    a.reset()
    a.label('L_ppf')
    a.i('v_lshlrev_b32 %s, 7, %s' % (vr(G_T[1]), vr(V_LANE)))
    a.i('v_cmp_gt_u32 vcc, 28, %s' % vr(V_LANE))
    a.i('v_mov_b32 %s, 0x7fffffff' % vr(G_T[0]))
    a.i('v_cndmask_b32 %s, %s, %s, vcc' % (vr(G_T[1]), vr(G_T[0]), vr(G_T[1])))
    a.i('buffer_load_dword %s, %s, %s, %s offen' % (vr(G_T[0]), vr(G_T[1]), sr(SRD_WO, 4), sr(S_PFO)))
    a.i('s_branch L_ppfj')
    a.reset()
    a.label('L_psw')
    switch_to_wo(a, GT)
    a.i('s_branch L_pswj')
    a.reset()
    for tag in pv_sync:
        a.label('L_psync_%s' % tag)
        a.i('s_barrier')
        a.i('s_mov_b32 %s, 1' % sr(S_PEND2))
        a.i('s_branch L_psyncj_%s' % tag)
        a.reset()
    for tag, par in pv_rare:
        a.label('L_prare_%s' % tag)
        a.i('ds_read_b128 %s, %s offset:%d' % (vr(G_AL, 4), vr(G_ALA), AL - SM + par * 512))
        a.i('ds_read_b32 %s, %s offset:%d' % (vr(G_AL + 4), vr(G_ALA), AL - SM + par * 512 + 16))
        a.i('s_waitcnt lgkmcnt(0)')
        a.fence(10)
        for ai in range(4):
            for i in range(5):
                for r in range(4):
                    R = ACC_O(ai, i) + r
                    a.i('v_mul_f32 %s, %s, %s' % (vr(R), vr(R), vr(G_AL + i)))
        a.fence(4)
        a.i('s_branch L_pjoin_%s' % tag)
        a.reset()
    a.label('L_code_end')


HEADER = """; Kernarg layout for this problem (64 bytes, ptrs only, base s[0:1]):
;   offset   0: d_in[0] x  shape=(8, 160, 448) dtype=bfloat16
;   offset   8: d_in[1] k_cache  shape=(8, 8, 1024, 256) dtype=bfloat16
;   offset  16: d_in[2] v_cache  shape=(8, 8, 1024, 256) dtype=bfloat16
;   offset  24: d_in[3] wq  shape=(448, 4096) dtype=bfloat16
;   offset  32: d_in[4] wo  shape=(4096, 448) dtype=bfloat16
;   offset  40: d_out     shape=(8, 160, 448) dtype=bfloat16
;   offset  48: d_debug   256 bytes
;   offset  56: d_ws      268435456 bytes workspace
; Generated by my own generator script (gen/gen3.py).
; @launch grid=(256,1,1) block=(512,1,1) lds=%d
.amdgcn_target "amdgcn-amd-amdhsa--gfx950"
.text
""" % LDS_BYTES


def kd(name, vgpr, sgpr):
    return """.amdhsa_kernel %s
  .amdhsa_next_free_vgpr %d
  .amdhsa_next_free_sgpr %d
  .amdhsa_accum_offset %d
  .amdhsa_group_segment_fixed_size 0
  .amdhsa_kernarg_size 64
  .amdhsa_user_sgpr_count 2
  .amdhsa_user_sgpr_kernarg_segment_ptr 1
  .amdhsa_system_sgpr_workgroup_id_x 1
.end_amdhsa_kernel
""" % (name, vgpr, sgpr, (vgpr + 3) // 4 * 4)


def main():
    out = ARGS[0] if ARGS and not ARGS[0].startswith('--') else 'standalone__gqa_block_cached__near_ridge.s'
    a = Asm()
    gen_main(a, 'standalone__gqa_block_cached__near_ridge_kernel')
    txt = HEADER + a.text() + '.section .rodata,"a"\n.p2align 6\n' + kd('standalone__gqa_block_cached__near_ridge_kernel', 256, 100)
    open(out, 'w').write(txt)
    print('wrote', out, a.nins, 'instructions')


if __name__ == '__main__':
    main()
```

```python
import sys
from asmlib import Asm, vr, sr
src, dst, mode = sys.argv[1:4]
wave, i1, i2, mult = [int(x) for x in sys.argv[4:8]]
a = Asm(); a.auto_lgkm = False
name = 'diag_kernel'
a.raw('.text\n.globl %s\n.p2align 8\n.type %s,@function' % (name, name))
a.label(name)
a.i('s_cmp_lg_u32 s2, 0')
a.i('s_cbranch_scc1 D_end')
a.i('s_load_dwordx2 s[4:5], s[0:1], 56')
a.i('s_waitcnt lgkmcnt(0)')
a.i('s_add_u32 s4, s4, %d' % (128 << 20))
a.i('s_addc_u32 s5, s5, 0')
a.i('s_mov_b32 s8, s4'); a.i('s_mov_b32 s9, s5'); a.i('s_mov_b32 s10, %d' % (2048 * 256)); a.i('s_mov_b32 s11, 0x20000')
a.i('v_lshlrev_b32 v1, 11, v0')
a.i('buffer_load_dword v2, v1, s[8:11], 0 offen offset:%d' % (4 * 256 + 62 * 4))
a.i('buffer_load_dword v3, v1, s[8:11], 0 offen offset:%d' % (wave * 256 + i1 * 4))
a.i('buffer_load_dword v4, v1, s[8:11], 0 offen offset:%d' % (wave * 256 + i2 * 4))
a.i('s_waitcnt vmcnt(0)')
a.i('v_lshlrev_b32 v5, 4, v0')
a.i('ds_write_b128 v5, v[2:5]')
a.i('s_waitcnt lgkmcnt(0)')
a.i('s_barrier')
a.i('v_cmp_gt_u32 vcc, 64, v0')
a.i('s_cbranch_vccz D_end')
a.i('v_mov_b32 v6, 0')
a.i('ds_read_b128 v[8:11], v6')
a.i('s_waitcnt lgkmcnt(0)')
a.i('v_readfirstlane_b32 s20, v8')
a.i('s_sub_u32 s20, s20, 100000')
a.i('s_mov_b32 s21, 0')
a.i('s_mov_b32 s22, -1')
a.i('s_mov_b32 s23, 0')
a.i('s_mov_b32 s24, 0')
a.label('D_loop')
a.i('v_mov_b32 v6, s24')
a.i('ds_read_b128 v[8:11], v6')
a.i('s_waitcnt lgkmcnt(0)')
a.i('v_readfirstlane_b32 s25, v8')
a.i('v_readfirstlane_b32 s26, v9')
a.i('v_readfirstlane_b32 s27, v10')
a.i('s_nop 3')
a.i('s_sub_u32 s28, s27, s26')
a.i('s_add_u32 s21, s21, s28')
a.i('s_sub_u32 s25, s25, s20')
a.i('s_min_u32 s22, s22, s25')
a.i('s_sub_u32 s27, s27, s20')
a.i('s_max_u32 s23, s23, s27')
a.i('s_add_u32 s24, s24, 16')
a.i('s_cmp_lt_u32 s24, 4096')
a.i('s_cbranch_scc1 D_loop')
if mode == 'diff':
    a.i('s_lshr_b32 s30, s21, 8')
else:
    a.i('s_sub_u32 s30, s23, s22')
a.i('s_min_u32 s30, s30, 20000')
a.i('s_mul_i32 s30, s30, %d' % mult)
a.i('s_memrealtime s[32:33]')
a.i('s_waitcnt lgkmcnt(0)')
a.label('D_spin')
a.i('s_memrealtime s[34:35]')
a.i('s_waitcnt lgkmcnt(0)')
a.i('s_sub_u32 s36, s34, s32')
a.i('s_cmp_lt_u32 s36, s30')
a.i('s_cbranch_scc1 D_spin')
a.label('D_end')
a.i('s_endpgm')
s = open(src).read()
l1 = [l for l in s.split('\n') if l.startswith('; @launch')][0]
lk = l1.replace('@launch grid', '@launch kernel=standalone__gqa_block_cached__near_ridge_kernel grid')
s = s.replace(l1, lk + '\n; @launch kernel=diag_kernel grid=(1,1,1) block=(256,1,1) lds=4096')
i = s.index('.section .rodata')
s = s[:i] + a.text() + s[i:] + '''.p2align 6
.amdhsa_kernel diag_kernel
  .amdhsa_next_free_vgpr 16
  .amdhsa_next_free_sgpr 40
  .amdhsa_accum_offset 16
  .amdhsa_group_segment_fixed_size 0
  .amdhsa_kernarg_size 64
  .amdhsa_user_sgpr_count 2
  .amdhsa_user_sgpr_kernarg_segment_ptr 1
  .amdhsa_system_sgpr_workgroup_id_x 1
.end_amdhsa_kernel
'''
open(dst, 'w').write(s)
```

```python
import struct, sys, math
from asmlib import Asm, vr, sr

ARGS = sys.argv[1:]
def opt(name, default=None):
    for x in ARGS:
        if x.startswith('--' + name + '='):
            return x.split('=', 1)[1]
    return default
def flag(name):
    return ('--' + name) in ARGS

K1 = 1024
SLOT = 32 * K1
VR0 = 64 * K1
PB = 128 * K1
SM = 152 * K1
FL = SM
AL = SM + 512
RM = SM + 1536
MW = SM + 4100
OB = 88 * K1
O_OFF = lambda i: (40 * K1 + i * 8192) if i < 3 else (i - 3) * 32 * K1
WSLOT = [96 * K1, 64 * K1, 32 * K1]
XSLOT = [128 * K1, 138 * K1, 148 * K1]
QB = 96 * K1
LDS_BYTES = 160 * K1
FLAG_BASE = 64 << 20


def f32hex(x):
    return '0x%08x' % struct.unpack('<I', struct.pack('<f', x))[0]


CSCALE = math.log2(math.e) / 16.0
THR = 8.0

S_X, S_K, S_V, S_WQ, S_WO, S_OUT, S_DBG, S_WS = 4, 6, 8, 10, 12, 14, 16, 18
S_WAVE, S_W, S_B, S_HKV, S_H, S_GRP = 20, 21, 22, 23, 24, 25
S_T0, S_T1, S_T2, S_T3 = 26, 27, 28, 29
S_C = 30
SRD_ST, SRD_WQ, SRD_X, SRD_WO, SRD_PO = 32, 36, 40, 44, 48
S_SOFF, S_STEPU, S_TSTR, S_RING, S_P, S_WBASE = 52, 53, 54, 55, 56, 57
S_CG = 58
S_XL = [59, 60, 61]
S_XG = [62, 63, 64]
S_WCUR, S_WN1, S_WN2, S_XCUR, S_XN1, S_XN2 = 65, 66, 67, 68, 69, 70
S_WQOFF = 71
S_PEND, S_PEND2, S_PFO, S_V0OFF = 80, 81, 82, 83
SRD_AUX = 84
S_SEQ = 90
SRD_FG = 92

V_LANE = 1
G_TA = [2, 3, 4, 5]
G_UB = [6, 7]
V_PAT = [8, 9]
G_FLA = 10
G_ALA = 11
G_AL = 12
W_A = lambda tau, e, a: 128 + ((tau * 2 + e) * 4 + a) * 4
W_B = lambda buf, ks: 64 + buf * 32 + ks * 4
W_ACC = lambda buf, a: 24 + buf * 16 + a * 4
G_T = [17, 18, 19, 20, 21, 22, 23]
G_BF = lambda e, i: 72 + e * 20 + i * 4
G_AF = lambda e, a: 112 + e * 16 + a * 4
ACC_O = lambda a, i: 176 + (a * 5 + i) * 4


def ACC_W(a, i):
    k = a * 5 + i
    return 144 + k * 4 if k < 8 else 24 + (k - 8) * 4


Q_UA = [2, 3]
Q_PWA = 4
Q_FLA = 5
Q_T = [6, 7, 18, 16, 17, 18, 19]
Q_PWA2 = 10
Q_L = 11
Q_MQ = lambda i: 20 + 4 * i
Q_KF = lambda k: 40 + k * 4
Q_S = lambda par, i: 56 + par * 20 + i * 4
Q_Q = lambda i, s: 96 + (i * 8 + s) * 4

MFMA = 'v_mfma_f32_16x16x32_bf16'
STAMPS = flag('stamps')
ROLE = ['q']
PD = [int(x) for x in opt('pdma', '10,13,16,19,10,13,16,19').split(',')]
QD = [int(x) for x in opt('qdma', '3,8,16,21,26,29,33,37').split(',')]


def stamp(a):
    if not STAMPS:
        return
    a.i('s_memrealtime s[72:73]' if flag('rt') else 's_memtime s[72:73]')
    a.i('s_waitcnt lgkmcnt(0)')
    a.i('s_mov_b32 m0, s74')
    a.i('s_nop 0')
    a.i('v_writelane_b32 v0, s72, m0')
    a.i('s_add_u32 s74, s74, 1')


def barrier(a):
    if flag('pre'):
        stamp(a)
    a.i('s_barrier')
    stamp(a)


def stamp_init(a):
    if not STAMPS:
        return
    a.i('s_mov_b32 s74, 0')
    a.i('s_lshl_b32 s75, s2, 3')
    a.i('s_add_u32 s75, s75, %s' % sr(S_WAVE))
    a.i('s_lshl_b32 s75, s75, 8')
    a.i('s_add_u32 s75, s75, %d' % (128 << 20))
    a.i('s_add_u32 s76, %s, s75' % sr(S_WS))
    a.i('s_addc_u32 s77, %s, 0' % sr(S_WS + 1))
    a.i('s_mov_b32 s78, 256')
    a.i('s_mov_b32 s79, 0x20000')
    a.i('v_mov_b32 v0, 0')
    a.i('v_writelane_b32 v0, s98, 62')
    stamp(a)


def stamp_flush(a):
    if not STAMPS:
        return
    a.i('s_waitcnt vmcnt(0)')
    stamp(a)
    a.i('s_memrealtime s[72:73]')
    a.i('s_waitcnt lgkmcnt(0)')
    a.i('v_writelane_b32 v0, s72, 63')
    a.i('v_lshlrev_b32 v2, 2, %s' % vr(V_LANE))
    a.i('buffer_store_dword v0, v2, s[76:79], 0 offen')


def mfma(a, d, A, B, c=None):
    a.i('%s %s, %s, %s, %s' % (MFMA, vr(d, 4), vr(A, 4), vr(B, 4), vr(d, 4) if c is None else c))


def build_srd(a, srd, ptr, off_sgpr, nrec):
    if off_sgpr is None:
        a.i('s_mov_b32 %s, %s' % (sr(srd), sr(ptr)))
        a.i('s_mov_b32 %s, %s' % (sr(srd + 1), sr(ptr + 1)))
    else:
        a.i('s_add_u32 %s, %s, %s' % (sr(srd), sr(ptr), sr(off_sgpr)))
        a.i('s_addc_u32 %s, %s, 0' % (sr(srd + 1), sr(ptr + 1)))
    a.i('s_mov_b32 %s, %s' % (sr(srd + 2), nrec))
    a.i('s_mov_b32 %s, 0x20000' % sr(srd + 3))


def pat_U(a, dst, tmp, R, sub=True):
    t0, t1 = tmp
    a.i('v_lshrrev_b32 %s, 3, %s' % (vr(t1), vr(V_LANE)))
    a.i('v_and_b32 %s, 7, %s' % (vr(t0), vr(V_LANE)))
    a.i('v_xor_b32 %s, %s, %s' % (vr(t0), vr(t0), vr(t1)))
    a.i('v_lshlrev_b32 %s, 4, %s' % (vr(t0), vr(t0)))
    a.i('v_mul_u32_u24 %s, %d, %s' % (vr(t1), R, vr(t1)))
    a.i('v_add_u32 %s, %s, %s' % (vr(dst[0]), vr(t0), vr(t1)))
    a.i('v_add_u32 %s, %d, %s' % (vr(dst[1]), 8 * R - (1024 if sub else 0), vr(dst[0])))


def pat_T(a, dst, tmp, R):
    t0, t1 = tmp
    a.i('v_lshrrev_b32 %s, 3, %s' % (vr(t0), vr(V_LANE)))
    a.i('v_and_b32 %s, 2, %s' % (vr(t0), vr(t0)))
    a.i('v_and_b32 %s, 7, %s' % (vr(t1), vr(V_LANE)))
    a.i('v_xor_b32 %s, %s, %s' % (vr(t0), vr(t0), vr(t1)))
    a.i('v_lshlrev_b32 %s, 4, %s' % (vr(t0), vr(t0)))
    a.i('v_lshrrev_b32 %s, 3, %s' % (vr(t1), vr(V_LANE)))
    a.i('v_mul_u32_u24 %s, %d, %s' % (vr(t1), R, vr(t1)))
    a.i('v_add_u32 %s, %s, %s' % (vr(dst[0]), vr(t0), vr(t1)))
    a.i('v_xor_b32 %s, 64, %s' % (vr(t0), vr(t0)))
    a.i('v_add_u32 %s, %s, %s' % (vr(dst[1]), vr(t0), vr(t1)))
    a.i('v_add_u32 %s, %d, %s' % (vr(dst[1]), 8 * R - 1024, vr(dst[1])))


def addr_U_read(a, dst, tmp):
    t0, t1 = tmp
    a.i('v_and_b32 %s, 15, %s' % (vr(t0), vr(V_LANE)))
    a.i('v_and_b32 %s, 7, %s' % (vr(t1), vr(V_LANE)))
    a.i('v_lshlrev_b32 %s, 7, %s' % (vr(t0), vr(t0)))
    a.i('v_lshrrev_b32 %s, 4, %s' % (vr(dst[0]), vr(V_LANE)))
    a.i('v_xor_b32 %s, %s, %s' % (vr(t1), vr(t1), vr(dst[0])))
    a.i('v_lshlrev_b32 %s, 4, %s' % (vr(t1), vr(t1)))
    a.i('v_add_u32 %s, %s, %s' % (vr(dst[0]), vr(t0), vr(t1)))
    a.i('v_xor_b32 %s, 64, %s' % (vr(dst[1]), vr(dst[0])))


def addr_T_read(a, dst, tmp):
    t0, t1 = tmp
    a.i('v_lshrrev_b32 %s, 4, %s' % (vr(t0), vr(V_LANE)))
    a.i('v_lshlrev_b32 %s, 10, %s' % (vr(t0), vr(t0)))
    a.i('v_bfe_u32 %s, %s, 2, 2' % (vr(t1), vr(V_LANE)))
    a.i('v_lshlrev_b32 %s, 7, %s' % (vr(t1), vr(t1)))
    a.i('v_add_u32 %s, %s, %s' % (vr(t0), vr(t0), vr(t1)))
    a.i('v_and_b32 %s, 3, %s' % (vr(t1), vr(V_LANE)))
    a.i('v_lshlrev_b32 %s, 3, %s' % (vr(t1), vr(t1)))
    a.i('v_add_u32 %s, %s, %s' % (vr(t0), vr(t0), vr(t1)))
    a.i('v_bfe_u32 %s, %s, 3, 2' % (vr(t1), vr(V_LANE)))
    a.i('v_lshlrev_b32 %s, 5, %s' % (vr(t1), vr(t1)))
    a.i('v_add_u32 %s, %s, %s' % (vr(dst), vr(t0), vr(t1)))


def set_TA(base_sgpr, lane_v):
    out = ['v_add_u32 %s, %s, %s' % (vr(G_TA[0]), sr(base_sgpr), vr(lane_v))]
    for k in (1, 2, 3):
        out.append('v_xor_b32 %s, %d, %s' % (vr(G_TA[k]), 32 * k, vr(G_TA[0])))
    return out


def next_tile():
    return ['s_and_b32 %s, %s, 15' % (sr(S_SOFF), sr(S_SEQ)),
            's_lshr_b64 %s, %s, 4' % (sr(S_SEQ, 2), sr(S_SEQ, 2)),
            's_mul_i32 %s, %s, %s' % (sr(S_SOFF), sr(S_SOFF), sr(S_TSTR)),
            's_add_u32 %s, %s, %s' % (sr(S_SOFF), sr(S_SOFF), sr(S_WBASE))]


def dma_unit(par, u):
    if flag('nodma'):
        return ['s_nop 0'] * 4
    return [
        's_add_u32 m0, %s, %d' % (sr(S_RING), par * SLOT + u * 2048),
        'buffer_load_dwordx4 %s, %s, %s offen lds' % (vr(V_PAT[0]), sr(SRD_ST, 4), sr(S_SOFF)),
        'buffer_load_dwordx4 %s, %s, %s offen offset:1024 lds' % (vr(V_PAT[1]), sr(SRD_ST, 4), sr(S_SOFF)),
    ] + (next_tile() if u == 3 else ['s_add_u32 %s, %s, %s' % (sr(S_SOFF), sr(S_SOFF), sr(S_STEPU))])


def place_dma(fill, par, u, m_a, m_b):
    d = dma_unit(par, u)
    fill.setdefault(m_a - 1, []).append(d[0])
    fill.setdefault(m_a, []).append(d[1])
    fill.setdefault(m_b, []).extend(d[2:])


def seq_of(kind, j, o):
    if kind == 'w4o':
        return [(((p + o) >> 2) & 3) * 4 + ((p + o + j) & 3) for p in range(16)]
    if kind == 'lock':
        return list(range(16))
    if kind.startswith('w3'):
        base = []
        for w in range(5):
            jj = j if j < 3 else (w % 3 if 'r' in kind else 0)
            base += [3 * w + (k + jj) % 3 for k in range(3)]
        base.append(15)
        oo = o % 3 if 'o' in kind else 0
        return base[oo:] + base[:oo]
    if kind.startswith('w2'):
        base = []
        for w in range(8):
            base += [2 * w + (k + j) % 2 for k in range(2)]
        oo = o % 2 if 'o' in kind else 0
        return base[oo:] + base[:oo]
    if kind.startswith('w5'):
        base = []
        st = 0
        for W in (5, 5, 6):
            base += [st + (k + j) % W for k in range(W)]
            st += W
        return base[o:] + base[:o]
    raise ValueError(kind)


def seq_init(a):
    kind = opt('seq', 'w4o')
    a.i('s_bfe_u32 %s, s2, 0x40003' % sr(S_T0))
    done = {}
    for sel in range(16):
        seq = seq_of(kind, sel & 3, sel >> 2)
        assert sorted(seq) == list(range(16))
        v = sum(t << (4 * k) for k, t in enumerate(seq))
        if sel == 0:
            a.i('s_mov_b32 %s, 0x%x' % (sr(S_SEQ), v & 0xffffffff))
            a.i('s_mov_b32 %s, 0x%x' % (sr(S_SEQ + 1), v >> 32))
            v0 = v
        elif v != v0:
            a.i('s_cmp_eq_u32 %s, %d' % (sr(S_T0), sel))
            a.i('s_cselect_b32 %s, 0x%x, %s' % (sr(S_SEQ), v & 0xffffffff, sr(S_SEQ)))
            a.i('s_cselect_b32 %s, 0x%x, %s' % (sr(S_SEQ + 1), v >> 32, sr(S_SEQ + 1)))
    a.i('s_mov_b32 %s, 32768' % sr(S_TSTR))


def switch_to_wo(a, tmp):
    for k in range(3):
        a.i('s_mov_b32 %s, %s' % (sr(SRD_ST + k), sr(SRD_WO + k)))
    a.i('s_lshl_b32 %s, %s, 7' % (sr(S_SOFF), sr(S_CG)))
    a.i('s_mov_b32 %s, %s' % (sr(S_WBASE), sr(S_SOFF)))
    a.i('s_mov_b32 %s, %d' % (sr(S_STEPU), 16 * 896))
    a.i('s_mov_b32 %s, %d' % (sr(S_TSTR), 64 * 896))
    a.i('s_mov_b32 %s, 0x4321' % sr(S_SEQ))
    pat_T(a, V_PAT, tmp, 896)


def run_stream(a, mf, fill):
    def emit(lst):
        for x in lst:
            if callable(x):
                x()
            else:
                a.i(x)
    for m in sorted(k for k in fill if k < 0):
        emit(fill[m])
    for m, f in enumerate(mf):
        f()
        emit(fill.get(m, []))
    for m in sorted(k for k in fill if k >= len(mf)):
        emit(fill[m])


def spread(fill, items, m0, m1):
    n = len(items)
    span = m1 - m0 + 1
    for k, it in enumerate(items):
        m = m0 + (k * span) // n
        fill.setdefault(m, []).append(it)


def a_reads(e_dst, imm):
    out = []
    for ai in range(4):
        for hh in range(2):
            out.append('ds_read_b64_tr_b16 %s, %s offset:%d' % (vr(G_AF(e_dst, ai) + 2 * hh, 2), vr(G_TA[ai]), imm + hh * 512))
    return out


def b_reads(e, src_of_i):
    out = []
    for i in range(5):
        regs, imm = src_of_i(i)
        out.append('ds_read_b128 %s, %s offset:%d' % (vr(G_BF(e, i), 4), vr(regs[e]), imm))
    return out


def half_mfmas(a, acc, e, order=None):
    order = order or [(ai, i) for ai in range(4) for i in range(5)]
    return [(lambda ai=ai, i=i: mfma(a, acc(ai, i), G_AF(e, ai), G_BF(e, i))) for (ai, i) in order]


def xreduce(a, op, v, t):
    a.i('v_mov_b32 %s, %s' % (vr(t), vr(v)))
    a.i('v_permlane32_swap_b32 %s, %s' % (vr(v), vr(t)))
    a.i('%s %s, %s, %s' % (op, vr(v), vr(v), vr(t)))
    a.i('v_mov_b32 %s, %s' % (vr(t), vr(v)))
    a.i('v_permlane16_swap_b32 %s, %s' % (vr(v), vr(t)))
    a.i('%s %s, %s, %s' % (op, vr(v), vr(v), vr(t)))


def rm_addr_ops(ad4, adw, t5):
    return ['v_and_b32 %s, 15, %s' % (vr(ad4), vr(V_LANE)),
            'v_lshlrev_b32 %s, 7, %s' % (vr(ad4), vr(ad4)),
            's_lshl_b32 %s, %s, 2' % (sr(S_T0), sr(S_W)),
            's_add_u32 %s, %s, %d' % (sr(S_T0), sr(S_T0), RM),
            'v_add_u32 %s, %s, %s' % (vr(ad4), sr(S_T0), vr(ad4)),
            'v_bfe_u32 %s, %s, 4, 1' % (vr(adw), vr(V_LANE)),
            'v_lshlrev_b32 %s, 5, %s' % (vr(adw), vr(adw)),
            'v_lshrrev_b32 %s, 5, %s' % (vr(t5), vr(V_LANE)),
            'v_lshlrev_b32 %s, 4, %s' % (vr(t5), vr(t5)),
            'v_add3_u32 %s, %s, %s, %s' % (vr(adw), vr(adw), vr(t5), vr(ad4))]


def rm_reduce_write(a, op, M, t5, ad4, adw):
    a.i('v_permlane32_swap_b32 %s, %s' % (vr(M[0]), vr(M[1])))
    a.i('v_permlane32_swap_b32 %s, %s' % (vr(M[2]), vr(M[3])))
    a.i('%s %s, %s, %s' % (op, vr(M[0]), vr(M[0]), vr(M[1])))
    a.i('%s %s, %s, %s' % (op, vr(M[2]), vr(M[2]), vr(M[3])))
    xreduce(a, op, M[4], t5)
    a.i('v_permlane16_swap_b32 %s, %s' % (vr(M[0]), vr(M[2])))
    a.i('%s %s, %s, %s' % (op, vr(M[0]), vr(M[0]), vr(M[2])))
    a.i('ds_write_b32 %s, %s offset:64' % (vr(ad4), vr(M[4])))
    a.i('ds_write_b32 %s, %s' % (vr(adw), vr(M[0])))


def gen_main(a, name):
    a.raw('.globl %s' % name)
    a.raw('.p2align 8')
    a.raw('.type %s,@function' % name)
    a.label(name)
    if STAMPS:
        a.i('s_memrealtime s[98:99]')
    a.i('s_cmp_ge_u32 s2, 256')
    a.i('s_cbranch_scc1 L_end')
    a.i('s_load_dwordx16 s[4:19], s[0:1], 0')
    a.i('v_and_b32 %s, 63, v0' % vr(V_LANE))
    a.i('v_lshrrev_b32 v2, 6, v0')
    a.i('v_readfirstlane_b32 %s, v2' % sr(S_WAVE))
    a.i('s_and_b32 %s, s2, 7' % sr(S_HKV))
    a.i('s_lshr_b32 %s, s2, 5' % sr(S_B))
    a.i('s_bfe_u32 %s, s2, 0x10004' % sr(S_T0))
    a.i('s_bfe_u32 %s, s2, 0x10003' % sr(S_T1))
    a.i('s_lshl_b32 %s, %s, 1' % (sr(S_H), sr(S_HKV)))
    a.i('s_add_u32 %s, %s, %s' % (sr(S_H), sr(S_H), sr(S_T0)))
    a.i('s_lshl_b32 %s, %s, 1' % (sr(S_GRP), sr(S_B)))
    a.i('s_add_u32 %s, %s, %s' % (sr(S_GRP), sr(S_GRP), sr(S_T1)))
    a.i('s_and_b32 %s, %s, 3' % (sr(S_W), sr(S_WAVE)))
    a.i('s_cmp_ge_u32 %s, 4' % sr(S_WAVE))
    a.i('s_cbranch_scc1 L_pv')

    def common_srds():
        a.i('s_mul_i32 %s, %s, %d' % (sr(S_T0), sr(S_H), 229376))
        build_srd(a, SRD_WO, S_WO, S_T0, 229376)
        a.i('s_lshl_b32 %s, %s, 4' % (sr(S_T0), sr(S_GRP)))
        a.i('s_add_u32 %s, %s, %s' % (sr(S_T0), sr(S_T0), sr(S_H)))
        a.i('s_mul_i32 %s, %s, %d' % (sr(S_T0), sr(S_T0), 71680))
        build_srd(a, SRD_PO, S_WS, S_T0, 71680)
        a.i('s_mul_i32 %s, %s, 4352' % (sr(S_T0), sr(S_GRP)))
        a.i('s_add_u32 %s, %s, %d' % (sr(S_T0), sr(S_T0), FLAG_BASE))
        build_srd(a, SRD_FG, S_WS, S_T0, 128)
        a.i('s_lshl_b32 %s, %s, 3' % (sr(S_T0), sr(S_B)))
        a.i('s_add_u32 %s, %s, %s' % (sr(S_T0), sr(S_T0), sr(S_HKV)))
        if flag('kvsame'):
            a.i('s_mov_b32 %s, %s' % (sr(S_T0), sr(S_HKV)))
        a.i('s_lshl_b32 %s, %s, 19' % (sr(S_T2), sr(S_T0)))

    LWQ = [100, 101]
    LX = [102, 103]
    LT = (104, 105)
    LV = [106, 107]
    pat_T(a, LWQ, LT, 8192)
    pat_U(a, LX, LT, 896, sub=False)
    a.i('s_and_b32 %s, %s, 1' % (sr(S_T0), sr(S_W)))
    a.i('s_cmp_eq_u32 %s, 1' % sr(S_T0))
    a.i('s_cselect_b64 vcc, -1, 0')
    a.i('v_cndmask_b32 %s, %s, %s, vcc' % (vr(LX[0]), vr(LX[0]), vr(LX[1])))
    a.i('s_add_u32 %s, %s, %s' % (sr(S_T0), sr(S_GRP), sr(S_H)))
    a.i('s_mul_i32 %s, %s, 37' % (sr(S_T1), sr(S_T0)))
    a.i('s_lshr_b32 %s, %s, 8' % (sr(S_T1), sr(S_T1)))
    a.i('s_mul_i32 %s, %s, 7' % (sr(S_T1), sr(S_T1)))
    a.i('s_sub_u32 %s, %s, %s' % (sr(S_P), sr(S_T0), sr(S_T1)))
    a.i('s_lshl_b32 %s, %s, 7' % (sr(S_T2), sr(S_P)))
    for k in range(3):
        a.i('s_add_u32 %s, %s, %d' % (sr(S_T0), sr(S_W), 4 * k))
        if k == 2:
            a.i('s_add_u32 %s, %s, 4' % (sr(S_T1), sr(S_W)))
            a.i('s_cmp_ge_u32 %s, 10' % sr(S_T0))
            a.i('s_cselect_b32 %s, %s, %s' % (sr(S_T0), sr(S_T1), sr(S_T0)))
        a.i('s_lshl_b32 %s, %s, 10' % (sr(S_XL[k]), sr(S_T0)))
        a.i('s_lshr_b32 %s, %s, 1' % (sr(S_T0), sr(S_T0)))
        a.i('s_mul_i32 %s, %s, %d' % (sr(S_XG[k]), sr(S_T0), 16 * 896))
        a.i('s_add_u32 %s, %s, %s' % (sr(S_XG[k]), sr(S_XG[k]), sr(S_T2)))
    a.i('s_lshl_b32 %s, %s, 7' % (sr(S_WQOFF), sr(S_W)))
    a.i('s_lshl_b32 %s, %s, 19' % (sr(S_T0), sr(S_P)))
    a.i('s_add_u32 %s, %s, %s' % (sr(S_WQOFF), sr(S_WQOFF), sr(S_T0)))
    a.i('s_lshl_b32 %s, %s, 13' % (sr(S_RING), sr(S_W)))
    a.i('s_lshl_b32 %s, %s, 9' % (sr(S_T0), sr(S_H)))
    a.i('s_sub_u32 %s, %d, %s' % (sr(S_T1), 448 * 8192, sr(S_T0)))
    a.i('s_mul_i32 %s, %s, %d' % (sr(S_T2), sr(S_GRP), 71680))
    a.i('s_waitcnt lgkmcnt(0)')
    build_srd(a, SRD_WQ, S_WQ, S_T0, sr(S_T1))
    build_srd(a, SRD_X, S_X, S_T2, 71680)

    def issue_tile(c):
        sl = c % 3
        for k in range(3):
            a.i('s_add_u32 m0, %s, %d' % (sr(S_XL[k]), XSLOT[sl]))
            a.i('buffer_load_dwordx4 %s, %s, %s offen lds' % (vr(LX[0]), sr(SRD_X, 4), sr(S_XG[k])))
            a.i('s_add_u32 %s, %s, 128' % (sr(S_XG[k]), sr(S_XG[k])))
        for u in range(4):
            a.i('s_add_u32 m0, %s, %d' % (sr(S_RING), WSLOT[sl] + u * 2048))
            a.i('buffer_load_dwordx4 %s, %s, %s offen lds' % (vr(LWQ[0]), sr(SRD_WQ, 4), sr(S_WQOFF)))
            a.i('buffer_load_dwordx4 %s, %s, %s offen offset:1024 lds' % (vr(LWQ[1]), sr(SRD_WQ, 4), sr(S_WQOFF)))
            a.i('s_add_u32 %s, %s, %d' % (sr(S_WQOFF), sr(S_WQOFF), 16 * 8192))
        if c < 6:
            a.i('s_add_u32 %s, %s, 1' % (sr(S_P), sr(S_P)))
            a.i('s_cmp_eq_u32 %s, 7' % sr(S_P))
            a.i('s_cselect_b32 s88, %d, 0' % (7 << 19))
            a.i('s_cselect_b32 s89, %d, 0' % (7 << 7))
            a.i('s_sub_u32 %s, %s, s88' % (sr(S_WQOFF), sr(S_WQOFF)))
            for k in range(3):
                a.i('s_sub_u32 %s, %s, s89' % (sr(S_XG[k]), sr(S_XG[k])))

    for c in range(2):
        issue_tile(c)
    stamp_init(a)
    common_srds()
    build_srd(a, SRD_ST, S_K, S_T2, 524288)
    build_srd(a, SRD_AUX, S_V, S_T2, 524288)
    a.i('s_mov_b32 %s, %s' % (sr(S_CG), sr(S_W)))
    T2 = (Q_T[0], Q_T[1])
    pat_U(a, V_PAT, T2, 512)
    pat_T(a, LV, LT, 512)
    a.i('s_lshl_b32 %s, %s, 13' % (sr(S_WBASE), sr(S_W)))
    seq_init(a)
    a.i('s_and_b32 %s, %s, 15' % (sr(S_V0OFF), sr(S_SEQ)))
    a.i('s_lshl_b32 %s, %s, 15' % (sr(S_V0OFF), sr(S_V0OFF)))
    a.i('s_lshl_b32 %s, %s, 7' % (sr(S_T0), sr(S_W)))
    a.i('s_add_u32 %s, %s, %s' % (sr(S_V0OFF), sr(S_V0OFF), sr(S_T0)))
    for x in next_tile():
        a.i(x)
    a.i('s_mov_b32 %s, 128' % sr(S_STEPU))
    t0, t1 = T2
    a.i('v_and_b32 %s, 15, %s' % (vr(t0), vr(V_LANE)))
    a.i('v_and_b32 %s, 7, %s' % (vr(t1), vr(V_LANE)))
    a.i('v_lshlrev_b32 %s, 7, %s' % (vr(t0), vr(t0)))
    a.i('v_lshrrev_b32 %s, 5, %s' % (vr(Q_PWA), vr(V_LANE)))
    a.i('v_xor_b32 %s, %s, %s' % (vr(t1), vr(t1), vr(Q_PWA)))
    a.i('v_lshlrev_b32 %s, 4, %s' % (vr(t1), vr(t1)))
    a.i('v_add_u32 %s, %s, %s' % (vr(t0), vr(t0), vr(t1)))
    a.i('s_lshl_b32 %s, %s, 5' % (sr(S_T0), sr(S_W)))
    a.i('v_xor_b32 %s, %s, %s' % (vr(t0), sr(S_T0), vr(t0)))
    a.i('v_add_u32 %s, %d, %s' % (vr(t0), PB, vr(t0)))
    a.i('v_bfe_u32 %s, %s, 4, 1' % (vr(t1), vr(V_LANE)))
    a.i('v_lshl_add_u32 %s, %s, 3, %s' % (vr(Q_PWA), vr(t1), vr(t0)))
    a.i('v_lshl_add_u32 %s, %s, 11, %s' % (vr(Q_PWA2), vr(t1), vr(t0)))
    a.i('v_mov_b32 %s, %d' % (vr(Q_FLA), FL))
    for i in range(5):
        a.i('v_mov_b32 %s, 0' % vr(Q_L + i))
        for r in range(4):
            a.i('v_mov_b32 %s, 0' % vr(Q_MQ(i) + r))
    addr_U_read(a, Q_UA, T2)
    QA = [Q_T[0], Q_T[1]]
    for e in range(2):
        a.i('v_add_u32 %s, %d, %s' % (vr(QA[e]), QB, vr(Q_UA[e])))
        a.i('v_add_u32 %s, %s, %s' % (vr(Q_UA[e]), sr(S_RING), vr(Q_UA[e])))
    for c in range(7):
        n = [11, 11, 11, 11, 11, 19, 8][c]
        a.i('s_waitcnt vmcnt(%d)' % n)
        barrier(a)
        if c <= 4:
            issue_tile(c + 2)
        if c == 4 or c == 6:
            for u in range(4):
                for x in dma_unit(0 if c == 4 else 1, u):
                    a.i(x)
    barrier(a)
    for u in range(4):
        a.i('s_add_u32 m0, %s, %d' % (sr(S_RING), VR0 + u * 2048))
        a.i('buffer_load_dwordx4 %s, %s, %s offen lds' % (vr(LV[0]), sr(SRD_AUX, 4), sr(S_V0OFF)))
        a.i('buffer_load_dwordx4 %s, %s, %s offen offset:1024 lds' % (vr(LV[1]), sr(SRD_AUX, 4), sr(S_V0OFF)))
        a.i('s_add_u32 %s, %s, 8192' % (sr(S_V0OFF), sr(S_V0OFF)))

    def qread(i, s):
        return 'ds_read_b128 %s, %s offset:%d' % (vr(Q_Q(i, s), 4), vr(QA[s & 1]), (i * 4 + (s >> 1)) * 2048)

    def kread(par, s, buf):
        return 'ds_read_b128 %s, %s offset:%d' % (vr(Q_KF(buf), 4), vr(Q_UA[s & 1]), par * SLOT + (s >> 1) * 2048)

    a.i('s_waitcnt vmcnt(22)')
    a.i(kread(0, 0, 0))
    a.i(kread(0, 1, 1))
    a.i('s_waitcnt lgkmcnt(0)')
    a.i('s_mov_b32 %s, 0' % sr(S_P))
    barrier(a)

    q_rare = []
    q_setf = []

    def qk_phase(par, do_mfma, do_soft, tag, extra=None):
        pp = 1 - par
        fill = {}
        mf = []
        if do_mfma:
            order = [(s, i) for s in range(6) for i in range(5)] + [(s, i) for i in range(5) for s in (6, 7)]
            for (s, i) in order:
                mf.append(lambda s=s, i=i: mfma(a, Q_S(par, i), Q_KF(s % 4), Q_Q(i, s), vr(Q_MQ(i), 4) if s == 0 else None))
            reads = [(0, 2, 0, 2), (1, 3, 0, 3), (5, 4, 0, 0), (10, 5, 0, 1), (15, 6, 0, 2), (20, 7, 0, 3),
                     (25, 0, 1, 0), (30, 1, 1, 1)]
            refills = [(QD[2 * u], QD[2 * u + 1], u) for u in range(4)]
            ev = []
            for (m, s, dt, buf) in reads:
                ev.append((m, 0, 'need', dt, s >> 1, s, buf))
            for (ma, mb, u) in refills:
                ev.append((ma, 1, 'dma', u))
                ev.append((mb, 1, 'dma', u))
            ev.sort(key=lambda e: (e[0], e[1]))
            issued = []
            need_n = {}
            for ph in range(4):
                for e in ev:
                    if e[2] == 'dma':
                        issued.append((ph + 2, e[3]))
                    elif ph == 3:
                        key = (ph + e[3], e[4])
                        last = max(k for k, x in enumerate(issued) if x == key)
                        need_n[e[5]] = len(issued) - 1 - last
            for (m, s, dt, buf) in reads:
                if s % 2 == 0:
                    fill.setdefault(m, []).append('s_waitcnt vmcnt(%d)' % (need_n[s] + (8 if tag == 'p0' else 0)))
                fill.setdefault(m, []).append(kread(pp if dt else par, s, buf))
            for (ma, mb, u) in refills:
                place_dma(fill, par, u, ma, mb)
        if tag == 'p0':
            qr = [qread(i, s) for s in range(8) for i in range(5)]
            fill.setdefault(-1, []).extend(qr[:10])
            for k, x in enumerate(qr[10:]):
                fill.setdefault(k * 2 // 3, []).append(x)
        if do_soft:
            fill.setdefault(-1, []).append('ds_read_b32 %s, %s offset:%d' % (vr(Q_T[2]), vr(Q_FLA), pp * 4))
            chk = ['v_cmp_eq_u32 vcc, %s, %s' % (sr(S_P), vr(Q_T[2]))]

            def br():
                a.i('s_cbranch_vccnz L_qrare_%s' % tag)
                a.label('L_qjoin_%s' % tag)
            chk.append(br)
            q_rare.append((tag, par, do_mfma))
            soft = []
            for i in range(5):
                S = Q_S(pp, i)
                t0, t1 = (Q_T[0], Q_T[1]) if i % 2 == 0 else (Q_T[3], Q_T[4])
                for r in range(4):
                    soft.append('v_exp_f32 %s, %s' % (vr(S + r), vr(S + r)))
                soft.append('v_add_f32 %s, %s, %s' % (vr(t0), vr(S), vr(S + 1)))
                soft.append('v_add_f32 %s, %s, %s' % (vr(t1), vr(S + 2), vr(S + 3)))
                D = S if i % 2 == 0 else Q_S(pp, i - 1) + 2
                soft.append('v_cvt_pk_bf16_f32 %s, %s, %s' % (vr(D), vr(S), vr(S + 1)))
                soft.append('v_cvt_pk_bf16_f32 %s, %s, %s' % (vr(D + 1), vr(S + 2), vr(S + 3)))
                soft.append('v_add_f32 %s, %s, %s' % (vr(t0), vr(t0), vr(t1)))
                if i == 4:
                    soft.append('ds_write_b64 %s, %s offset:%d' % (vr(Q_PWA), vr(S, 2), pp * 10240 + i * 2048))
                elif i % 2 == 1:
                    A = Q_S(pp, i - 1)
                    soft.append('v_permlane16_swap_b32 %s, %s' % (vr(A), vr(A + 2)))
                    soft.append('v_permlane16_swap_b32 %s, %s' % (vr(A + 1), vr(A + 3)))
                    soft.append('ds_write_b128 %s, %s offset:%d' % (vr(Q_PWA2), vr(A, 4), pp * 10240 + (i - 1) * 2048))
                soft.append('v_add_f32 %s, %s, %s' % (vr(Q_L + i), vr(Q_L + i), vr(t0)))
            if do_mfma:
                fill.setdefault(5, []).extend(chk)
                spread(fill, soft, 6, int(opt('softend', 31)))
            else:
                mix = []
                ex = list(extra or [])
                for k, x in enumerate(soft):
                    mix.append(x)
                    if ex and k % 3 != 2:
                        mix.append(ex.pop(0))
                fill.setdefault(-1, []).extend(chk + mix + ex)
        if tag == 'p0':
            M = [Q_S(1, 0) + k for k in range(5)]
            t5, adw, ad4 = Q_S(1, 0) + 5, Q_S(1, 0) + 6, Q_S(1, 0) + 7
            spread(fill, rm_addr_ops(ad4, adw, t5), 22, 31)
            for i in range(5):
                S = Q_S(par, i)
                fill.setdefault(min(34 + 2 * i, 40), []).extend([
                    'v_max3_f32 %s, %s, %s, %s' % (vr(M[i]), vr(S), vr(S + 1), vr(S + 2)),
                    'v_max_f32 %s, %s, %s' % (vr(M[i]), vr(M[i]), vr(S + 3))])
            fill.setdefault(41, []).append(lambda: rm_reduce_write(a, 'v_max_f32', M, t5, ad4, adw))
        elif do_mfma:
            M0_, M1_ = Q_T[5], Q_T[6]
            for i in range(5):
                S = Q_S(par, i)
                m = min(34 + 2 * i, 40)
                if i == 0:
                    ops = ['v_max3_f32 %s, %s, %s, %s' % (vr(M0_), vr(S), vr(S + 1), vr(S + 2)),
                           'v_mov_b32 %s, %s' % (vr(M1_), vr(S + 3))]
                else:
                    ops = ['v_max3_f32 %s, %s, %s, %s' % (vr(M0_), vr(M0_), vr(S), vr(S + 1)),
                           'v_max3_f32 %s, %s, %s, %s' % (vr(M1_), vr(M1_), vr(S + 2), vr(S + 3))]
                fill.setdefault(m, []).extend(ops)

            def endchk():
                a.i('v_max_f32 %s, %s, %s' % (vr(M0_), vr(M0_), vr(M1_)))
                a.i('v_cmp_lt_f32 vcc, %s, %s' % (f32hex(THR), vr(M0_)))
                a.i('s_cbranch_vccnz L_qsetf_%s' % tag)
                a.label('L_qsetj_%s' % tag)
            fill.setdefault(41, []).append(endchk)
            q_setf.append((tag, par))
        run_stream(a, mf, fill)
        a.i('s_add_u32 %s, %s, 1' % (sr(S_P), sr(S_P)))
        a.i('s_waitcnt lgkmcnt(0)')
        barrier(a)

    qk_phase(0, True, False, 'p0')
    ad = Q_T[0]
    a.i('v_and_b32 %s, 15, %s' % (vr(ad), vr(V_LANE)))
    a.i('v_lshlrev_b32 %s, 7, %s' % (vr(ad), vr(ad)))
    a.i('v_add_u32 %s, %d, %s' % (vr(ad), RM, vr(ad)))
    for i in range(5):
        a.i('ds_read_b128 %s, %s offset:%d' % (vr(Q_S(1, i), 4), vr(ad), 16 * i))
    for i in range(5):
        R = Q_S(1, i)
        a.i('v_max3_f32 %s, %s, %s, %s' % (vr(R), vr(R), vr(R + 1), vr(R + 2)))
        a.i('v_max_f32 %s, %s, %s' % (vr(R), vr(R), vr(R + 3)))
        for r in range(4):
            a.i('v_sub_f32 %s, 0, %s' % (vr(Q_MQ(i) + r), vr(R)))
    for i in range(5):
        for r in range(4):
            a.i('v_add_f32 %s, %s, %s' % (vr(Q_S(0, i) + r), vr(Q_S(0, i) + r), vr(Q_MQ(i))))
    a.label('L_qloop')
    qk_phase(1, True, True, 'odd')
    a.i('s_cmp_eq_u32 %s, 16' % sr(S_P))
    a.i('s_cbranch_scc1 L_qdone')
    a.i('s_cmp_eq_u32 %s, 14' % sr(S_P))
    a.i('s_cbranch_scc0 L_qnosw')
    switch_to_wo(a, (Q_T[0], Q_T[1]))
    a.label('L_qnosw')
    qk_phase(0, True, True, 'even')
    a.i('s_branch L_qloop')
    a.reset()
    a.label('L_qdone')
    def w_reads(tau, imm, TA=G_TA):
        out = []
        for e in range(2):
            for ai in range(4):
                for hh in range(2):
                    out.append('ds_read_b64_tr_b16 %s, %s offset:%d' % (vr(W_A(tau, e, ai) + 2 * hh, 2), vr(TA[ai]), imm + e * 4096 + hh * 512))
        return out

    QTA = [40, 41, 42, 43]
    qk_phase(0, False, True, 'p16')
    addr_T_read(a, 44, (45, 46))
    a.i('v_add_u32 %s, %s, v44' % (vr(QTA[0]), sr(S_RING)))
    for k in (1, 2, 3):
        a.i('v_xor_b32 %s, %d, %s' % (vr(QTA[k]), 32 * k, vr(QTA[0])))
    a.i('s_waitcnt vmcnt(0)')
    for x in w_reads(0, 0, QTA):
        a.i(x)
    ad4, adw, t5 = 20, 21, 22
    for x in rm_addr_ops(ad4, adw, t5):
        a.i(x)
    rm_reduce_write(a, 'v_add_f32', [Q_L + i for i in range(5)], t5, ad4, adw)
    a.i('v_mov_b32 %s, %d' % (vr(t5), MW - 4))
    for r in range(4):
        a.i('v_mov_b32 v%d, 0' % (24 + r))
    a.i('ds_write_b128 %s, v[24:27]' % vr(t5))
    a.i('s_waitcnt lgkmcnt(0)')
    for x in w_reads(1, SLOT, QTA):
        a.i(x)
    for u in range(4):
        for x in dma_unit(0, u):
            a.i(x)
    a.i('s_waitcnt lgkmcnt(0)')
    if flag('t3early'):
        for u in range(4):
            for x in dma_unit(1, u):
                a.i(x)
    barrier(a)
    if not flag('t3early'):
        for u in range(4):
            for x in dma_unit(1, u):
                a.i(x)
    addr_U_read(a, G_UB, (G_T[0], G_T[1]))
    for e in range(2):
        a.i('v_add_u32 %s, %d, %s' % (vr(G_UB[e]), OB, vr(G_UB[e])))
    a.i('s_waitcnt vmcnt(8)')
    for x in w_reads(2, 0, QTA):
        a.i(x)
    a.i('s_waitcnt vmcnt(0)')
    for x in w_reads(3, SLOT, QTA):
        a.i(x)
    a.i('s_waitcnt lgkmcnt(0)')
    barrier(a)
    a.i('s_branch L_oproj')
    a.reset()
    for tag, par in q_setf:
        a.label('L_qsetf_%s' % tag)
        a.i('s_add_u32 %s, %s, 1' % (sr(S_T0), sr(S_P)))
        a.i('v_mov_b32 %s, %s' % (vr(Q_T[5]), sr(S_T0)))
        a.i('ds_write_b32 %s, %s offset:%d' % (vr(Q_FLA), vr(Q_T[5]), par * 4))
        a.i('s_branch L_qsetj_%s' % tag)
        a.reset()
    for tag, par, has_cur in q_rare:
        pp = 1 - par
        a.label('L_qrare_%s' % tag)
        a.fence(10)
        ad, t0, mx = Q_T[1], Q_T[0], Q_T[6]
        a.i('v_and_b32 %s, 15, %s' % (vr(ad), vr(V_LANE)))
        a.i('v_lshlrev_b32 %s, 5, %s' % (vr(ad), vr(ad)))
        a.i('v_add_u32 %s, %d, %s' % (vr(ad), SM, vr(ad)))
        a.i('s_lshl_b32 %s, %s, 9' % (sr(S_T0), sr(S_W)))
        a.i('v_add_u32 %s, %s, %s' % (vr(Q_T[3]), sr(S_T0), vr(ad)))
        for i in range(5):
            S = Q_S(pp, i)
            a.i('v_max3_f32 %s, %s, %s, %s' % (vr(mx), vr(S), vr(S + 1), vr(S + 2)))
            a.i('v_max_f32 %s, %s, %s' % (vr(mx), vr(mx), vr(S + 3)))
            xreduce(a, 'v_max_f32', mx, t0)
            a.i('ds_write_b32 %s, %s offset:%d' % (vr(Q_T[3]), vr(mx), RM - SM + 4 * i))
        a.i('s_waitcnt lgkmcnt(0)')
        a.i('s_barrier')
        for i in range(5):
            r4 = [Q_T[3], Q_T[4], Q_T[5], Q_T[0]]
            for w in range(4):
                a.i('ds_read_b32 %s, %s offset:%d' % (vr(r4[w]), vr(ad), RM - SM + w * 512 + 4 * i))
            a.i('v_max3_f32 %s, %s, %s, %s' % (vr(mx), vr(r4[0]), vr(r4[1]), vr(r4[2])))
            a.i('v_max3_f32 %s, %s, %s, 0' % (vr(mx), vr(mx), vr(r4[3])))
            for r in range(4):
                a.i('v_sub_f32 %s, %s, %s' % (vr(Q_S(pp, i) + r), vr(Q_S(pp, i) + r), vr(mx)))
                if has_cur:
                    a.i('v_sub_f32 %s, %s, %s' % (vr(Q_S(par, i) + r), vr(Q_S(par, i) + r), vr(mx)))
                a.i('v_sub_f32 %s, %s, %s' % (vr(Q_MQ(i) + r), vr(Q_MQ(i) + r), vr(mx)))
            a.i('v_exp_f32 %s, -%s' % (vr(t0), vr(mx)))
            a.i('v_mul_f32 %s, %s, %s' % (vr(Q_L + i), vr(Q_L + i), vr(t0)))
            a.i('ds_write_b32 %s, %s offset:%d' % (vr(ad), vr(t0), AL - SM + pp * 512 + 4 * i))
        a.i('s_waitcnt lgkmcnt(0)')
        a.fence(4)
        a.i('s_branch L_qjoin_%s' % tag)
        a.reset()

    a.label('L_pv')
    ROLE[0] = 'p'
    GT = (G_T[0], G_T[1])
    if flag('cpf'):
        a.i('s_cmp_ge_u32 s2, %s' % opt('cpfn', '16'))
        a.i('s_cbranch_scc1 L_nocpf')
        a.i('s_getpc_b64 s[96:97]')
        a.label('L_pcref')
        a.raw('    s_sub_u32 s96, s96, L_pcref-%s' % name)
        a.raw('    s_subb_u32 s97, s97, 0')
        a.i('s_lshl_b32 %s, %s, 13' % (sr(S_T0), sr(S_W)))
        a.i('v_lshlrev_b32 v2, 7, %s' % vr(V_LANE))
        a.i('v_add_u32 v2, %s, v2' % sr(S_T0))
        a.raw('    v_min_u32 v2, L_code_end-%s-4, v2' % name)
        a.i('global_load_dword v16, v2, s[96:97]')
        a.label('L_nocpf')
    addr_T_read(a, G_T[2], GT)
    addr_U_read(a, G_UB, GT)
    a.i('v_mov_b32 %s, %s' % (vr(G_T[3]), vr(G_UB[0])))
    t0, t1 = GT
    a.i('v_bfe_u32 %s, %s, 4, 1' % (vr(t0), vr(V_LANE)))
    a.i('v_lshrrev_b32 %s, 5, %s' % (vr(t1), vr(V_LANE)))
    a.i('v_lshl_add_u32 %s, %s, 1, %s' % (vr(t0), vr(t0), vr(t1)))
    a.i('v_and_b32 %s, 7, %s' % (vr(t1), vr(V_LANE)))
    a.i('v_xor_b32 %s, %s, %s' % (vr(t0), vr(t0), vr(t1)))
    a.i('v_lshlrev_b32 %s, 4, %s' % (vr(t0), vr(t0)))
    a.i('v_and_b32 %s, 15, %s' % (vr(t1), vr(V_LANE)))
    a.i('v_lshl_add_u32 %s, %s, 7, %s' % (vr(t0), vr(t1), vr(t0)))
    a.i('s_lshl_b32 %s, %s, 11' % (sr(S_T0), sr(S_W)))
    a.i('v_add_u32 %s, %s, %s' % (vr(G_T[4]), sr(S_T0), vr(t0)))
    for k in range(80):
        a.i('v_mov_b32 %s, 0' % vr(176 + k))
    a.i('s_waitcnt lgkmcnt(0)')
    stamp_init(a)
    common_srds()
    build_srd(a, SRD_ST, S_V, S_T2, 524288)
    build_srd(a, SRD_AUX, S_DBG, None, 256)
    a.i('s_add_u32 %s, %s, 4' % (sr(S_CG), sr(S_W)))
    a.i('v_lshlrev_b32 %s, 8, %s' % (vr(G_AL + 2), vr(V_LANE)))
    a.i('s_cmp_lg_u32 %s, 7' % sr(S_WAVE))
    a.i('s_cbranch_scc1 L_noclr')
    a.i('v_mov_b32 %s, 0' % vr(G_AL + 1))
    a.i('s_lshl_b32 %s, %s, 2' % (sr(S_T0), sr(S_H)))
    a.i('buffer_store_dword %s, %s, %s, %s offen sc1' % (vr(G_AL + 1), vr(G_AL + 2), sr(SRD_FG, 4), sr(S_T0)))
    a.i('buffer_store_dword %s, %s, %s, %s offen offset:64 sc1' % (vr(G_AL + 1), vr(G_AL + 2), sr(SRD_FG, 4), sr(S_T0)))
    a.label('L_noclr')
    a.i('s_lshl_b32 %s, %s, 2' % (sr(S_T0), sr(S_GRP)))
    a.i('s_add_u32 %s, %s, %s' % (sr(S_T0), sr(S_T0), sr(S_W)))
    a.i('s_mul_i32 %s, %s, %d' % (sr(S_PFO), sr(S_T0), 28 * 128))
    a.i('s_mov_b32 %s, %s' % (sr(S_C), f32hex(CSCALE)))
    a.i('s_mov_b32 %s, %s' % (sr(S_C + 1), f32hex(CSCALE)))
    a.i('s_lshl_b32 %s, %s, 13' % (sr(S_T0), sr(S_W)))
    a.i('s_add_u32 %s, %s, %d' % (sr(S_RING), sr(S_T0), VR0))
    a.i('s_add_u32 %s, %s, %d' % (sr(S_WCUR), sr(S_T0), WSLOT[0]))
    a.i('s_add_u32 %s, %s, %d' % (sr(S_WN1), sr(S_T0), WSLOT[1]))
    a.i('s_add_u32 %s, %s, %d' % (sr(S_WN2), sr(S_T0), WSLOT[2]))
    a.i('s_mov_b32 %s, %d' % (sr(S_XCUR), XSLOT[0]))
    a.i('s_mov_b32 %s, %d' % (sr(S_XN1), XSLOT[1]))
    a.i('s_mov_b32 %s, %d' % (sr(S_XN2), XSLOT[2]))
    a.i('s_mov_b32 %s, 0' % sr(S_P))
    pat_T(a, V_PAT, GT, 512)
    a.i('s_lshl_b32 %s, %s, 7' % (sr(S_WBASE), sr(S_W)))
    seq_init(a)
    for x in next_tile() + next_tile():
        a.i(x)
    a.i('s_mov_b32 %s, 8192' % sr(S_STEPU))
    a.i('v_mov_b32 %s, %d' % (vr(G_FLA), FL))
    a.i('v_and_b32 %s, 15, %s' % (vr(G_ALA), vr(V_LANE)))
    a.i('v_lshlrev_b32 %s, 5, %s' % (vr(G_ALA), vr(G_ALA)))
    a.i('v_add_u32 %s, %d, %s' % (vr(G_ALA), SM, vr(G_ALA)))
    a.i('s_mov_b32 %s, 0' % sr(S_PEND))
    a.i('s_mov_b32 %s, 0' % sr(S_PEND2))

    def q_addr_update():
        out = set_TA(S_WCUR, G_T[2])
        out += ['v_add_u32 %s, %s, %s' % (vr(G_UB[0]), sr(S_XCUR), vr(G_T[3])),
                'v_xor_b32 %s, 64, %s' % (vr(G_UB[1]), vr(G_UB[0]))]
        out += ['s_mov_b32 %s, %s' % (sr(S_T0), sr(S_WCUR)), 's_mov_b32 %s, %s' % (sr(S_WCUR), sr(S_WN1)),
                's_mov_b32 %s, %s' % (sr(S_WN1), sr(S_WN2)), 's_mov_b32 %s, %s' % (sr(S_WN2), sr(S_T0)),
                's_mov_b32 %s, %s' % (sr(S_T0), sr(S_XCUR)), 's_mov_b32 %s, %s' % (sr(S_XCUR), sr(S_XN1)),
                's_mov_b32 %s, %s' % (sr(S_XN1), sr(S_XN2)), 's_mov_b32 %s, %s' % (sr(S_XN2), sr(S_T0))]
        return out

    XI = lambda i: (G_UB, i * 2048)
    for x in q_addr_update():
        a.i(x)
    barrier(a)
    A0 = a_reads(0, 0)
    for x in A0[0:2] + b_reads(0, XI) + A0[2:]:
        a.i(x)
    a.label('L_qproj')
    fill = {}
    spread(fill, b_reads(1, XI) + a_reads(1, 4096), 1, 8)
    spread(fill, q_addr_update(), 12, 18)
    fill.setdefault(19, []).extend(['s_add_u32 %s, %s, 1' % (sr(S_P), sr(S_P))])
    run_stream(a, half_mfmas(a, ACC_O, 0), fill)
    a.i('s_waitcnt lgkmcnt(0)')
    barrier(a)
    a.i('s_cmp_eq_u32 %s, 7' % sr(S_P))
    a.i('s_cbranch_scc1 L_qproj_last')
    fill = {}
    A0 = a_reads(0, 0)
    spread(fill, A0[0:2] + b_reads(0, XI) + A0[2:], 0, 9)
    run_stream(a, half_mfmas(a, ACC_O, 1), fill)
    a.i('s_branch L_qproj')
    a.reset()
    a.label('L_qproj_last')

    PAIR_ORDER = [(ap * 2 + d, i) for ap in range(2) for i in range(5) for d in range(2)]

    def final_half(acc, fill, m_first, scale, dst):
        for ap in range(2):
            for i in range(5):
                R0, R1 = acc(2 * ap, i), acc(2 * ap + 1, i)
                ad, imm = dst(ap, i)
                ops = []
                for R in (R0, R1):
                    if flag('pkmul'):
                        ops += ['v_pk_mul_f32 %s, %s, %s' % (vr(R, 2), vr(R, 2), scale(i, 2)),
                                'v_pk_mul_f32 %s, %s, %s' % (vr(R + 2, 2), vr(R + 2, 2), scale(i, 2))]
                    else:
                        ops += ['v_mul_f32 %s, %s, %s' % (vr(R + r), scale(i, 1), vr(R + r)) for r in range(4)]
                ops += ['v_cvt_pk_bf16_f32 %s, %s, %s' % (vr(R0), vr(R0), vr(R0 + 1)),
                        'v_cvt_pk_bf16_f32 %s, %s, %s' % (vr(R0 + 1), vr(R0 + 2), vr(R0 + 3)),
                        'v_cvt_pk_bf16_f32 %s, %s, %s' % (vr(R0 + 2), vr(R1), vr(R1 + 1)),
                        'v_cvt_pk_bf16_f32 %s, %s, %s' % (vr(R0 + 3), vr(R1 + 2), vr(R1 + 3)),
                        'v_permlane16_swap_b32 %s, %s' % (vr(R0), vr(R0 + 2)),
                        'v_permlane16_swap_b32 %s, %s' % (vr(R0 + 1), vr(R0 + 3)),
                        'ds_write_b128 %s, %s offset:%d' % (vr(ad), vr(R0, 4), imm)]
                k = ap * 5 + i
                fill.setdefault(max(m_first + k, 2 * k + 4), []).extend(ops)
        run_stream(a, half_mfmas(a, acc, 1, PAIR_ORDER), fill)
        a.i('s_waitcnt lgkmcnt(0)')

    fill = {-1: ['v_add_u32 %s, %d, %s' % (vr(G_T[5]), QB, vr(G_T[4])),
                 'v_xor_b32 %s, 64, %s' % (vr(G_T[6]), vr(G_T[5])),
                 'v_mov_b32 %s, 0' % vr(G_AL), 'v_mov_b32 %s, 0' % vr(G_AL + 1)],
            1: ['ds_write_b64 %s, %s' % (vr(G_FLA), vr(G_AL, 2))]}
    final_half(ACC_O, fill, 4, lambda i, n: sr(S_C, n), lambda ap, i: (G_T[5 + ap], i * 8192))
    barrier(a)
    a.i('s_cmp_lg_u32 %s, 7' % sr(S_WAVE))
    a.i('s_cbranch_scc1 L_noclr2')
    a.i('s_lshl_b32 %s, 1, %s' % (sr(S_T0), sr(S_H)))
    a.i('v_mov_b32 %s, %s' % (vr(G_AL + 1), sr(S_T0)))
    a.i('s_lshl_b32 %s, %s, 4' % (sr(S_T0), sr(S_GRP)))
    a.i('s_waitcnt vmcnt(0)')
    a.i('buffer_atomic_or %s, %s, %s, %s offen sc1' % (vr(G_AL + 1), vr(G_AL + 2), sr(SRD_AUX, 4), sr(S_T0)))
    a.label('L_noclr2')
    for x in set_TA(S_RING, G_T[2]):
        a.i(x)
    a.i('v_add_u32 %s, %d, %s' % (vr(G_UB[0]), PB, vr(G_T[3])))
    a.i('v_xor_b32 %s, 64, %s' % (vr(G_UB[1]), vr(G_UB[0])))
    for k in range(80):
        a.i('v_mov_b32 %s, 0' % vr(176 + k))
    barrier(a)
    for u in range(2):
        for x in dma_unit(1, u):
            a.i(x)
    for r in range(20):
        a.i('v_mov_b32 %s, 0' % vr(G_BF(1, 0) + r))
    for r in range(16):
        a.i('v_mov_b32 %s, 0' % vr(G_AF(1, 0) + r))
    barrier(a)
    a.i('s_mov_b32 %s, 2' % sr(S_P))

    pv_rare = []
    pv_sync = []

    def gemm_phase(par, acc, bsrc, vm, refill, tag=None, bar=True, part1_mfma=True):
        fill = {}
        pre = []
        if tag is not None:
            pre.append('ds_read_b32 %s, %s offset:%d' % (vr(G_T[6]), vr(G_FLA), (1 - par) * 4))
        pre += b_reads(0, bsrc)
        pre.append('s_waitcnt vmcnt(%d)' % vm[0])
        pre += a_reads(0, par * SLOT)
        if part1_mfma:
            spread(fill, pre, 0, 9)
        else:
            fill[-1] = pre
        if tag is not None:
            def br():
                a.i('v_cmp_eq_u32 vcc, %s, %s' % (sr(S_P), vr(G_T[6])))
                a.i('s_cbranch_vccnz L_psync_%s' % tag)
                a.label('L_psyncj_%s' % tag)
            fill.setdefault(6, []).append(br)
            pv_sync.append(tag)
        if refill[0]:
            place_dma(fill, 1 - par, 2, PD[0], PD[1])
            place_dma(fill, 1 - par, 3, PD[2], PD[3])
        run_stream(a, half_mfmas(a, acc, 1) if part1_mfma else [], fill)
        if tag is not None:
            a.i('s_cmp_lg_u32 %s, 0' % sr(S_PEND))
            a.i('s_cbranch_scc1 L_prare_%s' % tag)
            a.label('L_pjoin_%s' % tag)
            a.i('s_mov_b32 %s, %s' % (sr(S_PEND), sr(S_PEND2)))
            pv_rare.append((tag, par))
            if tag == 'even':
                a.i('s_cmp_eq_u32 %s, %s' % (sr(S_P), opt('pfwoat', '10')))
                a.i('s_cbranch_scc1 L_ppf')
                a.label('L_ppfj')
                a.i('s_cmp_eq_u32 %s, 16' % sr(S_P))
                a.i('s_cbranch_scc1 L_psw')
                a.label('L_pswj')
        a.i('s_waitcnt lgkmcnt(0)')
        fill = {}
        spread(fill, b_reads(1, bsrc) + ['s_waitcnt vmcnt(%d)' % vm[1]] + a_reads(1, par * SLOT + 4096), 0, 9)
        if refill[1]:
            place_dma(fill, par, 0, PD[4], PD[5])
            place_dma(fill, par, 1, PD[6], PD[7])
        if tag is not None:
            fill.setdefault(14, []).extend(['s_add_u32 %s, %s, 1' % (sr(S_P), sr(S_P)), 's_mov_b32 %s, 0' % sr(S_PEND2)])
        run_stream(a, half_mfmas(a, acc, 0), fill)
        a.i('s_waitcnt lgkmcnt(0)')
        if bar:
            barrier(a)

    a.label('L_ploop')
    gemm_phase(0, ACC_O, lambda i: (G_UB, i * 2048), (8, 8), (True, True), 'even')
    gemm_phase(1, ACC_O, lambda i: (G_UB, 10240 + i * 2048), (8, 8), (True, True), 'odd')
    a.i('s_cmp_lt_u32 %s, 18' % sr(S_P))
    a.i('s_cbranch_scc1 L_ploop')
    LT_ = G_BF(0, 0)
    RI = G_AF(0, 0)
    fill = {}
    pre = ['v_and_b32 %s, 15, %s' % (vr(G_T[1]), vr(V_LANE)),
           'v_lshlrev_b32 %s, 7, %s' % (vr(G_T[1]), vr(G_T[1])),
           'v_add_u32 %s, %d, %s' % (vr(G_T[1]), RM, vr(G_T[1]))]
    pre += ['ds_read_b128 %s, %s offset:%d' % (vr(LT_ + 4 * i, 4), vr(G_T[1]), 16 * i) for i in range(5)]
    fill[-1] = pre
    WH = [G_T[5], G_T[6]]
    fill[0] = ['v_add_u32 %s, %d, %s' % (vr(WH[0]), OB, vr(G_T[4])), 'v_xor_b32 %s, 64, %s' % (vr(WH[1]), vr(WH[0]))]
    place_dma(fill, 1, 2, 1, 2)
    place_dma(fill, 1, 3, 4, 5)
    rc = []
    for i in range(5):
        R = LT_ + 4 * i
        rc += ['v_add_f32 %s, %s, %s' % (vr(R), vr(R), vr(R + 1)),
               'v_add_f32 %s, %s, %s' % (vr(R + 2), vr(R + 2), vr(R + 3)),
               'v_add_f32 %s, %s, %s' % (vr(R), vr(R), vr(R + 2)),
               'v_rcp_f32 %s, %s' % (vr(RI + 2 * i), vr(R)),
               'v_rcp_f32 %s, %s' % (vr(RI + 2 * i + 1), vr(R))]
    spread(fill, rc, 3, 7)
    final_half(ACC_O, fill, 8, lambda i, n: vr(RI + 2 * i, n), lambda ap, i: (WH[ap], O_OFF(i)))
    a.i('v_add_u32 %s, %d, %s' % (vr(G_UB[0]), OB, vr(G_T[3])))
    a.i('v_xor_b32 %s, 64, %s' % (vr(G_UB[1]), vr(G_UB[0])))
    barrier(a)
    a.i('s_cmp_eq_u32 %s, 7' % sr(S_WAVE))
    a.i('s_cbranch_scc1 L_comm')
    a.i('s_sub_u32 %s, %s, %d' % (sr(S_RING), sr(S_RING), VR0))
    for par in range(2):
        for u in range(4):
            for x in dma_unit(par, u):
                a.i(x)
    a.i('s_waitcnt vmcnt(16)')
    for x in w_reads(0, 0) + w_reads(1, SLOT):
        a.i(x)
    for k in range(4):
        a.i('v_subrev_u32 %s, %d, %s' % (vr(G_TA[k]), VR0, vr(G_TA[k])))
    a.i('s_waitcnt vmcnt(8)')
    for x in w_reads(2, 0):
        a.i(x)
    a.i('s_waitcnt vmcnt(0)')
    for x in w_reads(3, SLOT):
        a.i(x)
    a.i('s_waitcnt lgkmcnt(0)')
    a.label('L_oproj')
    a.fence(4)
    a.i('v_lshlrev_b32 %s, 4, %s' % (vr(GT[0]), vr(V_LANE)))
    a.i('s_mul_i32 %s, %s, 10240' % (sr(S_T0), sr(S_CG)))
    a.i('s_add_u32 %s, %s, 4096' % (sr(S_T1), sr(S_T0)))
    a.i('s_add_u32 %s, %s, 8192' % (sr(S_T2), sr(S_T0)))

    def o_reads(i):
        return ['ds_read_b128 %s, %s offset:%d' % (vr(W_B(i & 1, ks), 4), vr(G_UB[ks & 1]), O_OFF(i) + (ks >> 1) * 2048) for ks in range(8)]

    def o_epi(i):
        ops = []
        for ap in range(2):
            k = 2 * i + ap
            R0, R1 = W_ACC(i & 1, 2 * ap), W_ACC(i & 1, 2 * ap + 1)
            ops += ['v_cvt_pk_bf16_f32 %s, %s, %s' % (vr(R0), vr(R0), vr(R0 + 1)),
                    'v_cvt_pk_bf16_f32 %s, %s, %s' % (vr(R0 + 1), vr(R0 + 2), vr(R0 + 3)),
                    'v_cvt_pk_bf16_f32 %s, %s, %s' % (vr(R0 + 2), vr(R1), vr(R1 + 1)),
                    'v_cvt_pk_bf16_f32 %s, %s, %s' % (vr(R0 + 3), vr(R1 + 2), vr(R1 + 3)),
                    'buffer_store_dwordx4 %s, %s, %s, %s offen offset:%d sc1' % (
                        vr(R0, 4), vr(GT[0]), sr(SRD_PO, 4), sr([S_T0, S_T1, S_T2][k // 4]), (k % 4) * 1024)]
        return ops

    for x in o_reads(0):
        a.i(x)
    for i in range(5):
        fill = {}
        if i < 4:
            spread(fill, o_reads(i + 1), 2, 17)
        if i > 0:
            spread(fill, o_epi(i - 1), 6, 25)
        mf = [(lambda ks=ks, ai=ai: mfma(a, W_ACC(i & 1, ai), W_A(ks >> 1, ks & 1, ai), W_B(i & 1, ks), '0' if ks == 0 else None))
              for ks in range(8) for ai in range(4)]
        run_stream(a, mf, fill)
    stamp(a)
    for x in o_epi(4):
        a.i(x)
    a.i('s_lshr_b32 %s, %s, 2' % (sr(S_T0), sr(S_WAVE)))
    a.i('s_lshl_b32 %s, %s, 2' % (sr(S_T1), sr(S_T0)))
    a.i('s_add_u32 %s, %s, %d' % (sr(S_T1), sr(S_T1), MW + 4))
    a.i('v_mov_b32 v6, %s' % sr(S_T1))
    a.i('v_mov_b32 v7, %d' % MW)
    a.i('v_mov_b32 v3, 1')
    a.i('v_cmp_eq_u32 vcc, 0, %s' % vr(V_LANE))
    a.i('v_cndmask_b32 v4, 0, v3, vcc')
    a.i('v_lshlrev_b32 v2, 8, %s' % vr(V_LANE))
    a.i('s_sub_u32 %s, 3, %s' % (sr(S_T2), sr(S_T0)))
    a.i('s_lshl_b32 %s, %s, 6' % (sr(S_T0), sr(S_T0)))
    a.i('s_lshl_b32 %s, %s, 2' % (sr(S_T1), sr(S_H)))
    a.i('s_add_u32 %s, %s, %s' % (sr(S_T0), sr(S_T0), sr(S_T1)))
    a.i('s_waitcnt vmcnt(0)')
    a.i('ds_add_rtn_u32 v4, v6, v4')
    a.i('s_waitcnt lgkmcnt(0)')
    a.i('v_readfirstlane_b32 %s, v4' % sr(S_T1))
    a.i('s_cmp_eq_u32 %s, %s' % (sr(S_T1), sr(S_T2)))
    a.i('s_cbranch_scc0 L_nopub')
    a.i('buffer_store_dword v3, v2, %s, %s offen sc1' % (sr(SRD_FG, 4), sr(S_T0)))
    a.label('L_nopub')
    stamp(a)
    NJ = 1
    a.i('s_cmp_ge_u32 %s, 5' % sr(S_WAVE))
    a.i('s_cbranch_scc1 L_fin')
    SRD_R, SRD_OUT = 36, 40
    SEEN, NEW = 63, 64
    a.i('s_mul_i32 %s, %s, %d' % (sr(S_T0), sr(S_GRP), 16 * 71680))
    build_srd(a, SRD_R, S_WS, S_T0, 16 * 71680)
    build_srd(a, SRD_OUT, S_OUT, None, 1280 * 448 * 2)
    a.i('v_and_b32 v3, 15, %s' % vr(V_LANE))
    a.i('v_mul_u32_u24 v3, 896, v3')
    a.i('v_lshrrev_b32 v4, 4, %s' % vr(V_LANE))
    a.i('v_lshl_add_u32 v3, v4, 3, v3')
    a.i('v_lshlrev_b32 v2, 4, %s' % vr(V_LANE))
    LDA = [2, 5]
    STA = [3, 6]
    F, CG, AP = 59, 60, 61
    SH = [65, 66]
    PEND_ = 67
    for j in ((1, 0) if NJ == 2 else (0,)):
        a.i('s_add_u32 %s, %s, %d' % (sr(F), sr(S_CG), 3 * j))
        a.i('s_lshl_b32 %s, %s, 4' % (sr(F), sr(F)))
        a.i('s_add_u32 %s, %s, %s' % (sr(F), sr(F), sr(S_H)))
        a.i('s_mul_i32 %s, %s, 205' % (sr(CG), sr(F)))
        a.i('s_lshr_b32 %s, %s, 11' % (sr(CG), sr(CG)))
        a.i('s_mul_i32 %s, %s, 10' % (sr(AP), sr(CG)))
        a.i('s_sub_u32 %s, %s, %s' % (sr(AP), sr(F), sr(AP)))
        a.i('s_lshr_b32 %s, %s, 1' % (sr(S_T0), sr(AP)))
        a.i('s_lshl_b32 %s, %s, 4' % (sr(S_T0), sr(S_T0)))
        a.i('s_mul_i32 %s, %s, 80' % (sr(S_T1), sr(S_GRP)))
        a.i('s_add_u32 %s, %s, %s' % (sr(S_T1), sr(S_T1), sr(S_T0)))
        a.i('s_mul_i32 %s, %s, 896' % (sr(S_T1), sr(S_T1)))
        a.i('s_lshl_b32 %s, %s, 7' % (sr(CG), sr(CG)))
        a.i('s_add_u32 %s, %s, %s' % (sr(S_T1), sr(S_T1), sr(CG)))
        a.i('s_and_b32 %s, %s, 1' % (sr(AP), sr(AP)))
        a.i('s_lshl_b32 %s, %s, 6' % (sr(AP), sr(AP)))
        a.i('s_add_u32 %s, %s, %s' % (sr(S_T1), sr(S_T1), sr(AP)))
        a.i('s_lshl_b32 %s, %s, 10' % (sr(S_T0), sr(F)))
        a.i('s_cmp_ge_u32 %s, 40' % sr(F))
        a.i('s_cselect_b32 %s, 16, 0' % sr(SH[j]))
        a.i('s_cmp_ge_u32 %s, 70' % sr(F))
        a.i('s_cselect_b32 %s, 0x40000000, %s' % (sr(S_T0), sr(S_T0)))
        a.i('s_cselect_b32 %s, 0x40000000, %s' % (sr(S_T1), sr(S_T1)))
        a.i('v_add_u32 %s, %s, v2' % (vr(LDA[j]), sr(S_T0)))
        a.i('v_add_u32 %s, %s, v3' % (vr(STA[j]), sr(S_T1)))
    a.i('s_mov_b32 %s, 0' % sr(SEEN))
    a.i('s_mov_b32 %s, 0' % sr(PEND_))
    a.i('s_mov_b32 %s, 0x400000' % sr(S_T1))
    RB = lambda j, h: 32 + j * 64 + 4 * h
    AC = lambda j, k: 16 + j * 8 + k
    for k in range(16):
        a.i('v_mov_b32 v%d, 0' % (16 + k))
    a.i('v_mov_b32 v8, 0x3f80')
    a.i('v_mov_b32 v9, 0x3f800000')
    a.label('L_rpoll')
    a.i('ds_read_b32 v4, v7')
    a.i('s_waitcnt lgkmcnt(0)')
    a.i('v_readfirstlane_b32 %s, v4' % sr(S_T2))
    if flag('early'):
        a.i('s_lshr_b32 %s, %s, %s' % (sr(NEW), sr(S_T2), sr(SH[0])))
        a.i('s_and_b32 %s, %s, 0xffff' % (sr(NEW), sr(NEW)))
    else:
        a.i('s_lshr_b32 %s, %s, 16' % (sr(NEW), sr(S_T2)))
        a.i('s_and_b32 %s, %s, %s' % (sr(NEW), sr(NEW), sr(S_T2)))
    if flag('rown'):
        a.i('s_bitcmp1_b32 %s, %s' % (sr(NEW), sr(S_H)))
        a.i('s_cbranch_scc0 L_rnone')
    if opt('rmin'):
        a.i('s_bcnt1_i32_b32 %s, %s' % (sr(S_T2), sr(NEW)))
        a.i('s_cmp_ge_u32 %s, %s' % (sr(S_T2), opt('rmin')))
        a.i('s_cbranch_scc0 L_rnone')
    a.i('s_andn2_b32 %s, %s, %s' % (sr(NEW), sr(NEW), sr(SEEN)))
    a.i('s_cbranch_scc0 L_rnone')
    for h in range(16):
        a.i('s_bitcmp1_b32 %s, %d' % (sr(NEW), h))
        a.i('s_cbranch_scc0 L_rskip%d' % h)
        a.i('s_mov_b32 %s, %d' % (sr(S_T0), h * 71680))
        for j in range(NJ):
            a.i('buffer_load_dwordx4 %s, %s, %s, %s offen sc1' % (vr(RB(j, h), 4), vr(LDA[j]), sr(SRD_R, 4), sr(S_T0)))
        a.label('L_rskip%d' % h)
    a.i('s_or_b32 %s, %s, %s' % (sr(SEEN), sr(SEEN), sr(NEW)))
    a.i('s_cmp_eq_u32 %s, 0xffff' % sr(SEEN))
    a.i('s_cbranch_scc1 L_rsum')
    a.label('L_rnone')
    a.i('s_sleep 1')
    a.i('s_sub_u32 %s, %s, 1' % (sr(S_T1), sr(S_T1)))
    a.i('s_cmp_lg_u32 %s, 0' % sr(S_T1))
    a.i('s_cbranch_scc1 L_rpoll')
    a.label('L_rsum')
    a.i('s_waitcnt vmcnt(0)')
    for h in range(16):
        for j in range(NJ):
            for r in range(4):
                a.i('v_dot2c_f32_bf16 %s, %s, v8' % (vr(AC(j, 2 * r)), vr(RB(j, h) + r)))
                a.i('v_dot2c_f32_bf16 %s, %s, v9' % (vr(AC(j, 2 * r + 1)), vr(RB(j, h) + r)))
    a.label('L_rall')
    stamp(a)
    a.i('s_nop 3')
    for j in range(NJ):
        for r in range(4):
            a.i('v_cvt_pk_bf16_f32 %s, %s, %s' % (vr(32 + 4 * j + r), vr(AC(j, 2 * r)), vr(AC(j, 2 * r + 1))))
        a.i('buffer_store_dwordx2 %s, %s, %s, 0 offen' % (vr(32 + 4 * j, 2), vr(STA[j]), sr(SRD_OUT, 4)))
        a.i('buffer_store_dwordx2 %s, %s, %s, 0 offen offset:32' % (vr(34 + 4 * j, 2), vr(STA[j]), sr(SRD_OUT, 4)))
    a.label('L_fin')
    stamp_flush(a)
    a.label('L_end')
    a.i('s_endpgm')
    a.reset()
    a.label('L_comm')
    a.i('v_mov_b32 v7, %d' % MW)
    a.i('v_lshlrev_b32 v2, 8, %s' % vr(V_LANE))
    a.i('v_lshlrev_b32 v5, 2, %s' % vr(V_LANE))
    a.i('s_mov_b32 %s, 0x40000' % sr(S_T1))
    a.i('s_lshl_b32 %s, %s, 4' % (sr(S_T0), sr(S_GRP)))
    a.label('L_cpoll')
    a.i('buffer_load_dword v4, v2, %s, %s offen sc1' % (sr(SRD_AUX, 4), sr(S_T0)))
    a.i('s_waitcnt vmcnt(0)')
    a.i('v_readfirstlane_b32 %s, v4' % sr(S_T2))
    a.i('s_cmp_eq_u32 %s, 0xffff' % sr(S_T2))
    a.i('s_cbranch_scc1 L_cdone')
    a.i('s_sub_u32 %s, %s, 1' % (sr(S_T1), sr(S_T1)))
    a.i('s_cmp_lg_u32 %s, 0' % sr(S_T1))
    a.i('s_cbranch_scc1 L_cpoll')
    a.i('s_branch L_fin')
    a.label('L_cdone')
    a.label('L_cw')
    a.i('s_sleep 1')
    a.i('ds_read_b64 v[8:9], v7 offset:4')
    a.i('s_waitcnt lgkmcnt(0)')
    a.i('v_add_u32 v8, v8, v9')
    a.i('v_readfirstlane_b32 %s, v8' % sr(S_T2))
    a.i('s_cmp_ge_u32 %s, %s' % (sr(S_T2), opt('cwait', '7')))
    a.i('s_cbranch_scc0 L_cw')
    a.label('L_poll')
    a.i('buffer_load_dword v4, v5, %s, 0 offen sc1' % sr(SRD_FG, 4))
    a.i('s_waitcnt vmcnt(0)')
    a.i('v_cmp_eq_u32 vcc, 1, v4')
    a.i('s_mov_b32 %s, vcc_lo' % sr(S_T2))
    a.i('v_mov_b32 v4, %s' % sr(S_T2))
    a.i('ds_write_b32 v7, v4')
    a.i('s_waitcnt lgkmcnt(0)')
    a.i('s_cmp_eq_u32 %s, -1' % sr(S_T2))
    a.i('s_cbranch_scc1 L_fin')
    a.i('s_sleep %s' % opt('psleep', '2'))
    a.i('s_sub_u32 %s, %s, 1' % (sr(S_T1), sr(S_T1)))
    a.i('s_cmp_gt_i32 %s, 0' % sr(S_T1))
    a.i('s_cbranch_scc1 L_poll')
    a.i('s_branch L_fin')
    a.reset()
    a.label('L_ppf')
    a.i('v_lshlrev_b32 %s, 7, %s' % (vr(G_T[1]), vr(V_LANE)))
    a.i('v_cmp_gt_u32 vcc, 28, %s' % vr(V_LANE))
    a.i('v_mov_b32 %s, 0x7fffffff' % vr(G_T[0]))
    a.i('v_cndmask_b32 %s, %s, %s, vcc' % (vr(G_T[1]), vr(G_T[0]), vr(G_T[1])))
    a.i('buffer_load_dword %s, %s, %s, %s offen' % (vr(G_T[0]), vr(G_T[1]), sr(SRD_WO, 4), sr(S_PFO)))
    a.i('s_branch L_ppfj')
    a.reset()
    a.label('L_psw')
    switch_to_wo(a, GT)
    a.i('s_cmp_eq_u32 %s, 7' % sr(S_WAVE))
    a.i('s_cselect_b32 %s, 0, %s' % (sr(SRD_ST + 2), sr(SRD_ST + 2)))
    a.i('s_cselect_b32 %s, 0x30000, %s' % (sr(S_RING), sr(S_RING)))
    a.i('s_branch L_pswj')
    a.reset()
    for tag in pv_sync:
        a.label('L_psync_%s' % tag)
        a.i('s_barrier')
        a.i('s_mov_b32 %s, 1' % sr(S_PEND2))
        a.i('s_branch L_psyncj_%s' % tag)
        a.reset()
    for tag, par in pv_rare:
        a.label('L_prare_%s' % tag)
        a.i('ds_read_b128 %s, %s offset:%d' % (vr(G_AL, 4), vr(G_ALA), AL - SM + par * 512))
        a.i('ds_read_b32 %s, %s offset:%d' % (vr(G_AL + 4), vr(G_ALA), AL - SM + par * 512 + 16))
        a.i('s_waitcnt lgkmcnt(0)')
        a.fence(10)
        for ai in range(4):
            for i in range(5):
                for r in range(4):
                    R = ACC_O(ai, i) + r
                    a.i('v_mul_f32 %s, %s, %s' % (vr(R), vr(R), vr(G_AL + i)))
        a.fence(4)
        a.i('s_branch L_pjoin_%s' % tag)
        a.reset()
    a.label('L_code_end')


HEADER = """; Kernarg layout for this problem (64 bytes, ptrs only, base s[0:1]):
;   offset   0: d_in[0] x  shape=(8, 160, 448) dtype=bfloat16
;   offset   8: d_in[1] k_cache  shape=(8, 8, 1024, 256) dtype=bfloat16
;   offset  16: d_in[2] v_cache  shape=(8, 8, 1024, 256) dtype=bfloat16
;   offset  24: d_in[3] wq  shape=(448, 4096) dtype=bfloat16
;   offset  32: d_in[4] wo  shape=(4096, 448) dtype=bfloat16
;   offset  40: d_out     shape=(8, 160, 448) dtype=bfloat16
;   offset  48: d_debug   256 bytes
;   offset  56: d_ws      268435456 bytes workspace
; Generated by my own generator script (gen/gen4.py).
; @launch grid=(256,1,1) block=(512,1,1) lds=%d
.amdgcn_target "amdgcn-amd-amdhsa--gfx950"
.text
""" % LDS_BYTES


def kd(name, vgpr, sgpr):
    return """.amdhsa_kernel %s
  .amdhsa_next_free_vgpr %d
  .amdhsa_next_free_sgpr %d
  .amdhsa_accum_offset %d
  .amdhsa_group_segment_fixed_size 0
  .amdhsa_kernarg_size 64
  .amdhsa_user_sgpr_count 2
  .amdhsa_user_sgpr_kernarg_segment_ptr 1
  .amdhsa_system_sgpr_workgroup_id_x 1
.end_amdhsa_kernel
""" % (name, vgpr, sgpr, (vgpr + 3) // 4 * 4)


def main():
    out = ARGS[0] if ARGS and not ARGS[0].startswith('--') else 'standalone__gqa_block_cached__near_ridge.s'
    a = Asm()
    gen_main(a, 'standalone__gqa_block_cached__near_ridge_kernel')
    txt = HEADER + a.text() + '.section .rodata,"a"\n.p2align 6\n' + kd('standalone__gqa_block_cached__near_ridge_kernel', 256, 100)
    open(out, 'w').write(txt)
    print('wrote', out, a.nins, 'instructions')


if __name__ == '__main__':
    main()
```
